```python
import torch

def _softmax(x, axis=-1):
    return torch.softmax(x, dim=axis)
def _gelu(x):
    return torch.nn.functional.gelu(x, approximate="tanh")
def _silu(x):
    return torch.nn.functional.silu(x)
def _sigmoid(x):
    return torch.sigmoid(x)
def _layernorm(x, axis=-1, eps=1e-5):
    m = x.mean(dim=axis, keepdim=True)
    v = x.var(dim=axis, keepdim=True, unbiased=False)
    return (x - m) / torch.sqrt(v + eps)
def _scatter_add(tgt, idx, src, axis=0):
    return tgt.clone().index_add_(axis, idx, src)
def _segment_sum(src, seg, n):
    out = torch.zeros((n,) + src.shape[1:], dtype=src.dtype)
    return out.index_add_(0, seg, src)
def _pad(x, pw):
    flat = tuple(v for pair in reversed(pw) for v in pair)
    return torch.nn.functional.pad(x, flat)

kernel_name = 'standalone__cheap_equivariant_egnn__graph'

def setup_inputs():

    _w = (lambda a: (lambda t: t.to(torch.bfloat16) if t.is_floating_point() else t)(torch.as_tensor(a)))
    N, deg, D, De = 10000, 16, 128, max(16, 1)
    E = N * deg
    return {
        "h": _w((lambda *s: torch.randn(*s, dtype=torch.bfloat16) * 0.2)(N, D)),
        "pos": _w((lambda *s: torch.randn(*s, dtype=torch.bfloat16) * 0.8)(N, 3)),
        "e_attr": _w((lambda *s: torch.randn(*s, dtype=torch.bfloat16) * 0.8)(E, De)),
        "src": _w((lambda lo, hi, *s: torch.randint(lo, hi, s))(0, N, E).to(torch.int64)),
        "dst": _w((lambda lo, hi, *s: torch.randint(lo, hi, s))(0, N, E).to(torch.int64)),
        "w_e": _w(0.1 * (lambda *s: torch.randn(*s, dtype=torch.bfloat16) * 0.8)(2 * D + 1 + De, D)),
        "w_x": _w(0.1 * (lambda *s: torch.randn(*s, dtype=torch.bfloat16) * 0.2)(D, 1)),
        "w_h": _w(0.1 * (lambda *s: torch.randn(*s, dtype=torch.bfloat16) * 0.2)(2 * D, D)),
    }

def reference(h, pos, e_attr, src, dst, w_e, w_x, w_h):
    N, D = h.shape[0], h.shape[1]
    diff = pos[dst] - pos[src]
    dist2 = torch.sum(diff * diff, axis=-1, keepdims=True)
    e_in = torch.concatenate([h[dst], h[src], dist2, e_attr], axis=-1)
    m_ij = _silu(e_in @ w_e)
    coord_scale = m_ij @ w_x
    pos_new = pos + _segment_sum(diff * coord_scale, dst, N)
    m_i = _segment_sum(m_ij, dst, N)
    h_new = h + _silu(torch.concatenate([h, m_i], axis=-1) @ w_h)
    return h_new, pos_new
```

```python
import re

class Asm:
    def __init__(self):
        self.lines = []
    def __call__(self, s=""):
        for ln in s.split("\n"):
            self.lines.append(ln)
    def label(self, name): self.lines.append(name + ":")
    def comment(self, s): self.lines.append("    ; " + s)
    def text(self): return "\n".join(self.lines) + "\n"

class Regs:
    def __init__(self, kind, start, limit):
        self.kind = kind; self.next = start; self.limit = limit; self.names = {}; self.hi = start
    def alloc(self, name, n=1, align=1):
        s = (self.next + align - 1) // align * align
        assert s + n <= self.limit, f"out of {self.kind} regs allocating {name}"
        self.names[name] = (s, n); self.next = s + n; self.hi = max(self.hi, self.next)
        return s
    def at(self, name, start, n=1):
        self.names[name] = (start, n); self.hi = max(self.hi, start + n); return start

def v(i, n=1): return f"v{i}" if n == 1 else f"v[{i}:{i+n-1}]"
def s(i, n=1): return f"s{i}" if n == 1 else f"s[{i}:{i+n-1}]"

TRANS = ("v_exp_f32", "v_log_f32", "v_rcp_f32", "v_rsq_f32", "v_sqrt_f32", "v_sin_f32", "v_cos_f32", "v_rcp_iflag_f32")
def parse_regs(tok):
    tok = tok.strip()
    neg = tok.lstrip("-|").rstrip("|")
    m = re.fullmatch(r"([vsa])(\d+)", neg)
    if m: return [(m.group(1), int(m.group(2)))]
    m = re.fullmatch(r"([vsa])\[(\d+):(\d+)\]", neg)
    if m: return [(m.group(1), i) for i in range(int(m.group(2)), int(m.group(3)) + 1)]
    if neg == "vcc": return [("s", 106), ("s", 107)]
    if neg == "exec": return [("s", 126), ("s", 127)]
    if neg == "m0": return [("s", 124)]
    return []

def classify(op):
    if op.startswith("v_mfma"): return "mfma"
    if op.startswith("v_"): return "valu"
    if op.startswith("ds_"): return "ds"
    if op.startswith(("buffer_", "global_", "flat_")): return "vmem"
    if op.startswith("s_"): return "salu"
    return "other"

def instr_rw(line):
    code = line.split(";")[0].strip()
    if not code or code.endswith(":") or code.startswith("."): return None
    parts = code.split(None, 1)
    op = parts[0]; rest = parts[1] if len(parts) > 1 else ""
    ops = [o.strip() for o in re.split(r",\s*(?![^\[]*\])", rest)] if rest else []
    mods = ""
    if ops:
        sp = ops[-1].split()
        ops[-1] = sp[0] if sp else ""
        mods = " ".join(sp[1:])
    kind = classify(op)
    W, R = [], []
    regs = [parse_regs(o) for o in ops]
    if kind == "mfma":
        W = regs[0]; R = regs[1] + regs[2] + regs[3]
        return op, kind, W, R, dict(A=regs[1], B=regs[2], C=regs[3], passes=8 if "32x32" in op else 4)
    if kind == "valu":
        if op.startswith("v_cmp"):
            W = regs[0]; R = sum(regs[1:], [])
            if op.startswith("v_cmpx"): W = W + parse_regs("exec")
        elif op.startswith(("v_readfirstlane", "v_readlane")):
            W = regs[0]; R = sum(regs[1:], [])
        elif op.startswith("v_permlane32_swap") or op.startswith("v_permlane16_swap"):
            W = regs[0] + regs[1]; R = regs[0] + regs[1]
        elif op.startswith(("v_add_co", "v_sub_co", "v_addc_co", "v_subb_co")):
            W = regs[0] + regs[1]; R = sum(regs[2:], [])
        else:
            W = regs[0]; R = sum(regs[1:], [])
            if op.startswith(("v_fmac", "v_pk_fmac", "v_mac")): R = R + regs[0]
            if op.startswith("v_cndmask") and len(ops) == 3: R = R + parse_regs("vcc")
            if op.startswith("v_writelane"): R = R + regs[0]
            if "dpp" in op or "row_" in mods or "quad_perm" in mods: pass
        return op, kind, W, R, dict(mods=mods, dpp=("row_" in mods or "quad_perm" in mods or "_dpp" in op))
    if kind == "ds":
        if op.startswith("ds_read") or "_rtn" in op or op.startswith(("ds_bpermute", "ds_permute", "ds_swizzle")):
            W = regs[0]; R = sum(regs[1:], [])
        else:
            R = sum(regs, [])
        return op, kind, W, R, dict(mods=mods)
    if kind == "vmem":
        lds = " lds" in (" " + mods + " ") or op.startswith("global_load_lds")
        if ("load" in op) and not lds:
            W = regs[0]; R = sum(regs[1:], [])
        elif "atomic" in op and ("sc0" in mods):
            W = regs[0]; R = sum(regs, [])
        else:
            R = sum(regs, [])
        return op, kind, W, R, dict(mods=mods, lds=lds, store=("store" in op), wide=("x3" in op or "x4" in op))
    if kind == "salu":
        if op.startswith(("s_cmp", "s_cbranch", "s_branch", "s_waitcnt", "s_barrier", "s_nop", "s_endpgm", "s_sleep", "s_setprio", "s_bitcmp")):
            R = sum(regs, [])
        else:
            W = regs[0] if regs else []; R = sum(regs[1:], [])
            if "saveexec" in op: W = W + parse_regs("exec"); R = R + parse_regs("exec")
        return op, kind, W, R, dict()
    return None

def check_hazards(text, verbose=True):
    hist = []
    pos = 0; problems = []
    for ln, line in enumerate(text.split("\n"), 1):
        r = instr_rw(line)
        if r is None: continue
        op, kind, W, R, info = r
        Rs, Ws = set(R), set(W)
        def need(dist_needed, h, why):
            d = pos - h[0] - h[7]
            if d < dist_needed: problems.append((ln, line.strip(), h[1], why, dist_needed, d))
        for h in reversed(hist[-40:]):
            hp, hl, hop, hk, hW, hR, hinfo, hlen = h
            hWs = set(hW)
            if hk == "valu":
                vw = {x for x in hWs if x[0] in "va"}; sw = {x for x in hWs if x[0] == "s"}
                if hop.startswith(TRANS) and kind in ("valu",) and not op.startswith(TRANS) and (vw & Rs): need(1, h, "trans->valu")
                if hop.startswith(TRANS) and kind == "valu" and op.startswith(TRANS) and False: pass
                if kind == "mfma" and (vw & Rs): need(2, h, "valu->mfma")
                if kind == "valu" and op.startswith(("v_readfirstlane", "v_readlane")) and (vw & Rs): need(1, h, "valu->readlane")
                if kind == "valu" and op.startswith("v_permlane") and (vw & Rs): need(2, h, "valu->permlane")
                if kind == "valu" and info.get("dpp") and (vw & Rs): need(2, h, "valu->dpp")
                if sw:
                    if kind == "valu" and (sw & Rs): need(2, h, "valu sgpr->valu const")
                    if kind == "vmem" and (sw & Rs): need(5, h, "valu sgpr->vmem")
                    if kind == "valu" and op.startswith(("v_readlane", "v_writelane")) and (sw & Rs): need(4, h, "valu sgpr->lanesel")
                    if ("s", 126) in sw and kind == "mfma": need(4, h, "valu exec->mfma")
            if hk == "mfma":
                P = hinfo["passes"]
                if kind in ("valu", "vmem", "ds") and (hWs & (Rs | (Ws if kind != "x" else set()))): need(12 if P == 8 else 8, h, "mfma D->valu/mem")
                if kind == "mfma":
                    if hWs & (set(info["A"]) | set(info["B"])): need(12 if P == 8 else 8, h, "mfma D->mfma A/B")
                    C = set(info["C"])
                    if (hWs & C) and not (hW == info["C"] and P == info["passes"]): need(10 if P == 8 else 6, h, "mfma D->mfma C overlap")
                if kind == "valu" and (set(hinfo["C"]) & Ws): need(7 if P == 8 else 3, h, "mfma C WAR")
            if hk == "salu":
                if ("s", 124) in hWs and kind == "vmem" and info.get("lds"): need(1, h, "m0->lds dma")
            if hk == "vmem" and hinfo.get("store") and hinfo.get("wide"):
                if kind == "valu" and (set(hR) & {x for x in Ws if x[0] == "v"}): need(2, h, "wide store WAR")
        ln_states = 1
        if op == "s_nop":
            ln_states = int(line.split(";")[0].split()[1], 0) + 1
        hist.append((pos, ln, op, kind, W, R, info, ln_states))
        pos += ln_states
    if verbose:
        for p in problems: print("HAZARD line %d: %s  (producer line %d) %s need %d have %d" % p)
    return problems
```

```python
import sys, struct
from asmlib import *

def f32bits(x): return struct.unpack("<I", struct.pack("<f", x))[0]
LOG2E = 1.4426950408889634
LN2 = 0.6931471805599453

N = 10000; E = 160000; NB = 250; NPB = 40; NCH = 64; CH = 2500
CELL_BYTES = NB * NCH * 128
WS_FR = 0x200000
WEF_BYTES = 17 * 4 * 1024
WHF_OFF = WS_FR + WEF_BYTES
WS_USED = WS_FR + WEF_BYTES + 65536
CAP = 192
RSTR = 8704
QSTR = 1088
RING = 0
EAR = 6 * RSTR
A3T = EAR + 8192
A2L = A3T + 960 * 64
A2H = A2L + 960 * 16
REC = A2H + 960 * 16
CNT = REC + 992 * 8
POSACC = CNT + 64
LDS2 = 163840
HOWN1 = 2 * RSTR
HOWN2 = 5 * RSTR
NULLB = 960

class Cfg:
    prescale = True
    g1 = 256
    pf_h_lines = 512
    pf_ea = True
    pf_code = True
    dbg = False

def srd(a, d, base, nrec, stride=0):
    a(f"    s_mov_b32 s{d}, s{base}")
    if stride:
        a(f"    s_and_b32 s{d+1}, s{base+1}, 0xffff")
        a(f"    s_or_b32 s{d+1}, s{d+1}, {hex(stride << 16)}")
    else:
        a(f"    s_and_b32 s{d+1}, s{base+1}, 0xffff")
    a(f"    s_mov_b32 s{d+2}, {nrec}")
    a(f"    s_mov_b32 s{d+3}, 0x00020000")

def gen_k1(a, cfg):
    a(".globl k1_kernel\n.p2align 8\n.type k1_kernel,@function\nk1_kernel:")
    a(f"    s_cmp_ge_u32 s2, {cfg.g1}")
    a("    s_cbranch_scc1 K1_done")
    a("    s_cmp_ge_u32 s2, 73")
    a("    s_cbranch_scc1 K1_pref")
    a("    s_cmp_ge_u32 s2, 64")
    a("    s_cbranch_scc1 K1_prep")
    a("    s_load_dwordx4 s[4:7], s[0:1], 24")
    a("    s_load_dwordx2 s[8:9], s[0:1], 80")
    a("    v_lshlrev_b32 v1, 4, v0")
    a("    v_lshlrev_b32 v2, 2, v0")
    a("    v_mov_b32 v4, -1\n    v_mov_b32 v5, -1\n    v_mov_b32 v6, -1\n    v_mov_b32 v7, -1\n    v_mov_b32 v3, 0")
    a("    ds_write_b128 v1, v[4:7]")
    a("    ds_write_b128 v1, v[4:7] offset:16384")
    a("    ds_write_b32 v2, v3 offset:32768")
    a("    s_mul_i32 s10, s2, 10000")
    a("    s_movk_i32 s20, 0x1000")
    a("    s_movk_i32 s21, 0x2000")
    a("    s_waitcnt lgkmcnt(0)")
    a("    s_add_u32 s12, s4, s10\n    s_addc_u32 s13, s5, 0\n    s_and_b32 s13, s13, 0xffff\n    s_mov_b32 s14, 10000\n    s_mov_b32 s15, 0x00020000")
    a("    s_add_u32 s16, s6, s10\n    s_addc_u32 s17, s7, 0\n    s_and_b32 s17, s17, 0xffff\n    s_mov_b32 s18, 10000\n    s_mov_b32 s19, 0x00020000")
    a("    buffer_load_dword v9, v2, s[16:19], 0 offen")
    a("    buffer_load_dword v8, v2, s[12:15], 0 offen")
    a("    buffer_load_dword v11, v2, s[16:19], s20 offen")
    a("    buffer_load_dword v10, v2, s[12:15], s20 offen")
    a("    buffer_load_dword v13, v2, s[16:19], s21 offen")
    a("    buffer_load_dword v12, v2, s[12:15], s21 offen")
    srd(a, 24, 8, CELL_BYTES)
    a("    s_lshl_b32 s22, s2, 7")
    a("    v_mov_b32 v30, 1")
    a("    s_barrier")
    a("    s_waitcnt vmcnt(0)")
    for e in range(3):
        S, D, B, R = 8 + 2 * e, 9 + 2 * e, 14 + e, 17 + e
        a(f"    v_mul_u32_u24 v{B}, 52429, v{D}")
        a(f"    v_lshrrev_b32 v{B}, 21, v{B}")
        a(f"    v_mul_u32_u24 v24, 40, v{B}")
        a(f"    v_sub_u32 v24, v{D}, v24")
        a(f"    v_lshl_or_b32 v{R}, v24, 14, v{S}")
        a(f"    v_add_u32 v25, {1024 * e}, v0")
        a(f"    v_lshl_or_b32 v{R}, v25, 20, v{R}")
        a(f"    v_lshlrev_b32 v26, 2, v{B}")
        if e == 2:
            a("    v_cmp_gt_u32 vcc, 452, v0")
            a("    s_and_saveexec_b64 s[28:29], vcc")
            a("    v_mov_b32 v22, 64")
        a(f"    ds_add_rtn_u32 v{20+e}, v26, v30 offset:32768")
    a("    s_mov_b64 exec, s[28:29]")
    a("    s_waitcnt lgkmcnt(0)")
    for e in range(3):
        B, R, K = 14 + e, 17 + e, 20 + e
        a(f"    v_cmp_gt_u32 vcc, 32, v{K}")
        if e == 2:
            a("    s_movk_i32 s33, 452")
            a("    v_cmp_gt_u32 s[30:31], s33, v0")
            a("    s_nop 1")
            a("    s_and_b64 vcc, vcc, s[30:31]")
        a(f"    v_and_b32 v24, 7, v{K}")
        a(f"    v_lshlrev_b32 v24, 4, v24")
        a(f"    v_lshl_add_u32 v24, v{B}, 7, v24")
        a(f"    v_lshrrev_b32 v25, 3, v{K}")
        a(f"    v_lshl_add_u32 v24, v25, 2, v24")
        a("    s_and_saveexec_b64 s[28:29], vcc")
        a(f"    ds_write_b32 v24, v{R}")
        a("    s_mov_b64 exec, s[28:29]")
    a("    s_waitcnt lgkmcnt(0)")
    a("    s_barrier")
    a("    ds_read_b128 v[8:11], v1")
    a("    ds_read_b128 v[12:15], v1 offset:16384")
    a("    v_lshrrev_b32 v16, 3, v0")
    a("    v_lshlrev_b32 v17, 2, v16")
    a("    ds_read_b32 v18, v17 offset:32768")
    a("    ds_read_b32 v19, v17 offset:33280")
    a("    v_and_b32 v20, 7, v0")
    a("    v_lshlrev_b32 v21, 4, v20")
    a("    v_lshl_add_u32 v21, v16, 13, v21")
    a("    v_add_u32 v22, 0x100000, v21")
    a("    v_mov_b32 v23, -2")
    a("    v_cmp_eq_u32 s[30:31], 0, v20")
    a("    s_waitcnt lgkmcnt(0)")
    a("    v_cmp_lt_u32 vcc, 32, v18")
    a("    s_nop 1")
    a("    s_and_b64 vcc, vcc, s[30:31]")
    a("    v_cndmask_b32 v8, v8, v23, vcc")
    a("    v_cmp_lt_u32 vcc, 32, v19")
    a("    s_nop 1")
    a("    s_and_b64 vcc, vcc, s[30:31]")
    a("    v_cndmask_b32 v12, v12, v23, vcc")
    a("    buffer_store_dwordx4 v[8:11], v21, s[24:27], s22 offen")
    a("    buffer_store_dwordx4 v[12:15], v22, s[24:27], s22 offen")
    a("    s_endpgm")
    a.label("K1_prep")
    a("    s_load_dwordx2 s[4:5], s[0:1], 40")
    a("    s_load_dwordx2 s[6:7], s[0:1], 56")
    a("    s_load_dwordx2 s[8:9], s[0:1], 80")
    a("    s_sub_u32 s10, s2, 64")
    a("    s_lshl_b32 s10, s10, 10")
    a("    v_add_u32 v1, s10, v0")
    a("    s_nop 0")
    a("    v_readfirstlane_b32 s11, v1")
    a("    v_and_b32 v2, 63, v0")
    a("    s_cmp_ge_u32 s11, 8448")
    a("    s_cbranch_scc1 K1_done")
    a("    s_cmp_ge_u32 s11, 4352")
    a("    s_cbranch_scc1 K1_prepH")
    a("    s_lshr_b32 s12, s11, 8")
    a("    s_lshl_b32 s13, s12, 4")
    a("    s_cmp_eq_u32 s12, 16")
    a("    s_cselect_b32 s13, 257, s13")
    a("    s_cmp_ge_u32 s12, 8")
    a(f"    s_cselect_b32 s14, {hex(f32bits(-LOG2E if cfg.prescale else 1.0))}, 1.0")
    a("    s_lshr_b32 s15, s11, 6\n    s_and_b32 s15, s15, 3\n    s_lshl_b32 s15, s15, 5")
    a("    v_lshrrev_b32 v3, 5, v2\n    v_lshlrev_b32 v3, 3, v3\n    v_add_u32 v3, s13, v3")
    a("    v_and_b32 v4, 31, v2\n    v_add_u32 v4, s15, v4")
    a("    s_waitcnt lgkmcnt(0)")
    srd(a, 16, 4, 273 * 256)
    a("    s_branch K1_prepC")
    a.label("K1_prepH")
    a("    s_sub_u32 s12, s11, 4352")
    a("    s_lshr_b32 s13, s12, 6\n    s_and_b32 s13, s13, 7\n    s_lshl_b32 s13, s13, 5")
    a("    s_lshr_b32 s15, s12, 9\n    s_lshl_b32 s15, s15, 4")
    a("    s_mov_b32 s14, 1.0")
    a("    v_lshrrev_b32 v3, 4, v2\n    v_lshlrev_b32 v3, 3, v3\n    v_add_u32 v3, s13, v3")
    a("    v_and_b32 v4, 15, v2\n    v_add_u32 v4, s15, v4")
    a("    s_waitcnt lgkmcnt(0)")
    srd(a, 16, 6, 256 * 256)
    a.label("K1_prepC")
    a("    v_lshlrev_b32 v3, 8, v3\n    v_lshl_add_u32 v3, v4, 1, v3")
    for j in range(8):
        a(f"    buffer_load_ushort v{8+j}, v3, s[16:19], 0 offen offset:{j*256}")
    srd(a, 20, 8, WS_USED)
    a("    v_lshlrev_b32 v1, 4, v1")
    a(f"    s_mov_b32 s24, {WS_FR}")
    a("    s_waitcnt vmcnt(0)")
    for j in range(8):
        a(f"    v_lshlrev_b32 v{8+j}, 16, v{8+j}")
    for j in range(8):
        a(f"    v_mul_f32 v{8+j}, s14, v{8+j}")
    for j in range(4):
        a(f"    v_cvt_pk_bf16_f32 v{16+j}, v{8+2*j}, v{9+2*j}")
    a("    buffer_store_dwordx4 v[16:19], v1, s[20:23], s24 offen")
    a("    s_endpgm")
    a.label("K1_pref")
    a("    s_load_dwordx2 s[4:5], s[0:1], 0")
    a("    s_load_dwordx2 s[6:7], s[0:1], 16")
    a("    s_lshr_b32 s10, s2, 3")
    a("    s_sub_u32 s10, s10, 9")
    a(f"    s_mul_i32 s11, s10, {cfg.pf_h_lines * 128}")
    a("    v_lshlrev_b32 v1, 7, v0")
    a("    s_sub_u32 s12, s2, 73")
    a(f"    s_mul_i32 s12, s12, {219 * 128}")
    a("    s_waitcnt lgkmcnt(0)")
    srd(a, 16, 4, N * 256)
    srd(a, 20, 6, E * 32)
    if cfg.pf_ea:
        a("    v_cmp_gt_u32 vcc, 219, v0")
        a("    s_and_saveexec_b64 s[28:29], vcc")
        a("    s_cbranch_execz K1_pf2")
        a("    buffer_load_dword v3, v1, s[20:23], s12 offen")
        a.label("K1_pf2")
        a("    s_mov_b64 exec, s[28:29]")
    if cfg.pf_h_lines > 0:
        a(f"    v_cmp_gt_u32 vcc, {cfg.pf_h_lines}, v0")
        a("    s_and_saveexec_b64 s[28:29], vcc")
        a("    s_cbranch_execz K1_pf3")
        a("    buffer_load_dword v2, v1, s[16:19], s11 offen")
        a.label("K1_pf3")
        a("    s_mov_b64 exec, s[28:29]")
    if cfg.pf_code:
        a("    s_cmp_lg_u32 s10, 22")
        a("    s_cbranch_scc1 K1_done")
        a("    s_getpc_b64 s[24:25]")
        a.label("K1_pc")
        a("    s_add_u32 s24, s24, k2_kernel-K1_pc")
        a("    s_addc_u32 s25, s25, 0")
        a("    v_cmp_gt_u32 vcc, (K2_end-k2_kernel+127)/128, v0")
        a("    s_and_saveexec_b64 s[28:29], vcc")
        a("    s_cbranch_execz K1_done")
        a("    global_load_dword v4, v1, s[24:25]")
    a.label("K1_done")
    a("    s_endpgm")

def gen_k2(a, cfg):
    V = Regs("v", 1, 256)
    vTID = 0
    W2F = V.alloc("W2F", 32, 4); W4F = V.alloc("W4F", 4, 4); X = V.alloc("X", 12, 4)
    D = [V.alloc("D0", 16, 4), V.alloc("D1", 16, 4)]
    DP = V.alloc("DP", 48, 4); HP = V.alloc("HP", 12, 4)
    HF = V.alloc("HF", 32, 4); EF = V.alloc("EF", 4, 4); AF = V.alloc("AF", 4, 4)
    TR = V.alloc("TR", 8, 4); M = V.alloc("M", 8, 4); T = V.alloc("T", 8, 4)
    iH0 = V.alloc("iH0", 2, 2); iH1 = V.alloc("iH1", 2, 2); iE = V.alloc("iE", 2, 2)
    cRecH = V.alloc("cRecH"); cRecE = V.alloc("cRecE"); cA2 = V.alloc("cA2"); cA3 = V.alloc("cA3")
    cHA0 = V.alloc("cHA0"); cHA1 = V.alloc("cHA1"); cEA = V.alloc("cEA"); cHB = V.alloc("cHB")
    vL = V.alloc("vL")
    A0 = V.alloc("A0", 1, 2); A1 = V.alloc("A1"); A2_ = V.alloc("A2"); A3_ = V.alloc("A3"); A4 = V.alloc("A4"); A5 = V.alloc("A5"); A6 = V.alloc("A6")
    nv = V.hi
    sH, sEA, sPOS, sWS, sOUT, sMI = 8, 12, 16, 20, 24, 28
    P = 32
    pH, pPOS, pEA, pSRC, pDST, pWE, pWX, pWH, pOUT, pDBG, pWS = [P + 2 * i for i in range(11)]
    sW, sSet, sC, sB40 = 54, 55, 56, 57
    sCnt = 58
    sE1, sE2, sE3, sO0, sO1, sO2, sEnd0, sEnd1, sEnd2 = 64, 65, 66, 67, 68, 69, 70, 71, 72
    sNIT, sI = 73, 74
    sBase = [75, 76, 77, 78, 79]
    sK = [80, 81, 82, 83, 84]
    sNQ = [85, 86, 87, 88, 89]
    sRing = 90
    sRingW = 91
    sEAr = 92
    sEAw = 93
    sMode, sWin, sFirst = 94, 95, 96
    t0, t1, t2, t3, t4 = 97, 98, 99, 100, 101
    sX = 4
    sRingBase = 3

    a(".globl k2_kernel\n.p2align 8\n.type k2_kernel,@function\nk2_kernel:")
    a(f"    s_cmp_ge_u32 s2, {NB}")
    a("    s_cbranch_scc1 K2_done")
    a(f"    s_load_dwordx16 s[{P}:{P+15}], s[0:1], 0")
    a(f"    s_load_dwordx4 s[{P+16}:{P+19}], s[0:1], 64")
    a(f"    s_load_dwordx2 s[{P+20}:{P+21}], s[0:1], 80")
    a(f"    v_and_b32 v{vL}, 63, v0")
    a(f"    v_lshrrev_b32 v{A0}, 6, v0")
    a(f"    v_lshlrev_b32 v{A1}, 4, v0")
    a(f"    v_readfirstlane_b32 s{sW}, v{A0}")
    a(f"    s_mul_i32 s{sB40}, s2, 40")
    a(f"    s_lshl_b32 s{t0}, s2, 13")
    a(f"    s_lshr_b32 s{sSet}, s{sW}, 2")
    a(f"    s_and_b32 s{sC}, s{sW}, 3")
    a(f"    s_mul_i32 s{sRingBase}, s{sSet}, {3*RSTR}")
    a(f"    s_waitcnt lgkmcnt(0)")
    srd(a, sWS, pWS, WS_USED)
    RR = HF + 28
    RR = TR
    a(f"    buffer_load_dwordx4 v[{RR}:{RR+3}], v{A1}, s[{sWS}:{sWS+3}], s{t0} offen      ; cells")
    srd(a, sH, pH, N, stride=256)
    l = vL
    a(f"    v_lshrrev_b32 v{A0}, 4, v{l}")
    a(f"    v_and_b32 v{A2_}, 15, v{l}")
    a(f"    v_xor_b32 v{A2_}, v{A2_}, v{A0}")
    a(f"    v_lshlrev_b32 v{iH0+1}, 4, v{A2_}")
    a(f"    v_mov_b32 v{iH1+1}, v{iH0+1}")
    a(f"    s_lshl_b32 s{t1}, s{sW}, 3")
    a(f"    s_add_u32 s{t1}, s{t1}, s{sB40}")
    a(f"    v_add_u32 v{iH0}, s{t1}, v{A0}")
    a(f"    v_add_u32 v{iH1}, 4, v{iH0}")
    a(f"    s_and_b32 s{t2}, s{sW}, 3")
    a(f"    s_mul_i32 s{t2}, s{t2}, {2*QSTR}")
    a(f"    s_cmp_ge_u32 s{sW}, 4")
    a(f"    s_mov_b32 s{t3}, {HOWN1}")
    a(f"    s_cselect_b32 s{t3}, {HOWN2}, s{t3}")
    a(f"    s_add_u32 s{t2}, s{t2}, s{t3}")
    a(f"    s_mov_b32 m0, s{t2}")
    a(f"    s_add_u32 s{t2}, s{t2}, {QSTR}")
    a(f"    buffer_load_dwordx4 v[{iH0}:{iH0+1}], s[{sH}:{sH+3}], 0 idxen offen lds")
    a(f"    s_mov_b32 m0, s{t2}")
    a(f"    s_nop 0")
    a(f"    buffer_load_dwordx4 v[{iH1}:{iH1+1}], s[{sH}:{sH+3}], 0 idxen offen lds")
    a(f"    v_lshlrev_b32 v{A3_}, 4, v{l}")
    a(f"    s_lshl_b32 s{t1}, s{sC}, 10")
    a(f"    s_add_u32 s{t1}, s{t1}, {WS_FR}")
    nW = 0
    for q in range(17):
        dst = HF + 4 * q if q < 8 else (W2F + 4 * (q - 8) if q < 16 else W4F)
        a(f"    buffer_load_dwordx4 v[{dst}:{dst+3}], v{A3_}, s[{sWS}:{sWS+3}], s{t1} offen")
        nW += 1
        if q < 16: a(f"    s_add_u32 s{t1}, s{t1}, 4096")
    a(f"    s_lshl_b32 s{t1}, s{sW}, 13")
    a(f"    s_add_u32 s{t1}, s{t1}, {WHF_OFF}")
    for s_ in range(4):
        a(f"    buffer_load_dwordx4 v[{D[1]+4*s_}:{D[1]+4*s_+3}], v{A3_}, s[{sWS}:{sWS+3}], s{t1} offen offset:{1024*s_}")
        nW += 1
    srd(a, sMI, pWE, 273 * 256)
    a(f"    v_and_b32 v{A4}, 31, v{l}")
    a(f"    s_lshl_b32 s{t1}, s{sC}, 5")
    a(f"    v_add_u32 v{A4}, s{t1}, v{A4}")
    a(f"    v_lshlrev_b32 v{A4}, 1, v{A4}")
    a(f"    s_mov_b32 s{t1}, {256*256}")
    a(f"    buffer_load_ushort v{A6}, v{A4}, s[{sMI}:{sMI+3}], s{t1} offen")
    nW += 1
    srd(a, sEA, pEA, E, stride=32)
    srd(a, sPOS, pPOS, N * 6 + 4)
    srd(a, sOUT, pOUT, N * 128 * 2 + N * 3 * 2)
    for r in range(48): a(f"    v_mov_b32 v{DP+r}, 0")
    a(f"    s_mov_b32 s{sMode}, 0")
    a(f"    s_mov_b32 s{sFirst}, 1")
    e = A0
    a(f"    v_and_b32 v{e}, 31, v{l}")
    a(f"    v_lshrrev_b32 v{A2_}, 5, v{l}")
    a(f"    v_lshrrev_b32 v{A3_}, 2, v{e}")
    a(f"    v_mul_u32_u24 v{A3_}, {QSTR}, v{A3_}")
    a(f"    v_and_b32 v{A4}, 3, v{e}")
    a(f"    v_lshl_add_u32 v{A3_}, v{A4}, 8, v{A3_}")
    a(f"    v_xor_b32 v{A5}, v{A2_}, v{A4}")
    a(f"    v_lshl_add_u32 v{cHA0}, v{A5}, 4, v{A3_}")
    a(f"    v_xor_b32 v{A5}, 2, v{A5}")
    a(f"    v_lshl_add_u32 v{cHA1}, v{A5}, 4, v{A3_}")
    a(f"    v_mul_u32_u24 v{A5}, {A2H - A2L}, v{A2_}")
    a(f"    v_lshl_add_u32 v{cA2}, v{e}, 4, v{A5}")
    a(f"    v_add_u32 v{cA2}, {A2L}, v{cA2}")
    a(f"    v_lshlrev_b32 v{cEA}, 5, v{e}")
    a(f"    v_lshl_add_u32 v{cEA}, v{A2_}, 4, v{cEA}")
    a(f"    s_lshl_b32 s{t1}, s{sSet}, 12")
    a(f"    s_add_u32 s{t1}, s{t1}, {EAR}")
    a(f"    v_add_u32 v{cEA}, s{t1}, v{cEA}")
    a(f"    v_lshlrev_b32 v{cA3}, 8, v{A2_}")
    a(f"    v_bfe_u32 v{A5}, v{l}, 4, 1")
    a(f"    v_lshl_add_u32 v{cA3}, v{A5}, 5, v{cA3}")
    a(f"    v_bfe_u32 v{A5}, v{l}, 2, 2")
    a(f"    v_lshl_add_u32 v{cA3}, v{A5}, 6, v{cA3}")
    a(f"    v_and_b32 v{A5}, 3, v{l}")
    a(f"    v_lshl_add_u32 v{cA3}, v{A5}, 3, v{cA3}")
    a(f"    v_add_u32 v{cA3}, {A3T}, v{cA3}")
    a(f"    s_lshl_b32 s{t1}, s{sC}, 6")
    a(f"    s_add_u32 s{t1}, s{t1}, {REC}")
    a(f"    v_lshrrev_b32 v{A5}, 4, v{l}")
    a(f"    v_lshlrev_b32 v{A5}, 3, v{A5}")
    a(f"    v_add_u32 v{cRecH}, s{t1}, v{A5}")
    a(f"    v_bfe_u32 v{A5}, v{l}, 1, 3")
    a(f"    v_lshlrev_b32 v{A5}, 3, v{A5}")
    a(f"    v_add_u32 v{cRecE}, s{t1}, v{A5}")
    a(f"    v_and_b32 v{A5}, 1, v{l}")
    a(f"    v_lshlrev_b32 v{iE+1}, 4, v{A5}")
    a(f"    v_bfe_u32 v{A5}, v{l}, 2, 2")
    a(f"    v_mul_u32_u24 v{cHB}, {QSTR}, v{A5}")
    a(f"    v_and_b32 v{A5}, 3, v{l}")
    a(f"    v_lshl_add_u32 v{cHB}, v{A5}, 8, v{cHB}")
    a(f"    v_lshrrev_b32 v{A4}, 4, v{l}")
    a(f"    v_xor_b32 v{A5}, v{A5}, v{A4}")
    a(f"    v_lshl_add_u32 v{cHB}, v{A5}, 4, v{cHB}")
    a.label("K2_zero")
    Z = M
    for r in range(4): a(f"    v_mov_b32 v{Z+r}, 0")
    a(f"    v_lshlrev_b32 v{A1}, 4, v0")
    a(f"    v_add_u32 v{A1}, 57344, v{A1}")
    for r in range(13):
        if r == 8: a(f"    v_add_u32 v{A1}, 65536, v{A1}")
        a(f"    ds_write_b128 v{A1}, v[{Z}:{Z+3}] offset:{(r % 8) * 8192}")
    a(f"    s_waitcnt lgkmcnt(0)")
    a(f"    s_barrier")
    a(f"    s_cmp_lg_u32 s{sMode}, 0")
    a(f"    s_cbranch_scc1 K2_slowload")
    a(f"    s_waitcnt vmcnt({2 + nW})")
    vCB = A6 + 0
    vCB = A5
    a(f"    v_lshrrev_b32 v{vCB}, 3, v0")
    a(f"    v_mul_u32_u24 v{vCB}, {CH}, v{vCB}")
    a(f"    v_cmp_eq_u32 vcc, -2, v{RR}")
    a(f"    s_cbranch_vccz K2_rank")
    a(f"    v_mov_b32 v{A0}, 1")
    a(f"    v_mov_b32 v{A1}, {CNT + 20}")
    a(f"    ds_write_b32 v{A1}, v{A0}")
    a.label("K2_rank")
    one = A0
    a(f"    v_mov_b32 v{one}, 1")
    for j in range(4):
        r = RR + j
        a(f"    v_cmp_gt_u32 vcc, -2, v{r}")
        a(f"    s_and_saveexec_b64 s[{sX}:{sX+1}], vcc")
        a(f"    s_cbranch_execz K2_rk{j}")
        a(f"    v_bfe_u32 v{A1}, v{r}, 17, 3")
        a(f"    v_lshlrev_b32 v{A2_}, 2, v{A1}")
        a(f"    v_add_u32 v{A2_}, {CNT}, v{A2_}")
        a(f"    ds_add_rtn_u32 v{T+j}, v{A2_}, v{one}")
        a(f"    v_mul_u32_u24 v{T+4+j}, {CAP}, v{A1}")
        a(f"    v_and_b32 v{A3_}, 0x3fff, v{r}")
        a(f"    v_bfe_u32 v{A4}, v{r}, 14, 6")
        a(f"    v_lshl_or_b32 v{M+j}, v{A4}, 16, v{A3_}")
        a(f"    v_or_b32 v{M+j}, 0x80000000, v{M+j}")
        a(f"    v_lshrrev_b32 v{A4}, 20, v{r}")
        a(f"    v_add_u32 v{M+4+j}, v{A4}, v{vCB}")
        a(f"    s_waitcnt lgkmcnt(0)")
        a(f"    v_cmp_gt_u32 vcc, {CAP}, v{T+j}")
        a(f"    v_add_u32 v{A1}, v{T+j}, v{T+4+j}")
        a(f"    v_lshlrev_b32 v{A1}, 3, v{A1}")
        a(f"    v_add_u32 v{A1}, {REC}, v{A1}")
        a(f"    s_and_b64 exec, exec, vcc")
        a(f"    v_mov_b32 v{A2_}, v{M+j}")
        a(f"    v_mov_b32 v{A3_}, v{M+4+j}")
        a(f"    ds_write_b64 v{A1}, v[{A2_}:{A3_}]")
        a.label(f"K2_rk{j}")
        a(f"    s_mov_b64 exec, s[{sX}:{sX+1}]")
    assert A3_ == A2_ + 1 and A2_ % 2 == 0, (A2_, A3_)
    a(f"    s_waitcnt vmcnt({nW}) lgkmcnt(0)")
    a(f"    s_barrier")
    a(f"    v_mov_b32 v{A1}, {CNT}")
    a(f"    ds_read_b128 v[{T}:{T+3}], v{A1}")
    a(f"    ds_read_b64 v[{T+4}:{T+5}], v{A1} offset:16")
    a(f"    s_waitcnt lgkmcnt(0)")
    for g in range(5): a(f"    v_readfirstlane_b32 s{sCnt+g}, v{T+g}")
    a(f"    v_readfirstlane_b32 s{sCnt+5}, v{T+5}")
    a(f"    s_max_u32 s{t0}, s{sCnt}, s{sCnt+1}")
    a(f"    s_max_u32 s{t0}, s{t0}, s{sCnt+2}")
    a(f"    s_max_u32 s{t0}, s{t0}, s{sCnt+3}")
    a(f"    s_max_u32 s{t0}, s{t0}, s{sCnt+4}")
    a(f"    s_cmp_gt_u32 s{t0}, {CAP}")
    a(f"    s_cselect_b32 s{t0}, 1, 0")
    a(f"    s_or_b32 s{t0}, s{t0}, s{sCnt+5}")
    a(f"    s_cmp_lg_u32 s{t0}, 0")
    a(f"    s_cbranch_scc0 K2_cntok")
    a(f"    s_mov_b32 s{sMode}, 1")
    a(f"    s_mov_b32 s{sWin}, 0")
    a(f"    s_barrier")
    a(f"    s_branch K2_zero")
    a.label("K2_cntok")
    nt = [t0, t1, t2, t3, t4]
    for g in range(5):
        a(f"    s_add_u32 s{nt[g]}, s{sCnt+g}, 31")
        a(f"    s_lshr_b32 s{nt[g]}, s{nt[g]}, 5")
    a(f"    s_add_u32 s4, s{t0}, s{t1}")
    a(f"    s_add_u32 s5, s{t3}, s{t4}")
    a(f"    s_add_u32 s6, s4, s5")
    a(f"    s_add_u32 s6, s6, s{t2}")
    a(f"    s_add_u32 s7, s6, 1")
    a(f"    s_lshr_b32 s7, s7, 1")
    a(f"    s_sub_i32 s7, s7, s4")
    a(f"    s_max_i32 s7, s7, 0")
    a(f"    s_min_u32 s7, s7, s{t2}")
    a(f"    s_add_u32 s4, s4, s7")
    a(f"    s_sub_u32 s5, s6, s4")
    a(f"    s_max_u32 s{sNIT}, s4, s5")
    a(f"    s_cmp_eq_u32 s{sSet}, 0")
    a(f"    s_cbranch_scc0 K2_seg1")
    a(f"    s_mov_b32 s{sE1}, s{t0}")
    a(f"    s_add_u32 s{sE2}, s{t0}, s{t1}")
    a(f"    s_mov_b32 s{sE3}, s4")
    a(f"    s_mov_b32 s{sO0}, 0")
    a(f"    s_lshl_b32 s6, s{sE1}, 5\n    s_sub_u32 s{sO1}, {CAP}, s6")
    a(f"    s_lshl_b32 s6, s{sE2}, 5\n    s_sub_u32 s{sO2}, {2*CAP}, s6")
    a(f"    s_mov_b32 s{sEnd0}, s{sCnt}")
    a(f"    s_add_u32 s{sEnd1}, s{sCnt+1}, {CAP}")
    a(f"    s_add_u32 s{sEnd2}, s{sCnt+2}, {2*CAP}")
    a(f"    s_branch K2_segd")
    a.label("K2_seg1")
    a(f"    s_sub_u32 s{sE1}, s{t2}, s7")
    a(f"    s_add_u32 s{sE2}, s{sE1}, s{t3}")
    a(f"    s_mov_b32 s{sE3}, s5")
    a(f"    s_lshl_b32 s6, s7, 5\n    s_add_u32 s{sO0}, s6, {2*CAP}")
    a(f"    s_lshl_b32 s6, s{sE1}, 5\n    s_sub_u32 s{sO1}, {3*CAP}, s6")
    a(f"    s_lshl_b32 s6, s{sE2}, 5\n    s_sub_u32 s{sO2}, {4*CAP}, s6")
    a(f"    s_add_u32 s{sEnd0}, s{sCnt+2}, {2*CAP}")
    a(f"    s_add_u32 s{sEnd1}, s{sCnt+3}, {3*CAP}")
    a(f"    s_add_u32 s{sEnd2}, s{sCnt+4}, {4*CAP}")
    a.label("K2_segd")

    def info(idx_expr_reg, q):
        i = idx_expr_reg
        a(f"    s_cmp_ge_u32 s{i}, s{sE1}")
        a(f"    s_cselect_b32 s4, s{sO1}, s{sO0}")
        a(f"    s_cselect_b32 s5, s{sEnd1}, s{sEnd0}")
        a(f"    s_cselect_b32 s{sK[q]}, 1, 0")
        a(f"    s_cmp_ge_u32 s{i}, s{sE2}")
        a(f"    s_cselect_b32 s4, s{sO2}, s4")
        a(f"    s_cselect_b32 s5, s{sEnd2}, s5")
        a(f"    s_cselect_b32 s{sK[q]}, 2, s{sK[q]}")
        a(f"    s_lshl_b32 s6, s{i}, 5")
        a(f"    s_add_u32 s{sBase[q]}, s4, s6")
        a(f"    s_sub_u32 s5, s5, s{sBase[q]}")
        a(f"    s_min_u32 s5, s5, 32")
        a(f"    s_add_u32 s5, s5, 7")
        a(f"    s_lshr_b32 s{sNQ[q]}, s5, 3")
        a(f"    s_cmp_ge_u32 s{i}, s{sE3}")
        a(f"    s_cselect_b32 s{sBase[q]}, {NULLB}, s{sBase[q]}")
        a(f"    s_cselect_b32 s{sNQ[q]}, 0, s{sNQ[q]}")

    def dma_h(baseq, ringoff_sreg):
        a(f"    s_lshl_b32 s6, s{sBase[baseq]}, 3")
        a(f"    v_add_u32 v{A0}, s6, v{cRecH}")
        a(f"    ds_read_u16 v{iH0}, v{A0}")
        a(f"    ds_read_u16 v{iH1}, v{A0} offset:32")
    def dma_h_issue(ringoff_sreg):
        a(f"    s_mul_i32 s6, s{sC}, {2*QSTR}")
        a(f"    s_add_u32 s6, s6, s{ringoff_sreg}")
        a(f"    s_mov_b32 m0, s6")
        a(f"    s_add_u32 s6, s6, {QSTR}")
        a(f"    buffer_load_dwordx4 v[{iH0}:{iH0+1}], s[{sH}:{sH+3}], 0 idxen offen lds")
        a(f"    s_mov_b32 m0, s6")
        a(f"    s_nop 0")
        a(f"    buffer_load_dwordx4 v[{iH1}:{iH1+1}], s[{sH}:{sH+3}], 0 idxen offen lds")
    def dma_e(baseq):
        a(f"    s_lshl_b32 s6, s{sBase[baseq]}, 3")
        a(f"    v_add_u32 v{A1}, s6, v{cRecE}")
        a(f"    ds_read_b32 v{iE}, v{A1} offset:4")
    def dma_e_issue(eaoff_sreg):
        a(f"    s_lshl_b32 s6, s{sSet}, 12")
        a(f"    s_add_u32 s6, s6, s{eaoff_sreg}")
        a(f"    s_lshl_b32 s7, s{sC}, 8")
        a(f"    s_add_u32 s6, s6, s7")
        a(f"    s_add_u32 s6, s6, {EAR}")
        a(f"    s_mov_b32 m0, s6")
        a(f"    s_mov_b64 exec, 0xffff")
        a(f"    buffer_load_dwordx4 v[{iE}:{iE+1}], s[{sEA}:{sEA+3}], 0 idxen offen lds")
        a(f"    s_mov_b64 exec, -1")

    a(f"    s_mov_b32 s{sBase[0]}, {NULLB}\n    s_mov_b32 s{sNQ[0]}, 0\n    s_mov_b32 s{sK[0]}, 0")
    for tix in range(4):
        a(f"    s_mov_b32 s{sI}, {tix}")
        info(sI, tix + 1)
    BR = T
    PS = TR
    a(f"    v_lshlrev_b32 v{A0}, 3, v0")
    a(f"    v_add_u32 v{A0}, {REC}, v{A0}")
    a(f"    ds_read_b64 v[{BR}:{BR+1}], v{A0}")
    a(f"    ds_read_b64 v[{BR+2}:{BR+3}], v{A0} offset:4096")
    a(f"    s_waitcnt lgkmcnt(0)")
    a(f"    v_cmp_gt_u32 vcc, 448, v0")
    a(f"    s_nop 1")
    a(f"    v_cndmask_b32 v{BR+2}, 0, v{BR+2}, vcc")
    for j in range(2):
        w0 = BR + 2 * j
        a(f"    v_and_b32 v{A0}, 0xffff, v{w0}")
        a(f"    v_mul_u32_u24 v{A0}, 6, v{A0}")
        a(f"    v_bfe_u32 v{A1}, v{w0}, 16, 6")
        a(f"    v_add_u32 v{A1}, s{sB40}, v{A1}")
        a(f"    v_mul_u32_u24 v{A1}, 6, v{A1}")
        a(f"    buffer_load_dwordx2 v[{PS+4*j}:{PS+4*j+1}], v{A0}, s[{sPOS}:{sPOS+3}], 0 offen")
        a(f"    buffer_load_dwordx2 v[{PS+4*j+2}:{PS+4*j+3}], v{A1}, s[{sPOS}:{sPOS+3}], 0 offen")
    def pre(kind, tix):
        if kind == "e":
            dma_e(tix + 1)
            a(f"    s_mov_b32 s{t0}, {(tix & 3) * 1024}")
            a(f"    s_waitcnt lgkmcnt(0)")
            dma_e_issue(t0)
        else:
            dma_h(tix + 1, None)
            a(f"    s_add_u32 s{t0}, s{sRingBase}, {(tix % 3) * RSTR}")
            a(f"    s_waitcnt lgkmcnt(0)")
            dma_h_issue(t0)
    pre("e", 0); pre("h", 0); pre("e", 1); pre("h", 1); pre("e", 2)
    a(f"    s_cmp_eq_u32 s{sFirst}, 0")
    a(f"    s_cbranch_scc1 K2_noX")
    a(f"    s_mov_b32 s{sFirst}, 0")
    a(f"    s_waitcnt vmcnt(11)")
    a(f"    v_and_b32 v{A0}, 31, v{l}")
    a(f"    v_cmp_gt_u32 vcc, 16, v{A0}")
    a(f"    v_mov_b32 v{A1}, {HOWN2 - 4*QSTR}")
    a(f"    v_mov_b32 v{A4}, {HOWN1 + 4*QSTR}")
    a(f"    v_cndmask_b32 v{A1}, v{A1}, v{A4}, vcc")
    a(f"    s_cmp_eq_u32 s{sSet}, 0")
    a(f"    s_cbranch_scc0 K2_x1")
    a(f"    v_mov_b32 v{A1}, {HOWN1}")
    a.label("K2_x1")
    a(f"    v_add_u32 v{A0}, v{A1}, v{cHA0}")
    a(f"    v_add_u32 v{A1}, v{A1}, v{cHA1}")
    fr = [EF, AF, M, M + 4]
    XA = D[0]
    for half in range(2):
        for u in range(4):
            s_ = half * 4 + u
            ad = A0 if s_ % 2 == 0 else A1
            a(f"    ds_read_b128 v[{fr[u]}:{fr[u]+3}], v{ad} offset:{(s_ >> 1) * 64}")
        for u in range(4):
            s_ = half * 4 + u
            a(f"    s_waitcnt lgkmcnt({3-u})")
            c_ = "0" if s_ == 0 else f"v[{XA}:{XA+15}]"
            a(f"    v_mfma_f32_32x32x16_bf16 v[{XA}:{XA+15}], v[{fr[u]}:{fr[u]+3}], v[{HF+4*s_}:{HF+4*s_+3}], {c_}")
    for ntile in range(3):
        off = [HOWN1, HOWN1 + 4 * QSTR, HOWN2][ntile]
        for s_ in range(4):
            a(f"    ds_read_b128 v[{fr[s_]}:{fr[s_]+3}], v{cHB} offset:{off + 64 * s_}")
        for s_ in range(4):
            a(f"    s_waitcnt lgkmcnt({3-s_})")
            c_ = "0" if s_ == 0 else f"v[{HP+4*ntile}:{HP+4*ntile+3}]"
            a(f"    v_mfma_f32_16x16x32_bf16 v[{HP+4*ntile}:{HP+4*ntile+3}], v[{D[1]+4*s_}:{D[1]+4*s_+3}], v[{fr[s_]}:{fr[s_]+3}], {c_}")
    cs = -LOG2E if cfg.prescale else 1.0
    a(f"    s_mov_b32 s{t0}, {hex(f32bits(cs))}")
    a(f"    v_lshlrev_b32 v{A6}, 16, v{A6}")
    a(f"    v_mul_f32 v{A6}, s{t0}, v{A6}")
    a(f"    v_cvt_pk_bf16_f32 v{A4}, v{A6}, v{A6}")
    a(f"    v_and_b32 v{A5}, 0xffff0000, v{A4}")
    a(f"    v_sub_f32 v{A5}, v{A6}, v{A5}")
    a(f"    v_and_b32 v{A6}, 0xffff0000, v{A4}")
    a(f"    v_cvt_pk_bf16_f32 v{A4}, v{A6}, v{A5}")
    a(f"    v_cmp_gt_u32 vcc, 32, v{l}")
    a(f"    s_nop 1")
    a(f"    v_cndmask_b32 v{A4}, 0, v{A4}, vcc")
    for j in range(3):
        b_ = XA + 4 * j
        a(f"    v_mul_f32 v{b_}, s{t0}, v{b_}\n    v_mul_f32 v{b_+1}, s{t0}, v{b_+1}\n    v_mul_f32 v{b_+2}, s{t0}, v{b_+2}\n    v_mul_f32 v{b_+3}, s{t0}, v{b_+3}")
        x = X + 4 * j
        a(f"    v_cvt_pk_bf16_f32 v{x}, v{b_}, v{b_+1}")
        a(f"    v_cvt_pk_bf16_f32 v{x+1}, v{b_+2}, v{b_+3}")
        a(f"    v_mov_b32 v{x+2}, v{A4}")
        a(f"    v_mov_b32 v{x+3}, 0")
        a(f"    s_nop 1")
        a(f"    v_permlane32_swap_b32 v{x}, v{x+2}")
        a(f"    v_permlane32_swap_b32 v{x+1}, v{x+3}")
    a.label("K2_noX")
    a(f"    s_waitcnt vmcnt(7)")
    for j in range(2):
        w0 = BR + 2 * j
        ps, pd = PS + 4 * j, PS + 4 * j + 2
        a(f"    v_cmp_gt_i32 vcc, 0, v{w0}")
        a(f"    s_and_saveexec_b64 s[{sX}:{sX+1}], vcc")
        a(f"    s_cbranch_execz K2_bd{j}")
        h0, h1, h2, h3 = EF, EF + 1, EF + 2, EF + 3
        a(f"    v_lshlrev_b32 v{h0}, 16, v{pd}\n    v_lshlrev_b32 v{h1}, 16, v{ps}\n    v_sub_f32 v{h0}, v{h0}, v{h1}")
        a(f"    v_and_b32 v{h1}, 0xffff0000, v{pd}\n    v_and_b32 v{h2}, 0xffff0000, v{ps}\n    v_sub_f32 v{h1}, v{h1}, v{h2}")
        a(f"    v_lshlrev_b32 v{h2}, 16, v{pd+1}\n    v_lshlrev_b32 v{h3}, 16, v{ps+1}\n    v_sub_f32 v{h2}, v{h2}, v{h3}")
        g0, g1, g2, g3 = AF, AF + 1, AF + 2, AF + 3
        a(f"    v_cvt_pk_bf16_f32 v{g0}, v{h0}, v{h1}")
        a(f"    v_cvt_pk_bf16_f32 v{g1}, v{h2}, v{h2}")
        a(f"    v_lshlrev_b32 v{h0}, 16, v{g0}\n    v_and_b32 v{h1}, 0xffff0000, v{g0}\n    v_and_b32 v{h2}, 0xffff0000, v{g1}")
        a(f"    v_mul_f32 v{h0}, v{h0}, v{h0}\n    v_mul_f32 v{h1}, v{h1}, v{h1}\n    v_mul_f32 v{h2}, v{h2}, v{h2}")
        a(f"    v_cvt_pk_bf16_f32 v{g2}, v{h0}, v{h1}\n    v_cvt_pk_bf16_f32 v{g3}, v{h2}, v{h2}")
        a(f"    v_lshlrev_b32 v{h0}, 16, v{g2}\n    v_and_b32 v{h1}, 0xffff0000, v{g2}\n    v_and_b32 v{h2}, 0xffff0000, v{g3}")
        a(f"    v_add_f32 v{h0}, v{h0}, v{h1}\n    v_add_f32 v{h0}, v{h0}, v{h2}")
        a(f"    v_cvt_pk_bf16_f32 v{g2}, v{h0}, v{h0}")
        a(f"    v_mov_b32 v{h0}, 0x3f80")
        a(f"    v_lshl_or_b32 v{h2}, v{g0}, 16, v{h0}")
        a(f"    v_alignbit_b32 v{h3}, v{g1}, v{g0}, 16")
        a(f"    v_add_u32 v{A0}, {512*j}, v0")
        a(f"    v_bfe_u32 v{A1}, v{w0}, 16, 3")
        a(f"    v_lshlrev_b32 v{A4}, 6, v{A0}")
        a(f"    v_lshl_add_u32 v{A4}, v{A1}, 3, v{A4}")
        a(f"    v_add_u32 v{A4}, {A3T}, v{A4}")
        a(f"    ds_write_b64 v{A4}, v[{h2}:{h3}]")
        a(f"    v_lshlrev_b32 v{A4}, 4, v{A0}")
        a(f"    v_add_u32 v{A5}, {A2H}, v{A4}")
        a(f"    ds_write_b32 v{A5}, v{g2}")
        a(f"    v_lshl_add_u32 v{A4}, v{A1}, 1, v{A4}")
        a(f"    v_add_u32 v{A4}, {A2L}, v{A4}")
        a(f"    ds_write_b16 v{A4}, v{h0}")
        a.label(f"K2_bd{j}")
        a(f"    s_mov_b64 exec, s[{sX}:{sX+1}]")
    assert (EF + 2) % 2 == 0
    a(f"    s_mov_b32 s{sI}, -1")
    a(f"    s_mov_b32 s{sRing}, s{sRingBase}")
    a(f"    s_add_u32 s{sRingW}, s{sRingBase}, {2*RSTR}")
    a(f"    s_mov_b32 s{sEAr}, 0")
    a(f"    s_mov_b32 s{sEAw}, {3*1024}")
    a(f"    s_waitcnt vmcnt(4) lgkmcnt(0)")
    a(f"    s_barrier")

    def body(p):
        Dc, Dn = D[p], D[1 - p]
        lab = f"K2_it{p}"
        a.label(lab)
        dma_h(3, None)
        dma_e(4)
        a(f"    v_add_u32 v{A2_}, s{sEAr}, v{cEA}")
        a(f"    ds_read_b128 v[{EF}:{EF+3}], v{A2_}")
        a(f"    s_lshl_b32 s6, s{sBase[1]}, 4")
        a(f"    v_add_u32 v{A3_}, s6, v{cA2}")
        a(f"    ds_read_b128 v[{AF}:{AF+3}], v{A3_}")
        a(f"    v_add_u32 v{A4}, s{sRing}, v{cHA0}")
        a(f"    v_add_u32 v{A5}, s{sRing}, v{cHA1}")
        for s_ in range(8):
            ad = A4 if s_ % 2 == 0 else A5
            a(f"    ds_read_b128 v[{HF+4*s_}:{HF+4*s_+3}], v{ad} offset:{(s_ >> 1) * 64}")
        a(f"    s_waitcnt lgkmcnt(10)")
        dma_h_issue(sRingW)
        dma_e_issue(sEAw)
        a(f"    s_lshl_b32 s6, s{sBase[0]}, 6")
        a(f"    v_add_u32 v{A6}, s6, v{cA3}")
        mf = []
        mf.append(("lgkmcnt(9)", f"v_mfma_f32_32x32x16_bf16 v[{Dn}:{Dn+15}], v[{EF}:{EF+3}], v[{W4F}:{W4F+3}], 0"))
        mf.append(("XK", None))
        for s_ in range(8):
            mf.append((f"lgkmcnt({7 - s_})", f"v_mfma_f32_32x32x16_bf16 v[{Dn}:{Dn+15}], v[{HF+4*s_}:{HF+4*s_+3}], v[{W2F+4*s_}:{W2F+4*s_+3}], v[{Dn}:{Dn+15}]"))
        uid = [0]
        def emit_mf(idx, extra_lgkm=0):
            w, ins = mf[idx]
            if w == "XK":
                u = uid[0]; uid[0] += 1
                a(f"    s_waitcnt lgkmcnt({8 + extra_lgkm})")
                a(f"    s_cmp_eq_u32 s{sK[1]}, 1")
                a(f"    s_cbranch_scc1 {lab}_x1_{u}")
                a(f"    s_cmp_eq_u32 s{sK[1]}, 2")
                a(f"    s_cbranch_scc1 {lab}_x2_{u}")
                a(f"    v_mfma_f32_32x32x16_bf16 v[{Dn}:{Dn+15}], v[{AF}:{AF+3}], v[{X}:{X+3}], v[{Dn}:{Dn+15}]")
                a(f"    s_branch {lab}_xd_{u}")
                a.label(f"{lab}_x1_{u}")
                a(f"    v_mfma_f32_32x32x16_bf16 v[{Dn}:{Dn+15}], v[{AF}:{AF+3}], v[{X+4}:{X+7}], v[{Dn}:{Dn+15}]")
                a(f"    s_branch {lab}_xd_{u}")
                a.label(f"{lab}_x2_{u}")
                a(f"    v_mfma_f32_32x32x16_bf16 v[{Dn}:{Dn+15}], v[{AF}:{AF+3}], v[{X+8}:{X+11}], v[{Dn}:{Dn+15}]")
                a.label(f"{lab}_xd_{u}")
            else:
                a(f"    s_waitcnt {w}")
                a(f"    {ins}")
        plan = [[0, 1, 2], [3, 4, 5], [6, 7], [8, 9]]
        for q in range(4):
            a(f"    s_cmp_gt_u32 s{sNQ[0]}, {q}")
            a(f"    s_cbranch_scc0 {lab}_sk{q}")
            d = Dc + 4 * q
            ms = plan[q]
            a(f"    v_exp_f32 v{T}, v{d}\n    v_exp_f32 v{T+1}, v{d+1}\n    v_exp_f32 v{T+2}, v{d+2}\n    v_exp_f32 v{T+3}, v{d+3}")
            emit_mf(ms[0])
            a(f"    v_pk_add_f32 v[{T}:{T+1}], v[{T}:{T+1}], 1.0 op_sel_hi:[1,0]")
            a(f"    v_pk_add_f32 v[{T+2}:{T+3}], v[{T+2}:{T+3}], 1.0 op_sel_hi:[1,0]")
            a(f"    v_rcp_f32 v{T}, v{T}\n    v_rcp_f32 v{T+1}, v{T+1}\n    v_rcp_f32 v{T+2}, v{T+2}\n    v_rcp_f32 v{T+3}, v{T+3}")
            emit_mf(ms[1])
            a(f"    v_pk_mul_f32 v[{T+4}:{T+5}], v[{d}:{d+1}], v[{T}:{T+1}]")
            a(f"    v_pk_mul_f32 v[{T+6}:{T+7}], v[{d+2}:{d+3}], v[{T+2}:{T+3}]")
            a(f"    v_cvt_pk_bf16_f32 v{M+2*q}, v{T+4}, v{T+5}")
            a(f"    v_cvt_pk_bf16_f32 v{M+2*q+1}, v{T+6}, v{T+7}")
            if len(ms) > 2: emit_mf(ms[2])
            a(f"    s_branch {lab}_qd{q}")
            a.label(f"{lab}_sk{q}")
            for m_ in ms: emit_mf(m_)
            a(f"    v_mov_b32 v{M+2*q}, 0\n    v_mov_b32 v{M+2*q+1}, 0")
            a.label(f"{lab}_qd{q}")
        a(f"    s_cmp_eq_u32 s{sNQ[0]}, 0")
        a(f"    s_cbranch_scc1 {lab}_nseg")
        for u in range(4):
            a(f"    ds_read_b64_tr_b16 v[{TR+2*u}:{TR+2*u+1}], v{A6} offset:{512*u}")
        def seg(k):
            dp = DP + 16 * k
            a(f"    s_waitcnt lgkmcnt(2)")
            a(f"    v_mfma_f32_32x32x16_bf16 v[{dp}:{dp+15}], v[{M}:{M+3}], v[{TR}:{TR+3}], v[{dp}:{dp+15}]")
            a(f"    s_waitcnt lgkmcnt(0)")
            a(f"    v_mfma_f32_32x32x16_bf16 v[{dp}:{dp+15}], v[{M+4}:{M+7}], v[{TR+4}:{TR+7}], v[{dp}:{dp+15}]")
        a(f"    s_cmp_eq_u32 s{sK[0]}, 1")
        a(f"    s_cbranch_scc1 {lab}_s1")
        a(f"    s_cmp_eq_u32 s{sK[0]}, 2")
        a(f"    s_cbranch_scc1 {lab}_s2")
        seg(0)
        a(f"    s_branch {lab}_nseg")
        a.label(f"{lab}_s1")
        seg(1)
        a(f"    s_branch {lab}_nseg")
        a.label(f"{lab}_s2")
        seg(2)
        a.label(f"{lab}_nseg")
        for qq in range(4):
            a(f"    s_mov_b32 s{sBase[qq]}, s{sBase[qq+1]}")
            a(f"    s_mov_b32 s{sK[qq]}, s{sK[qq+1]}")
            a(f"    s_mov_b32 s{sNQ[qq]}, s{sNQ[qq+1]}")
        a(f"    s_add_u32 s{sI}, s{sI}, 1")
        a(f"    s_add_u32 s{t0}, s{sI}, 4")
        info(t0, 4)
        for r in (sRing, sRingW):
            a(f"    s_add_u32 s{r}, s{r}, {RSTR}")
            a(f"    s_add_u32 s6, s{sRingBase}, {3*RSTR}")
            a(f"    s_cmp_eq_u32 s{r}, s6")
            a(f"    s_cselect_b32 s{r}, s{sRingBase}, s{r}")
        for r in (sEAr, sEAw):
            a(f"    s_add_u32 s{r}, s{r}, 1024")
            a(f"    s_and_b32 s{r}, s{r}, 4095")
        a(f"    s_waitcnt vmcnt(4) lgkmcnt(0)")
        a(f"    s_barrier")
        a(f"    s_cmp_ge_i32 s{sI}, s{sNIT}")
        a(f"    s_cbranch_scc1 K2_loopend")
    body(0)
    body(1)
    a(f"    s_branch K2_it0")
    a.label("K2_loopend")
    a(f"    s_waitcnt vmcnt(0)")
    a(f"    s_cmp_eq_u32 s{sMode}, 0")
    a(f"    s_cbranch_scc1 K2_tail")
    a(f"    s_barrier")
    a(f"    s_mul_i32 s{t0}, s{sWin}, {CAP}")
    a(f"    s_cmp_ge_u32 s{t0}, {E}")
    a(f"    s_cbranch_scc1 K2_tail")
    a(f"    s_branch K2_zero")
    a.label("K2_slowload")
    a(f"    s_mul_i32 s{t0}, s{sWin}, {CAP}")
    a(f"    s_add_u32 s{sWin}, s{sWin}, 1")
    a(f"    v_add_u32 v{vCB}, s{t0}, v0")
    a(f"    v_lshlrev_b32 v{A0}, 2, v{vCB}")
    srd(a, sMI, pSRC, E * 4)
    a(f"    buffer_load_dword v{RR+1}, v{A0}, s[{sMI}:{sMI+3}], 0 offen")
    srd(a, sMI, pDST, E * 4)
    a(f"    buffer_load_dword v{RR+2}, v{A0}, s[{sMI}:{sMI+3}], 0 offen")
    a(f"    s_waitcnt vmcnt(0)")
    a(f"    v_subrev_u32 v{RR+2}, s{sB40}, v{RR+2}")
    a(f"    v_lshl_or_b32 v{RR}, v{RR+2}, 14, v{RR+1}")
    a(f"    v_cmp_gt_u32 vcc, 40, v{RR+2}")
    a(f"    s_movk_i32 s{t0}, {CAP}")
    a(f"    v_cmp_gt_u32 s[{sX}:{sX+1}], s{t0}, v0")
    a(f"    s_nop 1")
    a(f"    s_and_b64 vcc, vcc, s[{sX}:{sX+1}]")
    a(f"    s_mov_b32 s{t0}, {E}")
    a(f"    v_cmp_gt_u32 s[{sX}:{sX+1}], s{t0}, v{vCB}")
    a(f"    s_nop 1")
    a(f"    s_and_b64 vcc, vcc, s[{sX}:{sX+1}]")
    a(f"    v_cndmask_b32 v{RR}, -1, v{RR}, vcc")
    a(f"    v_mov_b32 v{RR+1}, -1\n    v_mov_b32 v{RR+2}, -1\n    v_mov_b32 v{RR+3}, -1")
    a(f"    s_branch K2_rank")

    a.label("K2_tail")
    a(f"    v_lshlrev_b32 v{A0}, 4, v{l}")
    a(f"    s_lshl_b32 s{t1}, s{sW}, 13")
    a(f"    s_add_u32 s{t1}, s{t1}, {WHF_OFF + 4096}")
    for s_ in range(4):
        a(f"    buffer_load_dwordx4 v[{HF+4*s_}:{HF+4*s_+3}], v{A0}, s[{sWS}:{sWS+3}], s{t1} offen offset:{1024*s_}")
    srd(a, sMI, pWX, 256)
    a(f"    v_lshrrev_b32 v{A1}, 5, v{l}")
    a(f"    v_lshlrev_b32 v{A1}, 3, v{A1}")
    a(f"    s_lshl_b32 s{t1}, s{sC}, 6")
    WX = HF + 16
    for s_ in range(2):
        for u in range(2):
            a(f"    buffer_load_dwordx2 v[{WX+4*s_+2*u}:{WX+4*s_+2*u+1}], v{A1}, s[{sMI}:{sMI+3}], s{t1} offen offset:{32*s_+16*u}")
    RES = HF + 24
    a(f"    v_and_b32 v{A2_}, 15, v{l}")
    a(f"    v_add_u32 v{A2_}, s{sB40}, v{A2_}")
    a(f"    v_lshlrev_b32 v{A2_}, 8, v{A2_}")
    a(f"    v_lshrrev_b32 v{A3_}, 4, v{l}")
    a(f"    v_lshl_add_u32 v{A2_}, v{A3_}, 3, v{A2_}")
    a(f"    s_lshl_b32 s{t1}, s{sW}, 5")
    a(f"    v_add_u32 v{A2_}, s{t1}, v{A2_}")
    srd(a, sMI, pH, N * 256)
    a(f"    s_movk_i32 s{t2}, 0x1000")
    a(f"    s_movk_i32 s{t3}, 0x2000")
    a(f"    buffer_load_dwordx2 v[{RES}:{RES+1}], v{A2_}, s[{sMI}:{sMI+3}], 0 offen")
    a(f"    buffer_load_dwordx2 v[{RES+2}:{RES+3}], v{A2_}, s[{sMI}:{sMI+3}], s{t2} offen")
    a(f"    buffer_load_dwordx2 v[{RES+4}:{RES+5}], v{A2_}, s[{sMI}:{sMI+3}], s{t3} offen")
    a(f"    s_mul_i32 s{t1}, s2, 240")
    a(f"    v_lshlrev_b32 v{A6}, 1, v0")
    a(f"    buffer_load_ushort v{iE}, v{A6}, s[{sPOS}:{sPOS+3}], s{t1} offen")
    a(f"    s_barrier")
    a(f"    v_bfe_u32 v{A0}, v{l}, 2, 3")
    a(f"    v_lshrrev_b32 v{A1}, 2, v{A0}")
    a(f"    v_mul_u32_u24 v{A1}, {QSTR}, v{A1}")
    a(f"    v_and_b32 v{A3_}, 3, v{A0}")
    a(f"    v_lshl_add_u32 v{A1}, v{A3_}, 8, v{A1}")
    a(f"    v_lshl_add_u32 v{A1}, v{A3_}, 4, v{A1}")
    a(f"    v_lshrrev_b32 v{A3_}, 5, v{l}")
    a(f"    v_lshl_add_u32 v{A1}, v{A3_}, 3, v{A1}")
    a(f"    s_lshl_b32 s{t1}, s{sC}, 6")
    a(f"    v_add_u32 v{A1}, s{t1}, v{A1}")
    a(f"    v_and_b32 v{A4}, 31, v{l}")
    a(f"    v_lshlrev_b32 v{A4}, 2, v{A4}")
    a(f"    v_add_u32 v{A4}, {POSACC}, v{A4}")
    a(f"    s_waitcnt vmcnt(4)")
    PK = D[0]
    TD = D[1]
    for k in range(3):
        dp = DP + 16 * k
        for u in range(8):
            a(f"    v_cvt_pk_bf16_f32 v{PK+u}, v{dp+2*u}, v{dp+2*u+1}")
        rb0, rb1 = 8 * k, [48, 24, 32][k]
        a(f"    s_cmp_eq_u32 s{sSet}, 0")
        a(f"    s_mov_b32 s{t1}, {rb1 // 4 * QSTR}")
        a(f"    s_cselect_b32 s{t1}, {rb0 // 4 * QSTR}, s{t1}")
        a(f"    s_mov_b32 s{t2}, {8 * (2 + k) * 16}")
        a(f"    s_cselect_b32 s{t2}, {8 * k * 16}, s{t2}")
        a(f"    v_add_u32 v{A5}, s{t1}, v{A1}")
        a(f"    v_mfma_f32_32x32x16_bf16 v[{TD}:{TD+15}], v[{WX}:{WX+3}], v[{PK}:{PK+3}], 0")
        a(f"    v_mfma_f32_32x32x16_bf16 v[{TD}:{TD+15}], v[{WX+4}:{WX+7}], v[{PK+4}:{PK+7}], v[{TD}:{TD+15}]")
        a(f"    s_mov_b32 s{sX}, 0x11111111\n    s_mov_b32 s{sX+1}, 0x11111111")
        a(f"    s_mov_b64 exec, s[{sX}:{sX+1}]")
        for j in range(4):
            if j > 0: a(f"    v_xor_b32 v{A6}, {16 * j}, v{A5}")
            ad = A5 if j == 0 else A6
            a(f"    ds_write_b64 v{ad}, v[{PK+2*j}:{PK+2*j+1}]")
        a(f"    s_mov_b64 exec, -1")
        a(f"    v_add_u32 v{A6}, s{t2}, v{A4}")
        a(f"    s_nop 7\n    s_nop 3")
        a(f"    s_mov_b32 s{sX}, -1\n    s_mov_b32 s{sX+1}, 0")
        a(f"    s_mov_b64 exec, s[{sX}:{sX+1}]")
        a(f"    ds_add_f32 v{A6}, v{TD}")
        a(f"    s_mov_b64 exec, -1")
        a(f"    s_nop 1")
    a(f"    s_waitcnt lgkmcnt(0)")
    a(f"    s_barrier")
    AC = D[0]
    FB = DP
    for ntile in range(3):
        for s_ in range(4):
            a(f"    ds_read_b128 v[{FB+16*ntile+4*s_}:{FB+16*ntile+4*s_+3}], v{cHB} offset:{ntile * 4 * QSTR + 64 * s_}")
    XB = D[1]
    for r in range(16): a(f"    v_mov_b32 v{XB+r}, 0")
    a(f"    s_mov_b32 s{sX}, 0x00ff00ff\n    s_mov_b32 s{sX+1}, 0x00ff00ff")
    a(f"    s_mov_b64 exec, s[{sX}:{sX+1}]")
    for s_ in range(4):
        a(f"    ds_read_b128 v[{XB+4*s_}:{XB+4*s_+3}], v{cHB} offset:{12 * QSTR + 64 * s_}")
    a(f"    s_mov_b64 exec, -1")
    a(f"    s_waitcnt lgkmcnt(4)")
    for ntile in range(3):
        for s_ in range(4):
            c_ = "0" if s_ == 0 else f"v[{AC+4*ntile}:{AC+4*ntile+3}]"
            a(f"    v_mfma_f32_16x16x32_bf16 v[{AC+4*ntile}:{AC+4*ntile+3}], v[{HF+4*s_}:{HF+4*s_+3}], v[{FB+16*ntile+4*s_}:{FB+16*ntile+4*s_+3}], {c_}")
    a(f"    s_waitcnt lgkmcnt(0)")
    for s_ in range(4):
        a(f"    v_mfma_f32_16x16x32_bf16 v[{AC+4}:{AC+7}], v[{HF+4*s_}:{HF+4*s_+3}], v[{XB+4*s_}:{XB+4*s_+3}], v[{AC+4}:{AC+7}]")
    sm = -LN2 if cfg.prescale else 1.0
    a(f"    s_mov_b32 s{t0}, {hex(f32bits(sm))}")
    a(f"    s_mov_b32 s{t1}, {hex(f32bits(-LOG2E))}")
    a(f"    v_cmp_gt_u32 vcc, 120, v0")
    a(f"    s_and_saveexec_b64 s[{sX}:{sX+1}], vcc")
    a(f"    s_cbranch_execz K2_nopos")
    a(f"    v_mul_u32_u24 v{A0}, 171, v0")
    a(f"    v_lshrrev_b32 v{A0}, 9, v{A0}")
    a(f"    v_mul_u32_u24 v{A1}, 3, v{A0}")
    a(f"    v_sub_u32 v{A1}, v0, v{A1}")
    a(f"    v_lshlrev_b32 v{A0}, 4, v{A0}")
    a(f"    v_lshl_add_u32 v{A0}, v{A1}, 2, v{A0}")
    a(f"    v_add_u32 v{A0}, {POSACC + 4}, v{A0}")
    a(f"    ds_read_b32 v{A1}, v{A0}")
    a(f"    s_waitcnt vmcnt(0) lgkmcnt(0)")
    a(f"    v_lshlrev_b32 v{iE}, 16, v{iE}")
    a(f"    v_fma_f32 v{A1}, v{A1}, s{t0}, v{iE}")
    a(f"    v_cvt_pk_bf16_f32 v{A1}, v{A1}, v{A1}")
    a(f"    s_mul_i32 s{t2}, s2, 240")
    a(f"    s_add_u32 s{t2}, s{t2}, {N*256}")
    a(f"    v_lshlrev_b32 v{A0}, 1, v0")
    a(f"    buffer_store_short v{A1}, v{A0}, s[{sOUT}:{sOUT+3}], s{t2} offen")
    a.label("K2_nopos")
    a(f"    s_mov_b64 exec, s[{sX}:{sX+1}]")
    a(f"    s_waitcnt vmcnt(0)")
    a(f"    s_nop 7")
    for ntile in range(3):
        x = AC + 4 * ntile; hp = HP + 4 * ntile
        for i in range(4):
            a(f"    v_fma_f32 v{x+i}, v{x+i}, s{t0}, v{hp+i}")
        for i in range(4):
            a(f"    v_mul_f32 v{T+i}, s{t1}, v{x+i}")
        for i in range(4):
            a(f"    v_exp_f32 v{T+i}, v{T+i}")
        a(f"    s_nop 0")
        for i in range(4):
            a(f"    v_add_f32 v{T+i}, 1.0, v{T+i}")
        for i in range(4):
            a(f"    v_rcp_f32 v{T+i}, v{T+i}")
        rs = RES + 2 * ntile
        a(f"    v_lshlrev_b32 v{T+4}, 16, v{rs}\n    v_and_b32 v{T+5}, 0xffff0000, v{rs}")
        a(f"    v_lshlrev_b32 v{T+6}, 16, v{rs+1}\n    v_and_b32 v{T+7}, 0xffff0000, v{rs+1}")
        for i in range(4):
            a(f"    v_fma_f32 v{x+i}, v{x+i}, v{T+i}, v{T+4+i}")
        a(f"    v_cvt_pk_bf16_f32 v{M+2*ntile}, v{x}, v{x+1}")
        a(f"    v_cvt_pk_bf16_f32 v{M+2*ntile+1}, v{x+2}, v{x+3}")
    a(f"    s_movk_i32 s{t2}, 0x1000")
    a(f"    s_movk_i32 s{t3}, 0x2000")
    a(f"    buffer_store_dwordx2 v[{M}:{M+1}], v{A2_}, s[{sOUT}:{sOUT+3}], 0 offen")
    a(f"    buffer_store_dwordx2 v[{M+2}:{M+3}], v{A2_}, s[{sOUT}:{sOUT+3}], s{t2} offen")
    a(f"    s_mov_b32 s{sX}, 0x00ff00ff\n    s_mov_b32 s{sX+1}, 0x00ff00ff")
    a(f"    s_mov_b64 exec, s[{sX}:{sX+1}]")
    a(f"    buffer_store_dwordx2 v[{M+4}:{M+5}], v{A2_}, s[{sOUT}:{sOUT+3}], s{t3} offen")
    a.label("K2_done")
    a("    s_endpgm")
    a.label("K2_end")
    return nv

HEADER = """; Kernarg layout (88 bytes): h, pos, e_attr, src, dst, w_e, w_x, w_h, out, debug, ws
; @launch kernel=k1_kernel grid=({g1},1,1) block=(1024,1,1) lds=36864
; @launch kernel=k2_kernel grid=(250,1,1) block=(512,1,1) lds=163840
.amdgcn_target "amdgcn-amd-amdhsa--gfx950"
.text
"""
def desc(name, nv, ns):
    acc = (nv + 3) // 4 * 4
    return f""".p2align 6
.amdhsa_kernel {name}
  .amdhsa_next_free_vgpr {nv}
  .amdhsa_next_free_sgpr {ns}
  .amdhsa_accum_offset {acc}
  .amdhsa_group_segment_fixed_size 0
  .amdhsa_kernarg_size 88
  .amdhsa_user_sgpr_count 2
  .amdhsa_user_sgpr_kernarg_segment_ptr 1
  .amdhsa_system_sgpr_workgroup_id_x 1
  .amdhsa_float_denorm_mode_32 3
.end_amdhsa_kernel
"""
def generate(cfg):
    a = Asm()
    a(HEADER.format(g1=cfg.g1))
    gen_k1(a, cfg)
    nv = gen_k2(a, cfg)
    a('.section .rodata,"a"')
    a(desc("k1_kernel", 32, 40))
    a(desc("k2_kernel", nv, 102))
    return a.text(), nv

if __name__ == "__main__":
    cfg = Cfg()
    out = sys.argv[1] if len(sys.argv) > 1 else "egnn.s"
    for kv in sys.argv[2:]:
        k, val = kv.split("=")
        setattr(cfg, k, type(getattr(cfg, k))(eval(val)))
    txt, nv = generate(cfg)
    open(out, "w").write(txt)
    print("vgprs", nv)
    check_hazards(txt)
```

```python
import sys, struct
from asmlib import *

def f32bits(x): return struct.unpack("<I", struct.pack("<f", x))[0]
LOG2E = 1.4426950408889634
LN2 = 0.6931471805599453
N = 10000; E = 160000; NB = 250; CH = 2500
CELL_BYTES = NB * 64 * 128
WS_FR = 0x200000
WEF_BYTES = 17 * 4 * 1024
WHF_OFF = WS_FR + WEF_BYTES
WS_B = 0x240000
WS_USED = WS_B + N * 256
DBG_OFF = 0x800000
QSTR = 1088
MAXT = 27
STG = 0; SSTR = 2048; NR = 3
A3T = 8 * NR * SSTR
A2L = A3T + MAXT * 32 * 64
A2H = A2L + MAXT * 32 * 16
REC = A2H + MAXT * 32 * 16
CNT = REC + (MAXT + 6) * 32 * 8
ZSTART = A3T; NZ = 12
ZEND = ZSTART + NZ * 8192
assert CNT + 64 <= ZEND
POSD = ZEND
HOWN = POSD + 512
LDS2 = 163840
PPO = 0
WIN = 192
K1_LDS = 32768 + 32 * QSTR
G_SORT, G_PREP, G_GEMM = 64, 9, 79
W_PREP = G_SORT; W_GEMM = G_SORT + G_PREP; W_PREF = W_GEMM + G_GEMM

class Cfg:
    g1 = 256
    pf_ea = True
    pf_code = True
    pf_b = True
    dbg = False
    qskip = True
    st_k1 = ""

def srd(a, d, base, nrec, stride=0):
    a(f"    s_mov_b32 s{d}, s{base}")
    a(f"    s_and_b32 s{d+1}, s{base+1}, 0xffff")
    if stride: a(f"    s_or_b32 s{d+1}, s{d+1}, {hex(stride << 16)}")
    a(f"    s_mov_b32 s{d+2}, {nrec}")
    a(f"    s_mov_b32 s{d+3}, 0x00020000")
def stamp(a, cfg, vreg, idx, sp=6):
    if not cfg.dbg: return
    a(f"    s_memrealtime s[{sp}:{sp+1}]")
    a(f"    s_waitcnt lgkmcnt(0)")
    a(f"    v_writelane_b32 v{vreg}, s{sp}, {idx}")
    a(f"    s_memtime s[{sp}:{sp+1}]")
    a(f"    s_waitcnt lgkmcnt(0)")
    a(f"    v_writelane_b32 v{vreg}, s{sp}, {idx + 32}")
def stamp_store(a, cfg, vreg, pws, region, swave, tmpv, srdb):
    if not cfg.dbg: return
    a(f"    s_mov_b64 exec, -1")
    a(f"    s_mov_b32 s{srdb}, s{pws}\n    s_and_b32 s{srdb+1}, s{pws+1}, 0xffff\n    s_mov_b32 s{srdb+2}, 0x1000000\n    s_mov_b32 s{srdb+3}, 0x00020000")
    a(f"    s_lshl_b32 s6, s2, 4")
    a(f"    s_add_u32 s6, s6, s{swave}")
    a(f"    s_lshl_b32 s6, s6, 8")
    a(f"    s_add_u32 s6, s6, {DBG_OFF + region}")
    a(f"    v_mbcnt_lo_u32_b32 v{tmpv}, -1, 0\n    v_mbcnt_hi_u32_b32 v{tmpv}, -1, v{tmpv}\n    v_lshlrev_b32 v{tmpv}, 2, v{tmpv}")
    a(f"    buffer_store_dword v{vreg}, v{tmpv}, s[{srdb}:{srdb+3}], s6 offen")

def gen_k1(a, cfg):
    fl = (" " + cfg.st_k1) if cfg.st_k1 else ""
    def k1_end(pws=8):
        if cfg.dbg:
            a("    s_mov_b64 exec, -1")
            stamp(a, cfg, 63, 4, 34)
            a("    s_waitcnt vmcnt(0)")
            stamp(a, cfg, 63, 5, 34)
            a("    s_load_dwordx2 s[8:9], s[0:1], 80\n    s_waitcnt lgkmcnt(0)")
            a("    v_lshrrev_b32 v62, 6, v0\n    s_nop 0\n    v_readfirstlane_b32 s33, v62")
            stamp_store(a, cfg, 63, 8, 0, 33, 62, 36)
        a("    s_endpgm")
    a(".globl k1_kernel\n.p2align 8\n.type k1_kernel,@function\nk1_kernel:")
    a(f"    s_cmp_ge_u32 s2, {cfg.g1}")
    a("    s_cbranch_scc1 K1_done")
    stamp(a, cfg, 63, 0, 34)
    a(f"    s_cmp_ge_u32 s2, {W_PREF}")
    a("    s_cbranch_scc1 K1_pref")
    a(f"    s_cmp_ge_u32 s2, {W_GEMM}")
    a("    s_cbranch_scc1 K1_gemm")
    a(f"    s_cmp_ge_u32 s2, {W_PREP}")
    a("    s_cbranch_scc1 K1_prep")
    a("    s_load_dwordx4 s[4:7], s[0:1], 24")
    a("    s_load_dwordx2 s[8:9], s[0:1], 80")
    a("    v_lshlrev_b32 v1, 4, v0")
    a("    v_lshlrev_b32 v2, 2, v0")
    a("    v_mov_b32 v4, -1\n    v_mov_b32 v5, -1\n    v_mov_b32 v6, -1\n    v_mov_b32 v7, -1\n    v_mov_b32 v3, 0")
    a("    ds_write_b128 v1, v[4:7]")
    a("    ds_write_b128 v1, v[4:7] offset:16384")
    a("    ds_write_b32 v2, v3 offset:32768")
    a("    s_mul_i32 s10, s2, 10000")
    a("    s_movk_i32 s20, 0x1000")
    a("    s_movk_i32 s21, 0x2000")
    a("    s_waitcnt lgkmcnt(0)")
    a("    s_add_u32 s12, s4, s10\n    s_addc_u32 s13, s5, 0\n    s_mov_b32 s14, 10000\n    s_mov_b32 s15, 0x00020000")
    a("    s_add_u32 s16, s6, s10\n    s_addc_u32 s17, s7, 0\n    s_mov_b32 s18, 10000\n    s_mov_b32 s19, 0x00020000")
    a("    buffer_load_dword v9, v2, s[16:19], 0 offen")
    a("    buffer_load_dword v8, v2, s[12:15], 0 offen")
    a("    buffer_load_dword v11, v2, s[16:19], s20 offen")
    a("    buffer_load_dword v10, v2, s[12:15], s20 offen")
    a("    buffer_load_dword v13, v2, s[16:19], s21 offen")
    a("    buffer_load_dword v12, v2, s[12:15], s21 offen")
    srd(a, 24, 8, CELL_BYTES)
    a("    s_lshl_b32 s22, s2, 7")
    a("    v_mov_b32 v30, 1")
    a("    s_movk_i32 s33, 452")
    a("    v_cmp_gt_u32 s[30:31], s33, v0")
    a("    s_barrier")
    stamp(a, cfg, 63, 1, 34)
    for e in range(3):
        S, D, B, R = 8 + 2 * e, 9 + 2 * e, 14 + e, 17 + e
        a(f"    s_waitcnt vmcnt({4 - 2 * e})")
        a(f"    v_mul_u32_u24 v{B}, 52429, v{D}")
        a(f"    v_lshrrev_b32 v{B}, 21, v{B}")
        a(f"    v_lshlrev_b32 v26, 2, v{B}")
        if e == 2: a("    s_mov_b64 exec, s[30:31]")
        a(f"    ds_add_rtn_u32 v{20+e}, v26, v30 offset:32768")
        a(f"    v_mul_u32_u24 v24, 40, v{B}")
        a(f"    v_sub_u32 v24, v{D}, v24")
        a(f"    v_lshl_or_b32 v{R}, v24, 14, v{S}")
        a(f"    v_add_u32 v25, {1024 * e}, v0")
        a(f"    v_lshl_or_b32 v{R}, v25, 20, v{R}")
    a("    s_mov_b64 exec, -1")
    stamp(a, cfg, 63, 2, 34)
    for e in range(3):
        B, R, K = 14 + e, 17 + e, 20 + e
        a(f"    s_waitcnt lgkmcnt({2 - e})")
        a(f"    v_cmp_gt_u32 vcc, 32, v{K}")
        a(f"    v_and_b32 v24, 7, v{K}")
        a(f"    v_lshlrev_b32 v24, 4, v24")
        a(f"    v_lshl_add_u32 v24, v{B}, 7, v24")
        a(f"    v_lshrrev_b32 v25, 3, v{K}")
        a(f"    v_lshl_add_u32 v24, v25, 2, v24")
        if e == 2: a("    s_and_b64 vcc, vcc, s[30:31]")
        a("    s_mov_b64 exec, vcc")
        a(f"    ds_write_b32 v24, v{R}")
        a("    s_mov_b64 exec, -1")
        if e < 2: a("    s_waitcnt lgkmcnt(" + str(2 - e) + ")") if False else None
    a("    s_waitcnt lgkmcnt(0)")
    a("    s_barrier")
    stamp(a, cfg, 63, 3, 34)
    a("    ds_read_b128 v[8:11], v1")
    a("    ds_read_b128 v[12:15], v1 offset:16384")
    a("    v_lshrrev_b32 v16, 3, v0")
    a("    v_lshlrev_b32 v17, 2, v16")
    a("    ds_read_b32 v18, v17 offset:32768")
    a("    ds_read_b32 v19, v17 offset:33280")
    a("    v_and_b32 v20, 7, v0")
    a("    v_lshlrev_b32 v21, 4, v20")
    a("    v_lshl_add_u32 v21, v16, 13, v21")
    a("    v_add_u32 v22, 0x100000, v21")
    a("    v_mov_b32 v23, -2")
    a("    v_cmp_eq_u32 s[30:31], 0, v20")
    a("    s_waitcnt lgkmcnt(0)")
    a("    v_cmp_lt_u32 vcc, 32, v18")
    a("    s_and_b64 vcc, vcc, s[30:31]")
    a("    s_nop 1")
    a("    v_cndmask_b32 v8, v8, v23, vcc")
    a("    v_cmp_lt_u32 vcc, 32, v19")
    a("    s_and_b64 vcc, vcc, s[30:31]")
    a("    s_nop 1")
    a("    v_cndmask_b32 v12, v12, v23, vcc")
    a(f"    buffer_store_dwordx4 v[8:11], v21, s[24:27], s22 offen{fl}")
    a(f"    buffer_store_dwordx4 v[12:15], v22, s[24:27], s22 offen{fl}")
    k1_end()
    a.label("K1_prep")
    a("    s_load_dwordx2 s[4:5], s[0:1], 40")
    a("    s_load_dwordx2 s[6:7], s[0:1], 56")
    a("    s_load_dwordx2 s[8:9], s[0:1], 80")
    a(f"    s_sub_u32 s10, s2, {W_PREP}")
    a("    s_lshl_b32 s10, s10, 10")
    a("    v_add_u32 v1, s10, v0")
    a("    s_nop 0")
    a("    v_readfirstlane_b32 s11, v1")
    a("    v_and_b32 v2, 63, v0")
    a("    s_cmp_ge_u32 s11, 8448")
    a("    s_cbranch_scc1 K1_done")
    a("    s_cmp_ge_u32 s11, 4352")
    a("    s_cbranch_scc1 K1_prepH")
    a("    s_lshr_b32 s12, s11, 8")
    a("    s_lshl_b32 s13, s12, 4")
    a("    s_cmp_eq_u32 s12, 16")
    a("    s_cselect_b32 s13, 257, s13")
    a(f"    s_cselect_b32 s14, {hex(f32bits(-LOG2E))}, 1.0")
    a("    s_lshr_b32 s15, s11, 6\n    s_and_b32 s15, s15, 3\n    s_lshl_b32 s15, s15, 5")
    a("    v_lshrrev_b32 v3, 5, v2\n    v_lshlrev_b32 v3, 3, v3\n    v_add_u32 v3, s13, v3")
    a("    v_and_b32 v4, 31, v2\n    v_add_u32 v4, s15, v4")
    a("    s_waitcnt lgkmcnt(0)")
    srd(a, 16, 4, 273 * 256)
    a("    s_branch K1_prepC")
    a.label("K1_prepH")
    a("    s_sub_u32 s12, s11, 4352")
    a("    s_lshr_b32 s13, s12, 6\n    s_and_b32 s13, s13, 7\n    s_lshl_b32 s13, s13, 5")
    a("    s_lshr_b32 s15, s12, 9\n    s_lshl_b32 s15, s15, 4")
    a("    s_mov_b32 s14, 1.0")
    a("    v_lshrrev_b32 v3, 4, v2\n    v_lshlrev_b32 v3, 3, v3\n    v_add_u32 v3, s13, v3")
    a("    v_and_b32 v4, 15, v2\n    v_add_u32 v4, s15, v4")
    a("    s_waitcnt lgkmcnt(0)")
    srd(a, 16, 6, 256 * 256)
    a.label("K1_prepC")
    a("    v_lshlrev_b32 v3, 8, v3\n    v_lshl_add_u32 v3, v4, 1, v3")
    for j in range(8): a(f"    buffer_load_ushort v{8+j}, v3, s[16:19], 0 offen offset:{j*256}")
    srd(a, 20, 8, WS_USED)
    a("    v_lshlrev_b32 v1, 4, v1")
    a(f"    s_mov_b32 s24, {WS_FR}")
    a("    s_waitcnt vmcnt(0)")
    for j in range(8): a(f"    v_lshlrev_b32 v{8+j}, 16, v{8+j}")
    for j in range(8): a(f"    v_mul_f32 v{8+j}, s14, v{8+j}")
    for j in range(4): a(f"    v_cvt_pk_bf16_f32 v{16+j}, v{8+2*j}, v{9+2*j}")
    a(f"    buffer_store_dwordx4 v[16:19], v1, s[20:23], s24 offen{fl}")
    k1_end()
    a.label("K1_gemm")
    a("    s_load_dwordx2 s[4:5], s[0:1], 40")
    a("    s_load_dwordx2 s[8:9], s[0:1], 0")
    a("    s_load_dwordx2 s[16:17], s[0:1], 80")
    a("    v_and_b32 v1, 63, v0")
    a("    v_lshrrev_b32 v2, 6, v0")
    a(f"    s_sub_u32 s20, s2, {W_GEMM}")
    a("    v_readfirstlane_b32 s21, v2")
    a("    s_lshl_b32 s20, s20, 7")
    a("    v_lshlrev_b32 v3, 4, v1")
    a("    s_lshl_b32 s22, s21, 11")
    a(f"    s_add_u32 s23, s22, {128*256}")
    a("    s_mov_b32 s6, " + str(273 * 256) + "\n    s_mov_b32 s7, 0x00020000")
    a("    v_lshrrev_b32 v4, 4, v1")
    a("    v_and_b32 v5, 15, v1\n    v_xor_b32 v5, v5, v4\n    v_lshlrev_b32 v7, 4, v5")
    a("    s_lshl_b32 s24, s21, 3\n    s_add_u32 s24, s24, s20")
    a("    v_add_u32 v6, s24, v4")
    a("    v_add_u32 v8, 4, v6\n    v_mov_b32 v9, v7")
    a(f"    s_mov_b32 s10, {N}\n    s_mov_b32 s11, 0x00020000")
    a(f"    s_mul_i32 s25, s21, {2*QSTR}\n    s_add_u32 s25, s25, 32768")
    a("    s_waitcnt lgkmcnt(0)")
    a("    s_or_b32 s9, s9, 0x1000000")
    a("    s_mov_b32 m0, s25\n    s_nop 0")
    a("    buffer_load_dwordx4 v[6:7], s[8:11], 0 idxen offen lds")
    a(f"    s_add_u32 m0, s25, {QSTR}\n    s_nop 0")
    a("    buffer_load_dwordx4 v[8:9], s[8:11], 0 idxen offen lds")
    a("    s_mov_b32 m0, s22\n    s_nop 0")
    a("    buffer_load_dwordx4 v3, s[4:7], s23 offen lds")
    a("    s_add_u32 m0, s22, 1024\n    s_add_u32 s23, s23, 1024")
    a("    buffer_load_dwordx4 v3, s[4:7], s23 offen lds")
    a("    s_lshr_b32 s26, s21, 2\n    s_and_b32 s27, s21, 3")
    a("    v_lshrrev_b32 v10, 5, v1\n    v_lshlrev_b32 v10, 3, v10\n    v_bfe_u32 v11, v1, 2, 2\n    v_add_u32 v10, v10, v11\n    v_lshlrev_b32 v10, 8, v10")
    a("    v_bfe_u32 v11, v1, 4, 1\n    v_lshl_add_u32 v10, v11, 5, v10\n    v_and_b32 v11, 3, v1\n    v_lshl_add_u32 v10, v11, 3, v10")
    a("    s_lshl_b32 s28, s27, 6\n    v_add_u32 v10, s28, v10")
    a("    v_and_b32 v12, 31, v1\n    v_lshrrev_b32 v13, 2, v12\n    s_lshl_b32 s28, s26, 3\n    v_add_u32 v13, s28, v13")
    a(f"    v_mul_u32_u24 v13, {QSTR}, v13\n    v_and_b32 v14, 3, v12\n    v_lshl_add_u32 v13, v14, 8, v13\n    v_add_u32 v13, 32768, v13")
    a("    v_lshrrev_b32 v15, 5, v1\n    v_xor_b32 v15, v15, v14\n    v_lshl_add_u32 v16, v15, 4, v13\n    v_xor_b32 v15, 2, v15\n    v_lshl_add_u32 v17, v15, 4, v13")
    a("    s_lshl_b32 s28, s26, 5\n    s_add_u32 s28, s28, s20\n    v_add_u32 v18, s28, v12\n    v_lshlrev_b32 v18, 8, v18")
    a("    v_lshrrev_b32 v15, 5, v1\n    v_lshl_add_u32 v18, v15, 4, v18\n    s_lshl_b32 s28, s27, 6\n    v_add_u32 v18, s28, v18")
    a(f"    s_add_u32 s16, s16, {WS_B}\n    s_addc_u32 s17, s17, 0\n    s_mov_b32 s18, {N*256}\n    s_mov_b32 s19, 0x00020000")
    a("    s_waitcnt vmcnt(0)")
    a("    s_barrier")
    stamp(a, cfg, 63, 1, 34)
    AW, BH, DD = 20, 36, 44
    for half in range(2):
        for u in range(4):
            s_ = half * 4 + u
            a(f"    ds_read_b64_tr_b16 v[{AW+4*u}:{AW+4*u+1}], v10 offset:{s_ * 4096}")
            a(f"    ds_read_b64_tr_b16 v[{AW+4*u+2}:{AW+4*u+3}], v10 offset:{s_ * 4096 + 1024}")
        for pr in range(2):
            for u in range(2):
                s_ = half * 4 + pr * 2 + u
                ad = 16 if s_ % 2 == 0 else 17
                a(f"    ds_read_b128 v[{BH+4*u}:{BH+4*u+3}], v{ad} offset:{(s_ >> 1) * 64}")
            a("    s_waitcnt lgkmcnt(0)")
            for u in range(2):
                s_ = half * 4 + pr * 2 + u
                c_ = "0" if s_ == 0 else f"v[{DD}:{DD+15}]"
                a(f"    v_mfma_f32_32x32x16_bf16 v[{DD}:{DD+15}], v[{AW+4*(pr*2+u)}:{AW+4*(pr*2+u)+3}], v[{BH+4*u}:{BH+4*u+3}], {c_}")
    a(f"    s_mov_b32 s28, {hex(f32bits(-LOG2E))}")
    a("    s_nop 7\n    s_nop 3")
    for r in range(16): a(f"    v_mul_f32 v{DD+r}, s28, v{DD+r}")
    for j in range(8): a(f"    v_cvt_pk_bf16_f32 v{20+j}, v{DD+2*j}, v{DD+2*j+1}")
    a("    s_nop 1")
    a("    v_permlane32_swap_b32 v20, v22\n    v_permlane32_swap_b32 v21, v23\n    v_permlane32_swap_b32 v24, v26\n    v_permlane32_swap_b32 v25, v27")
    a("    s_nop 1")
    a(f"    buffer_store_dwordx4 v[20:23], v18, s[16:19], 0 offen{fl}")
    a(f"    buffer_store_dwordx4 v[24:27], v18, s[16:19], 0 offen offset:32{fl}")
    k1_end()
    a.label("K1_pref")
    a("    s_load_dwordx2 s[6:7], s[0:1], 16")
    a("    v_lshlrev_b32 v1, 7, v0")
    a(f"    s_sub_u32 s12, s2, {W_PREF}")
    npf = cfg.g1 - W_PREF
    per = (40000 + npf - 1) // npf
    a(f"    s_mul_i32 s12, s12, {per * 128}")
    a("    s_waitcnt lgkmcnt(0)")
    srd(a, 20, 6, E * 32)
    if cfg.pf_ea:
        a(f"    v_cmp_gt_u32 vcc, {per}, v0")
        a("    s_and_saveexec_b64 s[28:29], vcc")
        a("    s_cbranch_execz K1_pf2")
        a("    buffer_load_dword v3, v1, s[20:23], s12 offen")
        a.label("K1_pf2")
        a("    s_mov_b64 exec, s[28:29]")
    if cfg.pf_code:
        a(f"    s_cmp_lt_u32 s2, {cfg.g1 - 8}")
        a("    s_cbranch_scc1 K1_pfend")
        a("    s_getpc_b64 s[24:25]")
        a.label("K1_pc")
        a("    s_add_u32 s24, s24, k2_kernel-K1_pc")
        a("    s_addc_u32 s25, s25, 0")
        a("    v_cmp_gt_u32 vcc, (K2_end-k2_kernel+127)/128, v0")
        a("    s_and_saveexec_b64 s[28:29], vcc")
        a("    s_cbranch_execz K1_pfend")
        a("    global_load_dword v4, v1, s[24:25]")
    a.label("K1_pfend")
    k1_end()
    a.label("K1_done")
    a("    s_endpgm")

def gen_k2(a, cfg):
    V = Regs("v", 1, 256)
    W4F = V.alloc("W4F", 4, 4); IDN = V.alloc("IDN", 8, 4); X = V.alloc("X", 12, 4); XC = V.alloc("XC", 4, 4)
    D = [V.alloc("D0", 16, 4), V.alloc("D1", 16, 4)]
    DP = V.alloc("DP", 48, 4); DPC = V.alloc("DPC", 16, 4); HP = V.alloc("HP", 12, 4)
    BF = V.alloc("BF", 8, 4); EFB = [V.alloc("EF0", 4, 4), V.alloc("EF1", 4, 4)]; AF = V.alloc("AF", 4, 4)
    TR = V.alloc("TR", 8, 4); M = V.alloc("M", 8, 4); T = V.alloc("T", 16, 4)
    WHH = V.alloc("WHH", 16, 4); WX = V.alloc("WX", 8, 4); RES = V.alloc("RES", 6, 2); POSO = V.alloc("POSO"); OUTA = V.alloc("OUTA")
    iH0 = V.alloc("iH0", 2, 2); iH1 = V.alloc("iH1", 2, 2); iE = V.alloc("iE", 2, 2)
    cBF = V.alloc("cBF"); cHB = V.alloc("cHB")
    aA2 = V.alloc("aA2"); aA3 = V.alloc("aA3"); aRH = V.alloc("aRH"); aRE = V.alloc("aRE"); aBF = V.alloc("aBF")
    vL = V.alloc("vL")
    A0 = V.alloc("A0", 1, 2); A1 = V.alloc("A1"); A2_ = V.alloc("A2"); A3_ = V.alloc("A3"); A4 = V.alloc("A4"); A5 = V.alloc("A5")
    vST = V.alloc("vST") if cfg.dbg else None
    nv = V.hi
    sStg = 3
    sB, sEA, sPOS, sWS, sOUT, sMI = 8, 12, 16, 20, 24, 28
    sW, sSet, sC, sB40 = 32, 33, 34, 35
    sCnt = 36
    sTs, sTf, sI = 42, 43, 45
    sBx, sBx2, sKx = 46, 47, 48
    sBd, sBd2, sKd = 49, 50, 51
    sRingR, sRingW, sStgEnd = 52, 53, 54
    sRem, sRem1, sRem2 = 55, 56, 57
    sMode, sWin, sFirst = 58, 59, 60
    t0, t1, t2, t3, t4, t5 = 61, 62, 63, 64, 65, 66
    sPK, sRet, sWoff, sDPI = 67, 69, 71, 74
    sH = 76
    sX = 4
    l = vL
    st = lambda i: stamp(a, cfg, vST, i)
    def mfma(dst, A, B, C):
        c_ = "0" if C is None else f"v[{C}:{C+15}]"
        return f"    v_mfma_f32_32x32x16_bf16 v[{dst}:{dst+15}], v[{A}:{A+3}], v[{B}:{B+3}], {c_}"

    a(".globl k2_kernel\n.p2align 8\n.type k2_kernel,@function\nk2_kernel:")
    a(f"    s_cmp_ge_u32 s2, {NB}")
    a("    s_cbranch_scc1 K2_done")
    st(0)
    a(f"    s_load_dwordx2 s[{sWS}:{sWS+1}], s[0:1], 80")
    a(f"    s_load_dwordx2 s[{sH}:{sH+1}], s[0:1], 0")
    a(f"    s_load_dwordx2 s[{sPOS}:{sPOS+1}], s[0:1], 8")
    a(f"    s_load_dwordx2 s[{sMI}:{sMI+1}], s[0:1], 40")
    a(f"    s_load_dwordx2 s[{sEA}:{sEA+1}], s[0:1], 16")
    a(f"    s_load_dwordx2 s[{sOUT}:{sOUT+1}], s[0:1], 64")
    a(f"    s_load_dwordx2 s[72:73], s[0:1], 48")
    a(f"    v_and_b32 v{l}, 63, v0")
    a(f"    v_lshrrev_b32 v{A0}, 6, v0")
    a(f"    v_lshlrev_b32 v{A1}, 4, v0")
    a(f"    v_readfirstlane_b32 s{sW}, v{A0}")
    a(f"    s_mul_i32 s{sB40}, s2, 40")
    a(f"    s_lshl_b32 s{t0}, s2, 13")
    a(f"    s_mov_b32 s{sWS+2}, {WS_USED}\n    s_mov_b32 s{sWS+3}, 0x00020000")
    a(f"    s_mov_b32 s{sH+2}, {N}\n    s_mov_b32 s{sH+3}, 0x00020000")
    a(f"    s_mov_b32 s{sPOS+2}, {N*6+4}\n    s_mov_b32 s{sPOS+3}, 0x00020000")
    a(f"    s_lshr_b32 s{sSet}, s{sW}, 2")
    a(f"    s_and_b32 s{sC}, s{sW}, 3")
    a(f"    v_lshrrev_b32 v{A0}, 4, v{l}")
    a(f"    v_and_b32 v{A2_}, 15, v{l}")
    a(f"    v_xor_b32 v{A2_}, v{A2_}, v{A0}")
    HP0, HP1 = D[0], D[0] + 2
    a(f"    v_lshlrev_b32 v{HP0+1}, 4, v{A2_}")
    a(f"    v_mov_b32 v{HP1+1}, v{HP0+1}")
    a(f"    s_lshl_b32 s{t1}, s{sW}, 3")
    a(f"    s_add_u32 s{t1}, s{t1}, s{sB40}")
    a(f"    v_add_u32 v{HP0}, s{t1}, v{A0}")
    a(f"    v_add_u32 v{HP1}, 4, v{HP0}")
    a(f"    s_mul_i32 s{t2}, s{sW}, {2*QSTR}")
    a(f"    s_add_u32 s{t2}, s{t2}, {HOWN}")
    a(f"    v_lshlrev_b32 v{A3_}, 4, v{l}")
    a(f"    s_lshl_b32 s{sWoff}, s{sC}, 10")
    a(f"    s_add_u32 s{sWoff}, s{sWoff}, {WS_FR}")
    a(f"    v_mul_u32_u24 v{A4}, 6, v0")
    a(f"    s_mul_i32 s{t4}, s2, 240")
    a(f"    s_waitcnt lgkmcnt(0)")
    st(1)
    RR = TR; SL = TR + 4; GG = T; PSRC = DPC; OWNP = T + 4; PDST = DPC + 8
    W1F = DP
    WHL = D[1]
    a(f"    buffer_load_dwordx4 v[{RR}:{RR+3}], v{A1}, s[{sWS}:{sWS+3}], s{t0} offen      ; cells")
    a(f"    s_or_b32 s{sH+1}, s{sH+1}, 0x1000000")
    a(f"    s_mov_b32 m0, s{t2}")
    a(f"    s_add_u32 s{t2}, s{t2}, {QSTR}")
    a(f"    buffer_load_dwordx4 v[{HP0}:{HP0+1}], s[{sH}:{sH+3}], 0 idxen offen lds")
    a(f"    s_mov_b32 m0, s{t2}")
    a(f"    v_add_u32 v{A1}, {ZSTART}, v{A1}")
    a(f"    buffer_load_dwordx4 v[{HP1}:{HP1+1}], s[{sH}:{sH+3}], 0 idxen offen lds")
    a(f"    buffer_load_dwordx2 v[{OWNP}:{OWNP+1}], v{A4}, s[{sPOS}:{sPOS+3}], s{t4} offen")
    Z = M
    for r in range(4): a(f"    v_mov_b32 v{Z+r}, 0")
    loads = []
    for q in range(8):
        loads.append([f"buffer_load_dwordx4 v[{W1F+4*q}:{W1F+4*q+3}], v{A3_}, s[{sWS}:{sWS+3}], s{sWoff} offen", f"s_add_u32 s{sWoff}, s{sWoff}, 4096"])
    loads.append([f"s_lshl_b32 s{t1}, s{sW}, 13", f"s_add_u32 s{t1}, s{t1}, {WHF_OFF}", f"buffer_load_dwordx4 v[{WHL}:{WHL+3}], v{A3_}, s[{sWS}:{sWS+3}], s{t1} offen"])
    for s_ in range(1, 4):
        loads.append([f"buffer_load_dwordx4 v[{WHL+4*s_}:{WHL+4*s_+3}], v{A3_}, s[{sWS}:{sWS+3}], s{t1} offen offset:{1024*s_}"])
    zf = []
    for r in range(NZ):
        if r == 8: zf.append([f"v_add_u32 v{A1}, 65536, v{A1}", f"ds_write_b128 v{A1}, v[{Z}:{Z+3}]"])
        else: zf.append([f"ds_write_b128 v{A1}, v[{Z}:{Z+3}] offset:{(r % 8) * 8192}"])
    c = []
    e_, h_ = A0, A2_
    c += [f"v_and_b32 v{e_}, 31, v{l}", f"v_lshrrev_b32 v{h_}, 5, v{l}"]
    c += [f"v_mul_u32_u24 v{A5}, {A2H - A2L}, v{h_}", f"v_lshl_add_u32 v{aA2}, v{e_}, 4, v{A5}", f"v_add_u32 v{aA2}, {A2L}, v{aA2}"]
    c += [f"v_lshlrev_b32 v{aA3}, 8, v{h_}", f"v_bfe_u32 v{A5}, v{l}, 4, 1", f"v_lshl_add_u32 v{aA3}, v{A5}, 5, v{aA3}", f"v_bfe_u32 v{A5}, v{l}, 2, 2",
          f"v_lshl_add_u32 v{aA3}, v{A5}, 6, v{aA3}", f"v_and_b32 v{A5}, 3, v{l}", f"v_lshl_add_u32 v{aA3}, v{A5}, 3, v{aA3}"]
    c += [f"v_lshl_add_u32 v{cBF}, v{h_}, 8, v{aA3}", f"v_add_u32 v{aA3}, {A3T}, v{aA3}"]
    c += [f"v_lshrrev_b32 v{A5}, 2, v{l}", f"v_lshlrev_b32 v{A5}, 3, v{A5}", f"v_add_u32 v{aRH}, {REC}, v{A5}",
          f"v_lshlrev_b32 v{A5}, 3, v{e_}", f"v_add_u32 v{aRE}, {REC}, v{A5}"]
    c += [f"v_and_b32 v{A5}, 3, v{l}", f"v_lshlrev_b32 v{A5}, 4, v{A5}", f"s_lshl_b32 s{t2}, s{sC}, 6", f"v_add_u32 v{iH0+1}, s{t2}, v{A5}", f"v_mov_b32 v{iH1+1}, v{iH0+1}",
          f"v_lshlrev_b32 v{iE+1}, 4, v{h_}"]
    c += [f"v_bfe_u32 v{A5}, v{l}, 2, 2", f"v_mul_u32_u24 v{cHB}, {QSTR}, v{A5}", f"v_and_b32 v{A5}, 3, v{l}", f"v_lshl_add_u32 v{cHB}, v{A5}, 8, v{cHB}",
          f"v_lshrrev_b32 v{A4}, 4, v{l}", f"v_xor_b32 v{A5}, v{A5}, v{A4}", f"v_lshl_add_u32 v{cHB}, v{A5}, 4, v{cHB}", f"v_add_u32 v{cHB}, {HOWN}, v{cHB}"]
    c += [f"v_and_b32 v{A5}, 1, v{e_}", f"v_lshlrev_b32 v{A5}, 4, v{A5}", f"v_mov_b32 v{A4}, 0x3f80", f"v_lshlrev_b32 v{A4}, v{A5}, v{A4}"]
    c += [f"v_bfe_u32 v{A5}, v{e_}, 1, 2", f"v_lshrrev_b32 v{IDN+7}, 4, v{e_}", f"v_lshl_add_u32 v{A5}, v{IDN+7}, 2, v{A5}", f"v_bfe_u32 v{IDN+7}, v{e_}, 3, 1",
          f"v_cmp_eq_u32 vcc, v{IDN+7}, v{h_}", f"s_nop 1", f"v_cndmask_b32 v{A5}, 15, v{A5}, vcc"]
    for q in range(8):
        c += [f"v_cmp_eq_u32 vcc, {q}, v{A5}", f"s_nop 1", f"v_cndmask_b32 v{IDN+q}, 0, v{A4}, vcc"]
    c += [f"s_add_u32 s{sB}, s{sWS}, {WS_B}", f"s_addc_u32 s{sB+1}, s{sWS+1}, 0", f"s_or_b32 s{sB+1}, s{sB+1}, 0x1000000", f"s_mov_b32 s{sB+2}, {N}", f"s_mov_b32 s{sB+3}, 0x00020000",
          f"s_mov_b32 s{sMI+2}, {273*256}", f"s_mov_b32 s{sMI+3}, 0x00020000", f"s_or_b32 s{sEA+1}, s{sEA+1}, 0x200000", f"s_mov_b32 s{sEA+2}, {E}", f"s_mov_b32 s{sEA+3}, 0x00020000",
          f"s_mov_b32 s{sOUT+2}, {N*256+N*6}", f"s_mov_b32 s{sOUT+3}, 0x00020000",
          f"s_mul_i32 s{sStg}, s{sW}, {NR*SSTR}", f"s_add_u32 s{sStgEnd}, s{sStg}, {NR*SSTR}", f"s_mov_b32 s{sMode}, 0", f"s_mov_b32 s{sFirst}, 1", f"s_mov_b32 s{sDPI}, 0"]
    c += [f"v_and_b32 v{A4}, 31, v{l}", f"s_lshl_b32 s{t2}, s{sC}, 5", f"v_add_u32 v{A4}, s{t2}, v{A4}", f"v_lshlrev_b32 v{A4}, 1, v{A4}"]
    ci = 0
    per = (len(c) + len(loads) - 1) // len(loads)
    for k in range(len(loads)):
        for ins in loads[k]: a("    " + ins)
        if k < len(zf):
            for ins in zf[k]: a("    " + ins)
        for ins in c[ci:ci + per]: a("    " + ins)
        ci += per
    for ins in c[ci:]: a("    " + ins)
    WD = XC + 3
    a(f"    s_mov_b32 s{t2}, {256*256}")
    a(f"    buffer_load_ushort v{WD}, v{A4}, s[{sMI}:{sMI+3}], s{t2} offen")
    n0 = 2 + 1 + 12 + 1
    if cfg.pf_b:
        a(f"    s_lshr_b32 s{t2}, s2, 3")
        a(f"    s_mul_i32 s{t2}, s{t2}, {646*128}")
        a(f"    s_add_u32 s{t2}, s{t2}, {WS_B}")
        a(f"    v_lshlrev_b32 v{A4}, 7, v0")
        a(f"    buffer_load_dword v{T+8}, v{A4}, s[{sWS}:{sWS+3}], s{t2} offen")
        a(f"    v_cmp_gt_u32 vcc, {646-512}, v0")
        a(f"    v_add_u32 v{A4}, 65536, v{A4}")
        a(f"    v_bfrev_b32 v{A5}, -2")
        a(f"    v_cndmask_b32 v{A4}, v{A5}, v{A4}, vcc")
        a(f"    buffer_load_dword v{T+9}, v{A4}, s[{sWS}:{sWS+3}], s{t2} offen")
        n0 += 2
    npf = 2 if cfg.pf_b else 0
    a(f"    s_waitcnt lgkmcnt(0)")
    a(f"    s_barrier")
    st(2)
    a(f"    s_branch K2_fast")
    a.label("K2_zero")
    for r in range(4): a(f"    v_mov_b32 v{Z+r}, 0")
    a(f"    v_lshlrev_b32 v{A1}, 4, v0")
    a(f"    v_add_u32 v{A1}, {ZSTART}, v{A1}")
    for r in range(NZ):
        if r == 8: a(f"    v_add_u32 v{A1}, 65536, v{A1}")
        a(f"    ds_write_b128 v{A1}, v[{Z}:{Z+3}] offset:{(r % 8) * 8192}")
    a(f"    s_waitcnt lgkmcnt(0)")
    a(f"    s_barrier")
    vCB = A5
    a(f"    s_mul_i32 s{t0}, s{sWin}, {WIN}")
    a(f"    s_add_u32 s{sWin}, s{sWin}, 1")
    a(f"    v_add_u32 v{vCB}, s{t0}, v0")
    a(f"    v_lshlrev_b32 v{A0}, 2, v{vCB}")
    a(f"    s_load_dwordx2 s[{sMI}:{sMI+1}], s[0:1], 24")
    a(f"    s_mov_b32 s{sMI+2}, {E*4}")
    a(f"    s_waitcnt lgkmcnt(0)")
    a(f"    buffer_load_dword v{RR+1}, v{A0}, s[{sMI}:{sMI+3}], 0 offen")
    a(f"    s_waitcnt vmcnt(0)")
    a(f"    s_load_dwordx2 s[{sMI}:{sMI+1}], s[0:1], 32")
    a(f"    s_waitcnt lgkmcnt(0)")
    a(f"    buffer_load_dword v{RR+2}, v{A0}, s[{sMI}:{sMI+3}], 0 offen")
    a(f"    s_waitcnt vmcnt(0)")
    a(f"    v_subrev_u32 v{RR+2}, s{sB40}, v{RR+2}")
    a(f"    v_lshl_or_b32 v{RR}, v{RR+2}, 14, v{RR+1}")
    a(f"    v_cmp_gt_u32 vcc, 40, v{RR+2}")
    a(f"    s_movk_i32 s{t0}, {WIN}")
    a(f"    v_cmp_gt_u32 s[{sX}:{sX+1}], s{t0}, v0")
    a(f"    s_and_b64 vcc, vcc, s[{sX}:{sX+1}]")
    a(f"    s_mov_b32 s{t0}, {E}")
    a(f"    v_cmp_gt_u32 s[{sX}:{sX+1}], s{t0}, v{vCB}")
    a(f"    s_and_b64 vcc, vcc, s[{sX}:{sX+1}]")
    a(f"    s_nop 1")
    a(f"    v_cndmask_b32 v{RR}, -1, v{RR}, vcc")
    a(f"    v_mov_b32 v{RR+1}, -1\n    v_mov_b32 v{RR+2}, -1\n    v_mov_b32 v{RR+3}, -1")
    a(f"    s_branch K2_rank")
    a.label("K2_fast")
    a(f"    v_lshrrev_b32 v{vCB}, 3, v0")
    a(f"    v_mul_u32_u24 v{vCB}, {CH}, v{vCB}")
    a(f"    s_waitcnt vmcnt({n0})")
    st(3)
    a(f"    v_cmp_eq_u32 vcc, -2, v{RR}")
    a(f"    s_cbranch_vccnz K2_mark")
    a.label("K2_rank")
    a(f"    v_mov_b32 v{A0}, 1")
    a(f"    v_bfrev_b32 v{A4}, -2")
    ex = []
    ex.append([f"v_lshlrev_b32 v{A3_}, 4, v{l}", f"s_lshl_b32 s{sWoff}, s{sC}, 10", f"s_add_u32 s{sWoff}, s{sWoff}, {WS_FR + 16*4096}",
               f"buffer_load_dwordx4 v[{W4F}:{W4F+3}], v{A3_}, s[{sWS}:{sWS+3}], s{sWoff} offen"])
    ex.append([f"s_lshl_b32 s{sWoff}, s{sW}, 13", f"s_add_u32 s{sWoff}, s{sWoff}, {WHF_OFF + 4096}"] +
              [f"buffer_load_dwordx4 v[{WHH+4*s_}:{WHH+4*s_+3}], v{A3_}, s[{sWS}:{sWS+3}], s{sWoff} offen offset:{1024*s_}" for s_ in range(4)])
    ex.append([f"s_mov_b32 s74, 256" if False else "s_nop 0",
               f"s_mov_b32 s84, s72", f"s_mov_b32 s85, s73", f"s_mov_b32 s86, 256", f"s_mov_b32 s87, 0x00020000",
               f"v_lshrrev_b32 v{A3_}, 5, v{l}", f"v_lshlrev_b32 v{A3_}, 3, v{A3_}", f"s_lshl_b32 s{sWoff}, s{sC}, 6"] +
              [f"buffer_load_dwordx2 v[{WX+4*s_+2*u}:{WX+4*s_+2*u+1}], v{A3_}, s[84:87], s{sWoff} offen offset:{32*s_+16*u}" for s_ in range(2) for u in range(2)])
    ex.append([f"s_mov_b32 s80, s{sH}", f"s_and_b32 s81, s{sH+1}, 0xffff", f"s_mov_b32 s82, {N*256}", f"s_mov_b32 s83, 0x00020000",
               f"v_and_b32 v{A2_}, 15, v{l}", f"v_add_u32 v{A2_}, s{sB40}, v{A2_}", f"v_lshlrev_b32 v{A2_}, 8, v{A2_}", f"v_lshrrev_b32 v{A3_}, 4, v{l}",
               f"v_lshl_add_u32 v{A2_}, v{A3_}, 3, v{A2_}", f"s_lshl_b32 s{sWoff}, s{sW}, 5", f"v_add_u32 v{OUTA}, s{sWoff}, v{A2_}",
               f"s_movk_i32 s{t2}, 0x1000", f"s_movk_i32 s{t3}, 0x2000",
               f"buffer_load_dwordx2 v[{RES}:{RES+1}], v{OUTA}, s[80:83], 0 offen", f"buffer_load_dwordx2 v[{RES+2}:{RES+3}], v{OUTA}, s[80:83], s{t2} offen",
               f"buffer_load_dwordx2 v[{RES+4}:{RES+5}], v{OUTA}, s[80:83], s{t3} offen",
               f"s_mul_i32 s{sWoff}, s2, 240", f"v_lshlrev_b32 v{A3_}, 1, v0", f"buffer_load_ushort v{POSO}, v{A3_}, s[{sPOS}:{sPOS+3}], s{sWoff} offen"])
    for j in range(4):
        r = RR + j
        a(f"    v_cmp_gt_u32 vcc, -2, v{r}")
        a(f"    v_and_b32 v{A1}, 0x3fff, v{r}")
        a(f"    v_mul_u32_u24 v{A1}, 6, v{A1}")
        a(f"    v_bfe_u32 v{GG+j}, v{r}, 17, 3")
        a(f"    v_cndmask_b32 v{A1}, v{A4}, v{A1}, vcc")
        a(f"    s_and_saveexec_b64 s[{sX}:{sX+1}], vcc")
        a(f"    v_lshlrev_b32 v{A2_}, 2, v{GG+j}")
        a(f"    v_add_u32 v{A2_}, {CNT}, v{A2_}")
        a(f"    ds_add_rtn_u32 v{SL+j}, v{A2_}, v{A0}")
        a(f"    s_mov_b64 exec, s[{sX}:{sX+1}]")
        a(f"    buffer_load_dwordx2 v[{PSRC+2*j}:{PSRC+2*j+1}], v{A1}, s[{sPOS}:{sPOS+3}], 0 offen")
    for grp in ex:
        for ins in grp: a("    " + ins)
    n1 = 4 + 13
    a(f"    s_cmp_eq_u32 s{sFirst}, 0")
    a(f"    s_cbranch_scc1 K2_noown")
    a(f"    s_waitcnt vmcnt({n1 + 13 + npf})")
    a(f"    v_cmp_gt_u32 vcc, 48, v0")
    a(f"    s_and_saveexec_b64 s[{sX}:{sX+1}], vcc")
    a(f"    v_lshlrev_b32 v{A1}, 3, v0")
    a(f"    v_add_u32 v{A1}, {POSD}, v{A1}")
    a(f"    ds_write_b64 v{A1}, v[{OWNP}:{OWNP+1}]")
    a(f"    s_mov_b64 exec, s[{sX}:{sX+1}]")
    a.label("K2_noown")
    a(f"    s_waitcnt lgkmcnt(0)")
    a(f"    s_barrier")
    st(4)
    a(f"    v_mov_b32 v{A1}, {CNT}")
    a(f"    ds_read_b128 v[{M}:{M+3}], v{A1}")
    a(f"    ds_read_b64 v[{M+4}:{M+5}], v{A1} offset:16")
    for j in range(4):
        a(f"    v_bfe_u32 v{A2_}, v{RR+j}, 14, 6")
        a(f"    v_lshlrev_b32 v{A2_}, 3, v{A2_}")
        a(f"    v_add_u32 v{A2_}, {POSD}, v{A2_}")
        a(f"    ds_read_b64 v[{PDST+2*j}:{PDST+2*j+1}], v{A2_}")
    a(f"    s_waitcnt lgkmcnt(4)")
    for g in range(6): a(f"    v_readfirstlane_b32 s{sCnt+g}, v{M+g}")
    nt = [t0, t1, t2, t3, t4]
    for g in range(5):
        a(f"    s_add_u32 s{nt[g]}, s{sCnt+g}, 31")
        a(f"    s_lshr_b32 s{nt[g]}, s{nt[g]}, 5")
    a(f"    s_add_u32 s4, s{t0}, s{t1}")
    a(f"    s_add_u32 s5, s4, s{t2}")
    a(f"    s_add_u32 s6, s5, s{t3}")
    a(f"    s_add_u32 s7, s6, s{t4}")
    a(f"    s_cmp_gt_u32 s7, {MAXT}")
    a(f"    s_cselect_b32 s{t5}, 1, 0")
    a(f"    s_or_b32 s{t5}, s{t5}, s{sCnt+5}")
    a(f"    s_cmp_lg_u32 s{t5}, 0")
    a(f"    s_cbranch_scc1 K2_toslow")
    a(f"    s_lshl_b32 s{sPK}, s{t0}, 5")
    a(f"    s_lshl_b32 s{t5}, s4, 10\n    s_or_b32 s{sPK}, s{sPK}, s{t5}")
    a(f"    s_lshl_b32 s{t5}, s5, 15\n    s_or_b32 s{sPK}, s{sPK}, s{t5}")
    a(f"    s_lshl_b32 s{t5}, s6, 20\n    s_or_b32 s{sPK}, s{sPK}, s{t5}")
    for j in range(4):
        r = RR + j
        a(f"    v_cmp_gt_u32 vcc, -2, v{r}")
        a(f"    s_and_saveexec_b64 s[84:85], vcc")
        a(f"    s_cbranch_execz K2_rw{j}")
        a(f"    v_mul_u32_u24 v{A0}, 5, v{GG+j}")
        a(f"    v_bfe_u32 v{A0}, s{sPK}, v{A0}, 5")
        a(f"    v_lshl_add_u32 v{SL+j}, v{A0}, 5, v{SL+j}")
        a(f"    v_lshlrev_b32 v{A0}, 3, v{SL+j}")
        a(f"    v_and_b32 v{A2_}, 0x3fff, v{r}")
        a(f"    v_lshrrev_b32 v{A3_}, 20, v{r}")
        a(f"    v_add_u32 v{A3_}, v{A3_}, v{vCB}")
        a(f"    v_add_u32 v{A0}, {REC}, v{A0}")
        a(f"    ds_write_b64 v{A0}, v[{A2_}:{A3_}]")
        a.label(f"K2_rw{j}")
        a(f"    s_mov_b64 exec, s[84:85]")
    a(f"    s_add_u32 s{t5}, s7, 1")
    a(f"    s_lshr_b32 s{t5}, s{t5}, 1")
    a(f"    s_max_u32 s{t5}, s{t5}, s4")
    a(f"    s_min_u32 s{t5}, s{t5}, s5")
    a(f"    s_sub_u32 s{t3}, s7, s{t5}")
    a(f"    s_sub_u32 s{t4}, s{t5}, s4")
    a(f"    s_lshl_b32 s{t4}, s{t4}, 5")
    a(f"    s_min_u32 s{t1}, s{sCnt+2}, s{t4}")
    a(f"    s_sub_u32 s{t2}, s{sCnt+2}, s{t1}")
    a(f"    s_cmp_eq_u32 s{sSet}, 0")
    a(f"    s_cselect_b32 s{sTf}, 0, s{t5}")
    a(f"    s_cselect_b32 s{sTs}, s{t5}, s{t3}")
    a(f"    s_cselect_b32 s{sBx}, s{t0}, s5")
    a(f"    s_cselect_b32 s{sBx2}, s4, s6")
    a(f"    s_cselect_b32 s{sRem}, s{sCnt}, s{t2}")
    a(f"    s_cselect_b32 s{sRem1}, s{sCnt+1}, s{sCnt+3}")
    a(f"    s_cselect_b32 s{sRem2}, s{t1}, s{sCnt+4}")
    a(f"    s_sub_u32 s{sBx}, s{sBx}, s{sTf}")
    a(f"    s_sub_u32 s{sBx2}, s{sBx2}, s{sTf}")
    a(f"    s_mov_b32 s{sBd}, s{sBx}\n    s_mov_b32 s{sBd2}, s{sBx2}")
    a(f"    s_mov_b32 s{sKx}, 0\n    s_mov_b32 s{sKd}, 0")
    a(f"    s_cmp_eq_u32 s{sMode}, 0")
    a(f"    s_cbranch_scc0 K2_readdr")
    a.label("K2_addrok")
    a(f"    s_lshl_b32 s{t0}, s{sTf}, 9")
    a(f"    v_add_u32 v{aA2}, s{t0}, v{aA2}")
    a(f"    s_lshl_b32 s{t0}, s{sTf}, 11")
    a(f"    v_add_u32 v{aA3}, s{t0}, v{aA3}")
    a(f"    s_lshl_b32 s{t0}, s{sTf}, 8")
    a(f"    v_add_u32 v{aRH}, s{t0}, v{aRH}")
    a(f"    v_add_u32 v{aRE}, s{t0}, v{aRE}")
    a(f"    s_waitcnt lgkmcnt(0)")
    a(f"    s_barrier")
    st(5)
    PI = D[0]
    a(f"    ds_read_u16 v{PI+0}, v{aRH}")
    a(f"    ds_read_u16 v{PI+2}, v{aRH} offset:128")
    a(f"    ds_read_b32 v{PI+4}, v{aRE} offset:4")
    a(f"    ds_read_u16 v{PI+6}, v{aRH} offset:256")
    a(f"    ds_read_u16 v{PI+8}, v{aRH} offset:{256+128}")
    a(f"    ds_read_b32 v{PI+10}, v{aRE} offset:{256+4}")
    a(f"    ds_read_u16 v{iH0}, v{aRH} offset:512")
    a(f"    ds_read_u16 v{iH1}, v{aRH} offset:{512+128}")
    a(f"    ds_read_b32 v{iE}, v{aRE} offset:{512+4}")
    for p_ in (1, 3, 7, 9): a(f"    v_mov_b32 v{PI+p_}, v{iH0+1}")
    for p_ in (5, 11): a(f"    v_mov_b32 v{PI+p_}, v{iE+1}")
    def b_issue(p0, p1, ringreg):
        a(f"    s_mov_b32 m0, s{ringreg}")
        a(f"    s_add_u32 s4, s{ringreg}, 1024")
        a(f"    buffer_load_dwordx4 v[{p0}:{p0+1}], s[{sB}:{sB+3}], 0 idxen offen lds")
        a(f"    s_mov_b32 m0, s4")
        a(f"    s_nop 0")
        a(f"    buffer_load_dwordx4 v[{p1}:{p1+1}], s[{sB}:{sB+3}], 0 idxen offen lds")
    def e_issue(pair, dst):
        a(f"    buffer_load_dwordx4 v[{dst}:{dst+3}], v[{pair}:{pair+1}], s[{sEA}:{sEA+3}], 0 idxen offen")
    a(f"    s_waitcnt lgkmcnt(6)")
    b_issue(PI + 0, PI + 2, sStg)
    e_issue(PI + 4, EFB[0])
    a(f"    s_waitcnt lgkmcnt(3)")
    a(f"    s_add_u32 s{t0}, s{sStg}, {SSTR}")
    b_issue(PI + 6, PI + 8, t0)
    e_issue(PI + 10, EFB[1])
    st(6)
    a(f"    s_cmp_eq_u32 s{sFirst}, 0")
    a(f"    s_cbranch_scc1 K2_noX")
    a(f"    s_mov_b32 s{sFirst}, 0")
    a(f"    s_waitcnt vmcnt({n1 + 6 + npf})")
    a(f"    v_and_b32 v{A0}, 31, v{l}")
    a(f"    s_lshl_b32 s{t0}, s{sSet}, 4")
    a(f"    v_add_u32 v{A0}, s{t0}, v{A0}")
    a(f"    v_lshrrev_b32 v{A1}, 2, v{A0}")
    a(f"    v_mul_u32_u24 v{A1}, {QSTR}, v{A1}")
    a(f"    v_and_b32 v{A4}, 3, v{A0}")
    a(f"    v_lshl_add_u32 v{A1}, v{A4}, 8, v{A1}")
    a(f"    v_add_u32 v{A1}, {HOWN}, v{A1}")
    a(f"    v_lshrrev_b32 v{A5}, 5, v{l}")
    a(f"    v_xor_b32 v{A5}, v{A5}, v{A4}")
    a(f"    v_lshl_add_u32 v{A0}, v{A5}, 4, v{A1}")
    a(f"    v_xor_b32 v{A5}, 2, v{A5}")
    a(f"    v_lshl_add_u32 v{A1}, v{A5}, 4, v{A1}")
    XA = D[0]
    FR = T
    fr = [BF, BF + 4, AF, M]
    a(f"    s_waitcnt lgkmcnt(0)")
    for half in range(2):
        for u in range(4):
            s_ = half * 4 + u
            ad = A0 if s_ % 2 == 0 else A1
            a(f"    ds_read_b128 v[{fr[u]}:{fr[u]+3}], v{ad} offset:{(s_ >> 1) * 64}")
        for u in range(4):
            s_ = half * 4 + u
            a(f"    s_waitcnt lgkmcnt({3-u})")
            a(mfma(XA, fr[u], W1F + 4 * s_, None if s_ == 0 else XA))
    for ntile in range(3):
        for s_ in range(4):
            dst = DP + (ntile * 4 + s_) * 4
            a(f"    ds_read_b128 v[{dst}:{dst+3}], v{cHB} offset:{ntile * 4 * QSTR + 64 * s_}")
    cs = -LOG2E
    a(f"    s_mov_b32 s{t0}, {hex(f32bits(cs))}")
    a(f"    v_lshlrev_b32 v{WD}, 16, v{WD}")
    a(f"    v_mul_f32 v{WD}, s{t0}, v{WD}")
    a(f"    v_cvt_pk_bf16_f32 v{A4}, v{WD}, v{WD}")
    a(f"    v_and_b32 v{A5}, 0xffff0000, v{A4}")
    a(f"    v_sub_f32 v{A0}, v{WD}, v{A5}")
    a(f"    v_cvt_pk_bf16_f32 v{A4}, v{A5}, v{A0}")
    a(f"    v_cmp_gt_u32 vcc, 32, v{l}")
    a(f"    s_nop 1")
    a(f"    v_cndmask_b32 v{A4}, 0, v{A4}, vcc")
    for ntile in range(3):
        for s_ in range(4):
            src = DP + (ntile * 4 + s_) * 4
            a(f"    s_waitcnt lgkmcnt({11 - (ntile*4+s_)})")
            c_ = "0" if s_ == 0 else f"v[{HP+4*ntile}:{HP+4*ntile+3}]"
            a(f"    v_mfma_f32_16x16x32_bf16 v[{HP+4*ntile}:{HP+4*ntile+3}], v[{WHL+4*s_}:{WHL+4*s_+3}], v[{src}:{src+3}], {c_}")
    for j in range(3):
        b_ = XA + 4 * j
        a(f"    v_mul_f32 v{b_}, s{t0}, v{b_}\n    v_mul_f32 v{b_+1}, s{t0}, v{b_+1}\n    v_mul_f32 v{b_+2}, s{t0}, v{b_+2}\n    v_mul_f32 v{b_+3}, s{t0}, v{b_+3}")
        x = X + 4 * j
        a(f"    v_cvt_pk_bf16_f32 v{x}, v{b_}, v{b_+1}")
        a(f"    v_cvt_pk_bf16_f32 v{x+1}, v{b_+2}, v{b_+3}")
        a(f"    v_mov_b32 v{x+2}, v{A4}")
        a(f"    v_mov_b32 v{x+3}, 0")
        a(f"    s_nop 1")
        a(f"    v_permlane32_swap_b32 v{x}, v{x+2}")
        a(f"    v_permlane32_swap_b32 v{x+1}, v{x+3}")
    a.label("K2_noX")
    for r in range(4): a(f"    v_mov_b32 v{XC+r}, v{X+r}")
    st(7)
    a(f"    s_waitcnt vmcnt(6) lgkmcnt(0)")
    for j in range(4):
        r = RR + j
        ps, pd = PSRC + 2 * j, PDST + 2 * j
        a(f"    v_cmp_gt_u32 vcc, -2, v{r}")
        a(f"    s_and_saveexec_b64 s[{sX}:{sX+1}], vcc")
        a(f"    s_cbranch_execz K2_bd{j}")
        h0, h1, h2, h3 = BF, BF + 1, BF + 2, BF + 3
        a(f"    v_lshlrev_b32 v{h0}, 16, v{pd}\n    v_lshlrev_b32 v{h1}, 16, v{ps}\n    v_sub_f32 v{h0}, v{h0}, v{h1}")
        a(f"    v_and_b32 v{h1}, 0xffff0000, v{pd}\n    v_and_b32 v{h2}, 0xffff0000, v{ps}\n    v_sub_f32 v{h1}, v{h1}, v{h2}")
        a(f"    v_lshlrev_b32 v{h2}, 16, v{pd+1}\n    v_lshlrev_b32 v{h3}, 16, v{ps+1}\n    v_sub_f32 v{h2}, v{h2}, v{h3}")
        g0, g1, g2, g3 = AF, AF + 1, AF + 2, AF + 3
        a(f"    v_cvt_pk_bf16_f32 v{g0}, v{h0}, v{h1}")
        a(f"    v_cvt_pk_bf16_f32 v{g1}, v{h2}, v{h2}")
        a(f"    v_lshlrev_b32 v{h0}, 16, v{g0}\n    v_and_b32 v{h1}, 0xffff0000, v{g0}\n    v_and_b32 v{h2}, 0xffff0000, v{g1}")
        a(f"    v_mul_f32 v{h0}, v{h0}, v{h0}\n    v_mul_f32 v{h1}, v{h1}, v{h1}\n    v_mul_f32 v{h2}, v{h2}, v{h2}")
        a(f"    v_cvt_pk_bf16_f32 v{g2}, v{h0}, v{h1}\n    v_cvt_pk_bf16_f32 v{g3}, v{h2}, v{h2}")
        a(f"    v_lshlrev_b32 v{h0}, 16, v{g2}\n    v_and_b32 v{h1}, 0xffff0000, v{g2}\n    v_and_b32 v{h2}, 0xffff0000, v{g3}")
        a(f"    v_add_f32 v{h0}, v{h0}, v{h1}\n    v_add_f32 v{h0}, v{h0}, v{h2}")
        a(f"    v_cvt_pk_bf16_f32 v{g2}, v{h0}, v{h0}")
        a(f"    v_mov_b32 v{h0}, 0x3f80")
        a(f"    v_lshl_or_b32 v{h2}, v{g0}, 16, v{h0}")
        a(f"    v_alignbit_b32 v{h3}, v{g1}, v{g0}, 16")
        a(f"    v_bfe_u32 v{A1}, v{r}, 14, 3")
        a(f"    v_lshlrev_b32 v{A4}, 6, v{SL+j}")
        a(f"    v_lshl_add_u32 v{A4}, v{A1}, 3, v{A4}")
        a(f"    v_add_u32 v{A4}, {A3T}, v{A4}")
        a(f"    ds_write_b64 v{A4}, v[{h2}:{h3}]")
        a(f"    v_lshlrev_b32 v{A4}, 4, v{SL+j}")
        a(f"    v_add_u32 v{A5}, {A2H}, v{A4}")
        a(f"    ds_write_b32 v{A5}, v{g2}")
        a(f"    v_lshl_add_u32 v{A4}, v{A1}, 1, v{A4}")
        a(f"    v_add_u32 v{A4}, {A2L}, v{A4}")
        a(f"    ds_write_b16 v{A4}, v{h0}")
        a.label(f"K2_bd{j}")
        a(f"    s_mov_b64 exec, s[{sX}:{sX+1}]")
    a(f"    s_cmp_eq_u32 s{sDPI}, 1")
    a(f"    s_cbranch_scc1 K2_nodp")
    for r in range(48): a(f"    v_mov_b32 v{DP+r}, 0")
    a(f"    s_mov_b32 s{sDPI}, 1")
    a.label("K2_nodp")
    for r in range(16): a(f"    v_mov_b32 v{DPC+r}, 0")
    a(f"    s_mov_b32 s{sI}, -1")
    a(f"    s_mov_b32 s{sRingR}, s{sStg}")
    a(f"    s_add_u32 s{sRingW}, s{sStg}, {2*SSTR}")
    a(f"    v_add_u32 v{aBF}, s{sRingR}, v{cBF}")
    a(f"    v_add_u32 v{aRH}, {3*256}, v{aRH}")
    a(f"    v_add_u32 v{aRE}, {3*256}, v{aRE}")
    a(f"    v_subrev_u32 v{aA3}, 2048, v{aA3}")
    a(f"    s_waitcnt lgkmcnt(0)")
    st(8)
    a(f"    s_barrier")
    st(9)
    a(f"    s_cmp_eq_u32 s{sTs}, 0")
    a(f"    s_cbranch_scc1 K2_loopdone")

    def top(with_tr=True):
        a(f"    s_waitcnt vmcnt(3)")
        for u in range(4):
            a(f"    ds_read_b64_tr_b16 v[{BF+2*u}:{BF+2*u+1}], v{aBF} offset:{[0, 256, 1024, 1280][u]}")
        a(f"    ds_read_b128 v[{AF}:{AF+3}], v{aA2}")
        if with_tr:
            for u in range(4):
                a(f"    ds_read_b64_tr_b16 v[{TR+2*u}:{TR+2*u+1}], v{aA3} offset:{512*u}")
        b_issue(iH0, iH1, sRingW)
        a(f"    ds_read_u16 v{iH0}, v{aRH}")
        a(f"    ds_read_u16 v{iH1}, v{aRH} offset:128")
        a(f"    s_mov_b32 s{sRingW}, s{sRingR}")
        a(f"    s_add_u32 s{sRingR}, s{sRingR}, {SSTR}")
        a(f"    s_cmp_eq_u32 s{sRingR}, s{sStgEnd}")
        a(f"    s_cselect_b32 s{sRingR}, s{sStg}, s{sRingR}")
        a(f"    v_add_u32 v{aA2}, 512, v{aA2}")
        a(f"    v_add_u32 v{aA3}, 2048, v{aA3}")
        a(f"    v_add_u32 v{aRH}, 256, v{aRH}")
    def after_ef(EFc):
        e_issue(iE, EFc)
        a(f"    ds_read_b32 v{iE}, v{aRE} offset:4")
        a(f"    v_add_u32 v{aRE}, 256, v{aRE}")
        a(f"    v_add_u32 v{aBF}, s{sRingR}, v{cBF}")
    def xcheck(ret):
        a(f"    s_add_u32 s4, s{sI}, 1")
        a(f"    s_cmp_eq_u32 s4, s{sBx}")
        a(f"    s_cbranch_scc1 K2_xsw{ret}")
        a.label(f"K2_xret{ret}")
    def dcheck(ret):
        a(f"    s_cmp_eq_u32 s{sI}, s{sBd}")
        a(f"    s_cbranch_scc1 K2_dsw{ret}")
        a.label(f"K2_dret{ret}")
    def silu_h(Dc, hf, mids):
        d = Dc + 8 * hf
        for k, m_ in enumerate(mids):
            pass
        if mids[0]: mids[0]()
        for i in range(4): a(f"    v_exp_f32 v{T+i}, v{d+i}")
        if mids[1]: mids[1]()
        for i in range(4, 8): a(f"    v_exp_f32 v{T+i}, v{d+i}")
        for i in range(0, 8, 2): a(f"    v_pk_add_f32 v[{T+i}:{T+i+1}], v[{T+i}:{T+i+1}], 1.0 op_sel_hi:[1,0]")
        if mids[2]: mids[2]()
        for i in range(4): a(f"    v_rcp_f32 v{T+i}, v{T+i}")
        if mids[3]: mids[3]()
        for i in range(4, 8): a(f"    v_rcp_f32 v{T+i}, v{T+i}")
        for i in range(0, 8, 2): a(f"    v_pk_mul_f32 v[{T+8+i}:{T+8+i+1}], v[{d+i}:{d+i+1}], v[{T+i}:{T+i+1}]")
        for i in range(4): a(f"    v_cvt_pk_bf16_f32 v{M+4*hf+i}, v{T+8+2*i}, v{T+8+2*i+1}")
    def silu_q(Dc, q):
        d = Dc + 4 * q
        for i in range(4): a(f"    v_exp_f32 v{T+i}, v{d+i}")
        a(f"    s_nop 0")
        for i in range(0, 4, 2): a(f"    v_pk_add_f32 v[{T+i}:{T+i+1}], v[{T+i}:{T+i+1}], 1.0 op_sel_hi:[1,0]")
        for i in range(4): a(f"    v_rcp_f32 v{T+i}, v{T+i}")
        a(f"    s_nop 0")
        for i in range(0, 4, 2): a(f"    v_pk_mul_f32 v[{T+8+i}:{T+8+i+1}], v[{d+i}:{d+i+1}], v[{T+i}:{T+i+1}]")
        for i in range(2): a(f"    v_cvt_pk_bf16_f32 v{M+2*q+i}, v{T+8+2*i}, v{T+8+2*i+1}")
    def endit():
        a(f"    s_add_u32 s{sI}, s{sI}, 1")
        a(f"    s_add_u32 s4, s{sI}, 1")
        a(f"    s_cmp_ge_u32 s4, s{sTs}")

    top(with_tr=False)
    xcheck(2)
    Dn = D[1]
    a(mfma(Dn, EFB[0], W4F, None))
    after_ef(EFB[0])
    a(f"    s_waitcnt lgkmcnt(3)")
    a(mfma(Dn, AF, XC, Dn))
    a(mfma(Dn, IDN, BF, Dn))
    a(mfma(Dn, IDN + 4, BF + 4, Dn))
    endit()
    a(f"    s_cbranch_scc1 K2_epi1")
    a(f"    s_branch K2_it1")

    def body(p):
        Dc, Dn = D[p], D[1 - p]
        EFc = EFB[p]
        a.label(f"K2_it{p}")
        top()
        xcheck(p)
        f = lambda ins: (lambda: a(ins))
        def m_ef():
            a(mfma(Dn, EFc, W4F, None))
        def m_af():
            a(f"    s_waitcnt lgkmcnt(7)")
            a(mfma(Dn, AF, XC, Dn))
        def seg0():
            a(mfma(DPC, M, TR, DPC))
        dcheck(p)
        if cfg.qskip:
            a(f"    s_cmp_lt_u32 s{sRem}, 25")
            a(f"    s_cbranch_scc1 K2_part{p}")
        m_ef()
        after_ef(EFc)
        silu_h(Dc, 0, [None, m_af, f(mfma(Dn, IDN, BF, Dn)), f(mfma(Dn, IDN + 4, BF + 4, Dn))])
        a(f"    s_waitcnt lgkmcnt(0)")
        silu_h(Dc, 1, [None, seg0, None, None])
        a(f"    s_nop 1")
        a(mfma(DPC, M + 4, TR + 4, DPC))
        a.label(f"K2_join{p}")
        a(f"    s_sub_u32 s{sRem}, s{sRem}, 32")
        endit()
        a(f"    s_cbranch_scc1 K2_epi{1-p}")
    body(1)
    body(0)
    a(f"    s_branch K2_it1")

    def partial(p, epi):
        Dc = D[p]
        tag = f"e" if epi else f"{p}"
        for q in range(3):
            a(f"    s_cmp_gt_i32 s{sRem}, {8*q}")
            a(f"    s_cbranch_scc0 K2_pz{tag}_{q}")
            silu_q(Dc, q)
        a(f"    s_branch K2_pz{tag}_3")
        for q in range(3):
            a.label(f"K2_pz{tag}_{q}")
            a(f"    v_mov_b32 v{M+2*q}, 0\n    v_mov_b32 v{M+2*q+1}, 0")
        a.label(f"K2_pz{tag}_3")
        a(f"    v_mov_b32 v{M+6}, 0\n    v_mov_b32 v{M+7}, 0")
    if cfg.qskip:
        for p in (0, 1):
            Dn = D[1 - p]
            a.label(f"K2_part{p}")
            a(mfma(Dn, EFB[p], W4F, None))
            after_ef(EFB[p])
            a(f"    s_waitcnt lgkmcnt(7)")
            a(mfma(Dn, AF, XC, Dn))
            a(mfma(Dn, IDN, BF, Dn))
            a(mfma(Dn, IDN + 4, BF + 4, Dn))
            partial(p, False)
            a(f"    s_waitcnt lgkmcnt(0)")
            a(mfma(DPC, M, TR, DPC))
            a(mfma(DPC, M + 4, TR + 4, DPC))
            a(f"    s_branch K2_join{p}")

    for ret in (0, 1, 2):
        a.label(f"K2_xsw{ret}")
        a(f"    s_mov_b32 s{sRet}, {ret}")
        if ret != 2: a(f"    s_branch K2_xsw")
    a.label("K2_xsw")
    a(f"    s_add_u32 s{sKx}, s{sKx}, 1")
    a(f"    s_mov_b32 s{sBx}, s{sBx2}")
    a(f"    s_mov_b32 s{sBx2}, -1")
    a(f"    s_cmp_eq_u32 s{sKx}, 1")
    a(f"    s_cbranch_scc0 K2_xsw_2")
    for r in range(4): a(f"    v_mov_b32 v{XC+r}, v{X+4+r}")
    a(f"    s_branch K2_xsw_c")
    a.label("K2_xsw_2")
    for r in range(4): a(f"    v_mov_b32 v{XC+r}, v{X+8+r}")
    a.label("K2_xsw_c")
    a(f"    s_cmp_eq_u32 s4, s{sBx}")
    a(f"    s_cbranch_scc1 K2_xsw")
    a(f"    s_cmp_eq_u32 s{sRet}, 0\n    s_cbranch_scc1 K2_xret0")
    a(f"    s_cmp_eq_u32 s{sRet}, 1\n    s_cbranch_scc1 K2_xret1")
    a(f"    s_branch K2_xret2")
    rets = [0, 1, 2, 3]
    for ret in rets:
        a.label(f"K2_dsw{ret}")
        a(f"    s_mov_b32 s{sRet}, {ret}")
        if ret != rets[-1]: a(f"    s_branch K2_dsw")
    a.label("K2_dsw")
    a(f"    s_nop 7\n    s_nop 7")
    a(f"    s_cmp_eq_u32 s{sKd}, 1\n    s_cbranch_scc1 K2_dsw_1")
    a(f"    s_cmp_eq_u32 s{sKd}, 2\n    s_cbranch_scc1 K2_dsw_2")
    for k in range(3):
        if k: a.label(f"K2_dsw_{k}")
        for r in range(16): a(f"    v_add_f32 v{DP+16*k+r}, v{DP+16*k+r}, v{DPC+r}")
        if k < 2: a(f"    s_branch K2_dsw_c")
    a.label("K2_dsw_c")
    for r in range(16): a(f"    v_mov_b32 v{DPC+r}, 0")
    a(f"    s_add_u32 s{sKd}, s{sKd}, 1")
    a(f"    s_cmp_eq_u32 s{sKd}, 1")
    a(f"    s_cselect_b32 s{sRem}, s{sRem1}, s{sRem2}")
    a(f"    s_mov_b32 s{sBd}, s{sBd2}")
    a(f"    s_mov_b32 s{sBd2}, -1")
    a(f"    s_cmp_eq_u32 s{sRet}, 3\n    s_cbranch_scc1 K2_dret3")
    a(f"    s_cmp_eq_u32 s{sI}, s{sBd}")
    a(f"    s_cbranch_scc1 K2_dsw")
    a(f"    s_nop 1")
    for ret in rets:
        if ret == 3: continue
        a(f"    s_cmp_eq_u32 s{sRet}, {ret}\n    s_cbranch_scc1 K2_dret{ret}")
    a(f"    s_endpgm")
    a.label("K2_mark")
    a(f"    v_mov_b32 v{A0}, 1")
    a(f"    v_mov_b32 v{A1}, {CNT + 20}")
    a(f"    ds_write_b32 v{A1}, v{A0}")
    a(f"    s_branch K2_rank")
    a.label("K2_toslow")
    a(f"    s_mov_b32 s{sMode}, 1")
    a(f"    s_mov_b32 s{sWin}, 0")
    a(f"    s_waitcnt vmcnt(0)")
    a(f"    s_barrier")
    a(f"    s_branch K2_zero")
    a.label("K2_readdr")
    a(f"    v_and_b32 v{A0}, 31, v{l}\n    v_lshrrev_b32 v{A2_}, 5, v{l}")
    a(f"    v_mul_u32_u24 v{A4}, {A2H - A2L}, v{A2_}\n    v_lshl_add_u32 v{aA2}, v{A0}, 4, v{A4}\n    v_add_u32 v{aA2}, {A2L}, v{aA2}")
    a(f"    v_lshlrev_b32 v{A4}, 8, v{A2_}\n    v_sub_u32 v{aA3}, v{cBF}, v{A4}\n    v_add_u32 v{aA3}, {A3T}, v{aA3}")
    a(f"    v_lshrrev_b32 v{A4}, 2, v{l}\n    v_lshlrev_b32 v{A4}, 3, v{A4}\n    v_add_u32 v{aRH}, {REC}, v{A4}")
    a(f"    v_lshlrev_b32 v{A4}, 3, v{A0}\n    v_add_u32 v{aRE}, {REC}, v{A4}")
    a(f"    s_branch K2_addrok")

    a.label("K2_epi0")
    for r in range(16): a(f"    v_mov_b32 v{D[1]+r}, v{D[0]+r}")
    a.label("K2_epi1")
    for u in range(4):
        a(f"    ds_read_b64_tr_b16 v[{TR+2*u}:{TR+2*u+1}], v{aA3} offset:{512*u}")
    dcheck(2)
    if cfg.qskip:
        a(f"    s_cmp_lt_u32 s{sRem}, 25")
        a(f"    s_cbranch_scc1 K2_parte")
    silu_h(D[1], 0, [None, None, None, None])
    silu_h(D[1], 1, [None, None, None, None])
    if cfg.qskip:
        a(f"    s_branch K2_epij")
        a.label("K2_parte")
        partial(1, True)
        a.label("K2_epij")
    a(f"    s_waitcnt lgkmcnt(0)")
    a(mfma(DPC, M, TR, DPC))
    a(mfma(DPC, M + 4, TR + 4, DPC))
    a(f"    s_nop 3")
    a(f"    s_branch K2_dsw3")
    a.label("K2_dret3")
    a.label("K2_loopdone")
    st(10)
    a(f"    s_cmp_eq_u32 s{sMode}, 0")
    a(f"    s_cbranch_scc1 K2_tail")
    a(f"    s_waitcnt vmcnt(0)")
    a(f"    s_barrier")
    a(f"    s_mul_i32 s{t0}, s{sWin}, {WIN}")
    a(f"    s_cmp_ge_u32 s{t0}, {E}")
    a(f"    s_cbranch_scc0 K2_zero")
    a.label("K2_tail")
    a(f"    v_bfe_u32 v{A0}, v{l}, 2, 3")
    a(f"    v_lshrrev_b32 v{A1}, 2, v{A0}")
    a(f"    v_mul_u32_u24 v{A1}, {QSTR}, v{A1}")
    a(f"    v_and_b32 v{A3_}, 3, v{A0}")
    a(f"    v_lshl_add_u32 v{A1}, v{A3_}, 8, v{A1}")
    a(f"    v_lshl_add_u32 v{A1}, v{A3_}, 4, v{A1}")
    a(f"    v_lshrrev_b32 v{A3_}, 5, v{l}")
    a(f"    v_lshl_add_u32 v{A1}, v{A3_}, 3, v{A1}")
    a(f"    s_lshl_b32 s{t1}, s{sC}, 6")
    a(f"    s_add_u32 s{t1}, s{t1}, {HOWN}")
    a(f"    v_add_u32 v{A1}, s{t1}, v{A1}")
    PK = T
    PKr = [T, T + 8, BF]
    for k in range(3):
        dp = DP + 16 * k
        for u in range(8):
            a(f"    v_cvt_pk_bf16_f32 v{PKr[k]+u}, v{dp+2*u}, v{dp+2*u+1}")
    TD = [D[0], D[1], DPC]
    for k in range(3):
        a(mfma(TD[k], WX, PKr[k], None))
        a(mfma(TD[k], WX + 4, PKr[k] + 4, TD[k]))
    a(f"    s_mov_b32 s{sX}, 0x11111111\n    s_mov_b32 s{sX+1}, 0x11111111")
    a(f"    s_cmp_eq_u32 s{sSet}, 0")
    for k in range(3):
        rb0, rb1 = 8 * k, [48, 24, 32][k]
        a(f"    s_mov_b32 s{t1}, {rb1 // 4 * QSTR}")
        a(f"    s_cselect_b32 s{t1}, {rb0 // 4 * QSTR}, s{t1}")
        a(f"    v_add_u32 v{A5}, s{t1}, v{A1}")
        a(f"    v_xor_b32 v{A0}, 16, v{A5}\n    v_xor_b32 v{A2_}, 32, v{A5}\n    v_xor_b32 v{A3_}, 48, v{A5}")
        a(f"    s_mov_b64 exec, s[{sX}:{sX+1}]")
        for j, ad in enumerate((A5, A0, A2_, A3_)):
            a(f"    ds_write_b64 v{ad}, v[{PKr[k]+2*j}:{PKr[k]+2*j+1}]")
        a(f"    s_mov_b64 exec, -1")
    a(f"    s_waitcnt vmcnt(0)")
    a(f"    v_and_b32 v{A4}, 31, v{l}")
    a(f"    v_lshlrev_b32 v{A4}, 2, v{A4}")
    a(f"    v_add_u32 v{A5}, s{sStg}, v{A4}")
    a(f"    s_mov_b32 s6, -1\n    s_mov_b32 s7, 0")
    a(f"    s_mov_b64 exec, s[6:7]")
    for k in range(3):
        a(f"    ds_write_b32 v{A5}, v{TD[k]} offset:{128*k}")
    a(f"    s_mov_b64 exec, -1")
    XB = T
    for r in range(16): a(f"    v_mov_b32 v{XB+r}, 0")
    a(f"    s_waitcnt lgkmcnt(0)")
    a(f"    s_barrier")
    st(12)
    AC = D[0]
    FB = DP
    for ntile in range(3):
        for s_ in range(4):
            a(f"    ds_read_b128 v[{FB+16*ntile+4*s_}:{FB+16*ntile+4*s_+3}], v{cHB} offset:{ntile * 4 * QSTR + 64 * s_}")
    a(f"    s_mov_b32 s{sX}, 0x00ff00ff\n    s_mov_b32 s{sX+1}, 0x00ff00ff")
    a(f"    s_mov_b64 exec, s[{sX}:{sX+1}]")
    a(f"    s_waitcnt lgkmcnt(8)")
    for s_ in range(4):
        a(f"    ds_read_b128 v[{XB+4*s_}:{XB+4*s_+3}], v{cHB} offset:{12 * QSTR + 64 * s_}")
    a(f"    s_mov_b64 exec, -1")
    a(f"    v_mul_u32_u24 v{A0}, 171, v0")
    a(f"    v_lshrrev_b32 v{A0}, 9, v{A0}")
    a(f"    v_min_u32 v{A0}, 39, v{A0}")
    a(f"    v_mul_u32_u24 v{A1}, 3, v{A0}")
    a(f"    v_sub_u32 v{A1}, v0, v{A1}")
    a(f"    v_and_b32 v{A1}, 3, v{A1}")
    a(f"    v_and_b32 v{A4}, 7, v{A0}")
    a(f"    v_lshlrev_b32 v{A4}, 4, v{A4}")
    a(f"    v_lshl_add_u32 v{A4}, v{A1}, 2, v{A4}")
    a(f"    v_lshrrev_b32 v{A0}, 3, v{A0}")
    a(f"    v_cmp_lt_u32 vcc, 2, v{A0}")
    a(f"    v_lshlrev_b32 v{A1}, 7, v{A0}")
    a(f"    v_mov_b32 v{A5}, {4*NR*SSTR - 256}")
    a(f"    v_cndmask_b32 v{A5}, 0, v{A5}, vcc")
    a(f"    v_add3_u32 v{A4}, v{A4}, v{A1}, v{A5}")
    a(f"    v_add_u32 v{A4}, 4, v{A4}")
    PQ = M
    for cc in range(4):
        a(f"    ds_read_b32 v{PQ+cc}, v{A4} offset:{NR*SSTR*cc}")
    a(f"    v_cmp_eq_u32 vcc, 2, v{A0}")
    a(f"    v_add_u32 v{A5}, {4*NR*SSTR - 256}, v{A4}")
    a(f"    s_nop 0")
    a(f"    v_cndmask_b32 v{A5}, v{A4}, v{A5}, vcc")
    for cc in range(4):
        a(f"    ds_read_b32 v{PQ+4+cc}, v{A5} offset:{NR*SSTR*cc}")
    for ntile in range(3):
        for s_ in range(4):
            a(f"    s_waitcnt lgkmcnt({min(15, 11 - (ntile*4+s_) + 4 + 8)})")
            c_ = "0" if s_ == 0 else f"v[{AC+4*ntile}:{AC+4*ntile+3}]"
            a(f"    v_mfma_f32_16x16x32_bf16 v[{AC+4*ntile}:{AC+4*ntile+3}], v[{WHH+4*s_}:{WHH+4*s_+3}], v[{FB+16*ntile+4*s_}:{FB+16*ntile+4*s_+3}], {c_}")
    for s_ in range(4):
        a(f"    s_waitcnt lgkmcnt({3 - s_ + 8})")
        a(f"    v_mfma_f32_16x16x32_bf16 v[{AC+4}:{AC+7}], v[{WHH+4*s_}:{WHH+4*s_+3}], v[{XB+4*s_}:{XB+4*s_+3}], v[{AC+4}:{AC+7}]")
    a(f"    s_mov_b32 s{t0}, {hex(f32bits(-LN2))}")
    a(f"    s_mov_b32 s{t1}, {hex(f32bits(-LOG2E))}")
    a(f"    s_waitcnt lgkmcnt(0)")
    a(f"    v_add_f32 v{M}, v{M}, v{M+1}\n    v_add_f32 v{M+2}, v{M+2}, v{M+3}\n    v_add_f32 v{M}, v{M}, v{M+2}")
    a(f"    v_add_f32 v{M+4}, v{M+4}, v{M+5}\n    v_add_f32 v{M+6}, v{M+6}, v{M+7}\n    v_add_f32 v{M+4}, v{M+4}, v{M+6}")
    a(f"    v_cndmask_b32 v{M+4}, 0, v{M+4}, vcc")
    a(f"    v_add_f32 v{A1}, v{M}, v{M+4}")
    a(f"    v_lshlrev_b32 v{POSO}, 16, v{POSO}")
    a(f"    v_fma_f32 v{A1}, v{A1}, s{t0}, v{POSO}")
    a(f"    v_cvt_pk_bf16_f32 v{A1}, v{A1}, v{A1}")
    a(f"    s_mul_i32 s{t2}, s2, 240")
    a(f"    s_add_u32 s{t2}, s{t2}, {N*256}")
    a(f"    v_lshlrev_b32 v{A0}, 1, v0")
    a(f"    v_cmp_gt_u32 vcc, 120, v0")
    a(f"    s_and_saveexec_b64 s[{sX}:{sX+1}], vcc")
    a(f"    s_cbranch_execz K2_nopos")
    a(f"    buffer_store_short v{A1}, v{A0}, s[{sOUT}:{sOUT+3}], s{t2} offen")
    a.label("K2_nopos")
    a(f"    s_mov_b64 exec, s[{sX}:{sX+1}]")
    a(f"    s_movk_i32 s{t2}, 0x1000")
    a(f"    s_movk_i32 s{t3}, 0x2000")
    TT = BF
    for ntile in [0, 2, 1]:
        x = AC + 4 * ntile; hp = HP + 4 * ntile
        for i in range(4): a(f"    v_fma_f32 v{x+i}, v{x+i}, s{t0}, v{hp+i}")
        for i in range(4): a(f"    v_mul_f32 v{TT+i}, s{t1}, v{x+i}")
        for i in range(4): a(f"    v_exp_f32 v{TT+i}, v{TT+i}")
        rs = RES + 2 * ntile
        a(f"    v_lshlrev_b32 v{TT+4}, 16, v{rs}")
        for i in range(4): a(f"    v_add_f32 v{TT+i}, 1.0, v{TT+i}")
        for i in range(4): a(f"    v_rcp_f32 v{TT+i}, v{TT+i}")
        a(f"    v_and_b32 v{TT+5}, 0xffff0000, v{rs}")
        a(f"    v_lshlrev_b32 v{TT+6}, 16, v{rs+1}\n    v_and_b32 v{TT+7}, 0xffff0000, v{rs+1}")
        for i in range(4): a(f"    v_fma_f32 v{x+i}, v{x+i}, v{TT+i}, v{TT+4+i}")
        a(f"    v_cvt_pk_bf16_f32 v{TR+2*ntile}, v{x}, v{x+1}")
        a(f"    v_cvt_pk_bf16_f32 v{TR+2*ntile+1}, v{x+2}, v{x+3}")
        if ntile == 0: a(f"    buffer_store_dwordx2 v[{TR}:{TR+1}], v{OUTA}, s[{sOUT}:{sOUT+3}], 0 offen")
        if ntile == 1: a(f"    buffer_store_dwordx2 v[{TR+2}:{TR+3}], v{OUTA}, s[{sOUT}:{sOUT+3}], s{t2} offen")
        if ntile == 2:
            a(f"    s_mov_b32 s{sX}, 0x00ff00ff\n    s_mov_b32 s{sX+1}, 0x00ff00ff")
            a(f"    s_mov_b64 exec, s[{sX}:{sX+1}]")
            a(f"    buffer_store_dwordx2 v[{TR+4}:{TR+5}], v{OUTA}, s[{sOUT}:{sOUT+3}], s{t3} offen")
            a(f"    s_mov_b64 exec, -1")
    if cfg.dbg:
        st(13)
        a(f"    s_waitcnt vmcnt(0)")
        st(14)
        a(f"    v_writelane_b32 v{vST}, s{sTs}, 15")
        stamp_store(a, cfg, vST, sWS, 0x100000, sW, A0, sMI)
    a.label("K2_done")
    a("    s_endpgm")
    a.label("K2_end")
    return nv

HEADER = """; EGNN layer, two launches.  Kernarg (88 bytes): h, pos, e_attr, src, dst, w_e, w_x, w_h, out, debug, ws
; @launch kernel=k1_kernel grid=({g1},1,1) block=(1024,1,1) lds={lds1}
; @launch kernel=k2_kernel grid=(250,1,1) block=(512,1,1) lds={lds2}
.amdgcn_target "amdgcn-amd-amdhsa--gfx950"
.text
"""
def desc(name, nv, ns):
    acc = (nv + 3) // 4 * 4
    return f""".p2align 6
.amdhsa_kernel {name}
  .amdhsa_next_free_vgpr {nv}
  .amdhsa_next_free_sgpr {ns}
  .amdhsa_accum_offset {acc}
  .amdhsa_group_segment_fixed_size 0
  .amdhsa_kernarg_size 88
  .amdhsa_user_sgpr_count 2
  .amdhsa_user_sgpr_kernarg_segment_ptr 1
  .amdhsa_system_sgpr_workgroup_id_x 1
  .amdhsa_float_denorm_mode_32 3
.end_amdhsa_kernel
"""
def generate(cfg):
    a = Asm()
    a(HEADER.format(g1=cfg.g1, lds1=K1_LDS, lds2=LDS2))
    gen_k1(a, cfg)
    nv = gen_k2(a, cfg)
    a('.section .rodata,"a"')
    a(desc("k1_kernel", 64, 48))
    a(desc("k2_kernel", nv, 102))
    return a.text(), nv

if __name__ == "__main__":
    cfg = Cfg()
    out = sys.argv[1] if len(sys.argv) > 1 else "egnn4.s"
    for kv in sys.argv[2:]:
        k, val = kv.split("=", 1)
        cur = getattr(cfg, k)
        setattr(cfg, k, val if isinstance(cur, str) else type(cur)(eval(val)))
    txt, nv = generate(cfg)
    open(out, "w").write(txt)
    print("vgprs", nv)
    check_hazards(txt)
```

```python
import sys, struct
from asmlib import *

def f32bits(x): return struct.unpack("<I", struct.pack("<f", x))[0]
LOG2E = 1.4426950408889634
LN2 = 0.6931471805599453
N = 10000; E = 160000; NB = 250; CH = 2500
CELL_BYTES = NB * 64 * 128
WS_FR = 0x200000
WEF_BYTES = 17 * 4 * 1024
WHF_OFF = WS_FR + WEF_BYTES
WS_B = 0x240000
WS_USED = WS_B + N * 256
DBG_OFF = 0x800000
QSTR = 1088
MAXT = 27
STG = 0; SSTR = 2048; NR = 3
A3T = 8 * NR * SSTR
A2L = A3T + MAXT * 32 * 64
A2H = A2L + MAXT * 32 * 16
REC = A2H + MAXT * 32 * 16
CNT = REC + (MAXT + 6) * 32 * 8
ZSTART = A3T; NZ = 12
ZEND = ZSTART + NZ * 8192
assert CNT + 64 <= ZEND
POSD = ZEND
HOWN = POSD + 512
LDS2 = 163840
PPO = 0
WIN = 192
K1_LDS = 32768 + 32 * QSTR
G_SORT, G_PREP, G_GEMM = 64, 9, 79
W_PREP = G_SORT; W_GEMM = G_SORT + G_PREP; W_PREF = W_GEMM + G_GEMM

class Cfg:
    g1 = 256
    pf_ea = True
    pf_code = True
    pf_b = True
    dbg = False
    qskip = True
    st_k1 = ""
    gemm_lds = True
    tlb = False
    ab_now = False
    ab_noz = False
    ab_noc = False
    ab_notail = False

def srd(a, d, base, nrec, stride=0):
    a(f"    s_mov_b32 s{d}, s{base}")
    a(f"    s_and_b32 s{d+1}, s{base+1}, 0xffff")
    if stride: a(f"    s_or_b32 s{d+1}, s{d+1}, {hex(stride << 16)}")
    a(f"    s_mov_b32 s{d+2}, {nrec}")
    a(f"    s_mov_b32 s{d+3}, 0x00020000")
def stamp(a, cfg, vreg, idx, sp=6):
    if not cfg.dbg: return
    a(f"    s_memrealtime s[{sp}:{sp+1}]")
    a(f"    s_waitcnt lgkmcnt(0)")
    a(f"    v_writelane_b32 v{vreg}, s{sp}, {idx}")
    a(f"    s_memtime s[{sp}:{sp+1}]")
    a(f"    s_waitcnt lgkmcnt(0)")
    a(f"    v_writelane_b32 v{vreg}, s{sp}, {idx + 32}")
def stamp_store(a, cfg, vreg, pws, region, swave, tmpv, srdb):
    if not cfg.dbg: return
    a(f"    s_mov_b64 exec, -1")
    a(f"    s_mov_b32 s{srdb}, s{pws}\n    s_and_b32 s{srdb+1}, s{pws+1}, 0xffff\n    s_mov_b32 s{srdb+2}, 0x1000000\n    s_mov_b32 s{srdb+3}, 0x00020000")
    a(f"    s_lshl_b32 s6, s2, 4")
    a(f"    s_add_u32 s6, s6, s{swave}")
    a(f"    s_lshl_b32 s6, s6, 8")
    a(f"    s_add_u32 s6, s6, {DBG_OFF + region}")
    a(f"    v_mbcnt_lo_u32_b32 v{tmpv}, -1, 0\n    v_mbcnt_hi_u32_b32 v{tmpv}, -1, v{tmpv}\n    v_lshlrev_b32 v{tmpv}, 2, v{tmpv}")
    a(f"    buffer_store_dword v{vreg}, v{tmpv}, s[{srdb}:{srdb+3}], s6 offen")

def gen_k1(a, cfg):
    fl = (" " + cfg.st_k1) if cfg.st_k1 else ""
    def k1_end(pws=8):
        if cfg.dbg:
            a("    s_mov_b64 exec, -1")
            stamp(a, cfg, 63, 4, 34)
            a("    s_waitcnt vmcnt(0)")
            stamp(a, cfg, 63, 5, 34)
            a("    s_load_dwordx2 s[8:9], s[0:1], 80\n    s_waitcnt lgkmcnt(0)")
            a("    v_lshrrev_b32 v62, 6, v0\n    s_nop 0\n    v_readfirstlane_b32 s33, v62")
            stamp_store(a, cfg, 63, 8, 0, 33, 62, 36)
        a("    s_endpgm")
    a(".globl k1_kernel\n.p2align 8\n.type k1_kernel,@function\nk1_kernel:")
    a(f"    s_cmp_ge_u32 s2, {cfg.g1}")
    a("    s_cbranch_scc1 K1_done")
    stamp(a, cfg, 63, 0, 34)
    a(f"    s_cmp_ge_u32 s2, {W_PREF}")
    a("    s_cbranch_scc1 K1_pref")
    a(f"    s_cmp_ge_u32 s2, {W_GEMM}")
    a("    s_cbranch_scc1 K1_gemm")
    a(f"    s_cmp_ge_u32 s2, {W_PREP}")
    a("    s_cbranch_scc1 K1_prep")
    a("    s_load_dwordx4 s[4:7], s[0:1], 24")
    a("    s_load_dwordx2 s[8:9], s[0:1], 80")
    a("    v_lshlrev_b32 v1, 4, v0")
    a("    v_lshlrev_b32 v2, 2, v0")
    a("    v_mov_b32 v4, -1\n    v_mov_b32 v5, -1\n    v_mov_b32 v6, -1\n    v_mov_b32 v7, -1\n    v_mov_b32 v3, 0")
    a("    ds_write_b128 v1, v[4:7]")
    a("    ds_write_b128 v1, v[4:7] offset:16384")
    a("    ds_write_b32 v2, v3 offset:32768")
    a("    s_mul_i32 s10, s2, 10000")
    a("    s_movk_i32 s20, 0x1000")
    a("    s_movk_i32 s21, 0x2000")
    a("    s_waitcnt lgkmcnt(0)")
    a("    s_add_u32 s12, s4, s10\n    s_addc_u32 s13, s5, 0\n    s_mov_b32 s14, 10000\n    s_mov_b32 s15, 0x00020000")
    a("    s_add_u32 s16, s6, s10\n    s_addc_u32 s17, s7, 0\n    s_mov_b32 s18, 10000\n    s_mov_b32 s19, 0x00020000")
    a("    buffer_load_dword v9, v2, s[16:19], 0 offen")
    a("    buffer_load_dword v8, v2, s[12:15], 0 offen")
    a("    buffer_load_dword v11, v2, s[16:19], s20 offen")
    a("    buffer_load_dword v10, v2, s[12:15], s20 offen")
    a("    buffer_load_dword v13, v2, s[16:19], s21 offen")
    a("    buffer_load_dword v12, v2, s[12:15], s21 offen")
    srd(a, 24, 8, CELL_BYTES)
    a("    s_lshl_b32 s22, s2, 7")
    a("    v_mov_b32 v30, 1")
    a("    s_movk_i32 s33, 452")
    a("    v_cmp_gt_u32 s[30:31], s33, v0")
    a("    s_barrier")
    stamp(a, cfg, 63, 1, 34)
    for e in range(3):
        S, D, B, R = 8 + 2 * e, 9 + 2 * e, 14 + e, 17 + e
        a(f"    s_waitcnt vmcnt({4 - 2 * e})")
        a(f"    v_mul_u32_u24 v{B}, 52429, v{D}")
        a(f"    v_lshrrev_b32 v{B}, 21, v{B}")
        a(f"    v_lshlrev_b32 v26, 2, v{B}")
        if e == 2: a("    s_mov_b64 exec, s[30:31]")
        a(f"    ds_add_rtn_u32 v{20+e}, v26, v30 offset:32768")
        a(f"    v_mul_u32_u24 v24, 40, v{B}")
        a(f"    v_sub_u32 v24, v{D}, v24")
        a(f"    v_lshl_or_b32 v{R}, v24, 14, v{S}")
        a(f"    v_add_u32 v25, {1024 * e}, v0")
        a(f"    v_lshl_or_b32 v{R}, v25, 20, v{R}")
    a("    s_mov_b64 exec, -1")
    stamp(a, cfg, 63, 2, 34)
    for e in range(3):
        B, R, K = 14 + e, 17 + e, 20 + e
        a(f"    s_waitcnt lgkmcnt({2 - e})")
        a(f"    v_cmp_gt_u32 vcc, 32, v{K}")
        a(f"    v_and_b32 v24, 7, v{K}")
        a(f"    v_lshlrev_b32 v24, 4, v24")
        a(f"    v_lshl_add_u32 v24, v{B}, 7, v24")
        a(f"    v_lshrrev_b32 v25, 3, v{K}")
        a(f"    v_lshl_add_u32 v24, v25, 2, v24")
        if e == 2: a("    s_and_b64 vcc, vcc, s[30:31]")
        a("    s_mov_b64 exec, vcc")
        a(f"    ds_write_b32 v24, v{R}")
        a("    s_mov_b64 exec, -1")
        if e < 2: a("    s_waitcnt lgkmcnt(" + str(2 - e) + ")") if False else None
    a("    s_waitcnt lgkmcnt(0)")
    a("    s_barrier")
    stamp(a, cfg, 63, 3, 34)
    a("    ds_read_b128 v[8:11], v1")
    a("    ds_read_b128 v[12:15], v1 offset:16384")
    a("    v_lshrrev_b32 v16, 3, v0")
    a("    v_lshlrev_b32 v17, 2, v16")
    a("    ds_read_b32 v18, v17 offset:32768")
    a("    ds_read_b32 v19, v17 offset:33280")
    a("    v_and_b32 v20, 7, v0")
    a("    v_lshlrev_b32 v21, 4, v20")
    a("    v_lshl_add_u32 v21, v16, 13, v21")
    a("    v_add_u32 v22, 0x100000, v21")
    a("    v_mov_b32 v23, -2")
    a("    v_cmp_eq_u32 s[30:31], 0, v20")
    a("    s_waitcnt lgkmcnt(0)")
    a("    v_cmp_lt_u32 vcc, 32, v18")
    a("    s_and_b64 vcc, vcc, s[30:31]")
    a("    s_nop 1")
    a("    v_cndmask_b32 v8, v8, v23, vcc")
    a("    v_cmp_lt_u32 vcc, 32, v19")
    a("    s_and_b64 vcc, vcc, s[30:31]")
    a("    s_nop 1")
    a("    v_cndmask_b32 v12, v12, v23, vcc")
    a(f"    buffer_store_dwordx4 v[8:11], v21, s[24:27], s22 offen{fl}")
    a(f"    buffer_store_dwordx4 v[12:15], v22, s[24:27], s22 offen{fl}")
    k1_end()
    a.label("K1_prep")
    a("    s_load_dwordx2 s[4:5], s[0:1], 40")
    a("    s_load_dwordx2 s[6:7], s[0:1], 56")
    a("    s_load_dwordx2 s[8:9], s[0:1], 80")
    a(f"    s_sub_u32 s10, s2, {W_PREP}")
    a("    s_lshl_b32 s10, s10, 10")
    a("    v_add_u32 v1, s10, v0")
    a("    s_nop 0")
    a("    v_readfirstlane_b32 s11, v1")
    a("    v_and_b32 v2, 63, v0")
    a("    s_cmp_ge_u32 s11, 8448")
    a("    s_cbranch_scc1 K1_done")
    a("    s_cmp_ge_u32 s11, 4352")
    a("    s_cbranch_scc1 K1_prepH")
    a("    s_lshr_b32 s12, s11, 8")
    a("    s_lshl_b32 s13, s12, 4")
    a("    s_cmp_eq_u32 s12, 16")
    a("    s_cselect_b32 s13, 257, s13")
    a(f"    s_cselect_b32 s14, {hex(f32bits(-LOG2E))}, 1.0")
    a("    s_lshr_b32 s15, s11, 6\n    s_and_b32 s15, s15, 3\n    s_lshl_b32 s15, s15, 5")
    a("    v_lshrrev_b32 v3, 5, v2\n    v_lshlrev_b32 v3, 3, v3\n    v_add_u32 v3, s13, v3")
    a("    v_and_b32 v4, 31, v2\n    v_add_u32 v4, s15, v4")
    a("    s_waitcnt lgkmcnt(0)")
    srd(a, 16, 4, 273 * 256)
    a("    s_branch K1_prepC")
    a.label("K1_prepH")
    a("    s_sub_u32 s12, s11, 4352")
    a("    s_lshr_b32 s13, s12, 6\n    s_and_b32 s13, s13, 7\n    s_lshl_b32 s13, s13, 5")
    a("    s_lshr_b32 s15, s12, 9\n    s_lshl_b32 s15, s15, 4")
    a("    s_mov_b32 s14, 1.0")
    a("    v_lshrrev_b32 v3, 4, v2\n    v_lshlrev_b32 v3, 3, v3\n    v_add_u32 v3, s13, v3")
    a("    v_and_b32 v4, 15, v2\n    v_add_u32 v4, s15, v4")
    a("    s_waitcnt lgkmcnt(0)")
    srd(a, 16, 6, 256 * 256)
    a.label("K1_prepC")
    a("    v_lshlrev_b32 v3, 8, v3\n    v_lshl_add_u32 v3, v4, 1, v3")
    for j in range(8): a(f"    buffer_load_ushort v{8+j}, v3, s[16:19], 0 offen offset:{j*256}")
    srd(a, 20, 8, WS_USED)
    a("    v_lshlrev_b32 v1, 4, v1")
    a(f"    s_mov_b32 s24, {WS_FR}")
    a("    s_waitcnt vmcnt(0)")
    for j in range(8): a(f"    v_lshlrev_b32 v{8+j}, 16, v{8+j}")
    for j in range(8): a(f"    v_mul_f32 v{8+j}, s14, v{8+j}")
    for j in range(4): a(f"    v_cvt_pk_bf16_f32 v{16+j}, v{8+2*j}, v{9+2*j}")
    a(f"    buffer_store_dwordx4 v[16:19], v1, s[20:23], s24 offen{fl}")
    k1_end()
    a.label("K1_gemm")
    a("    s_load_dwordx2 s[4:5], s[0:1], 40")
    a("    s_load_dwordx2 s[8:9], s[0:1], 0")
    a("    s_load_dwordx2 s[16:17], s[0:1], 80")
    a("    v_and_b32 v1, 63, v0")
    a("    v_lshrrev_b32 v2, 6, v0")
    a(f"    s_sub_u32 s20, s2, {W_GEMM}")
    a("    v_readfirstlane_b32 s21, v2")
    a("    s_lshl_b32 s20, s20, 7")
    a("    v_lshlrev_b32 v3, 4, v1")
    a("    s_lshl_b32 s22, s21, 11")
    a(f"    s_add_u32 s23, s22, {128*256}")
    a("    s_mov_b32 s6, " + str(273 * 256) + "\n    s_mov_b32 s7, 0x00020000")
    a("    v_lshrrev_b32 v4, 4, v1")
    a("    v_and_b32 v5, 15, v1\n    v_xor_b32 v5, v5, v4\n    v_lshlrev_b32 v7, 4, v5")
    a("    s_lshl_b32 s24, s21, 3\n    s_add_u32 s24, s24, s20")
    a("    v_add_u32 v6, s24, v4")
    a("    v_add_u32 v8, 4, v6\n    v_mov_b32 v9, v7")
    a(f"    s_mov_b32 s10, {N}\n    s_mov_b32 s11, 0x00020000")
    a(f"    s_mul_i32 s25, s21, {2*QSTR}\n    s_add_u32 s25, s25, 32768")
    a("    s_waitcnt lgkmcnt(0)")
    a("    s_or_b32 s9, s9, 0x1000000")
    a("    s_mov_b32 m0, s25\n    s_nop 0")
    a("    buffer_load_dwordx4 v[6:7], s[8:11], 0 idxen offen lds")
    a(f"    s_add_u32 m0, s25, {QSTR}\n    s_nop 0")
    a("    buffer_load_dwordx4 v[8:9], s[8:11], 0 idxen offen lds")
    a("    s_mov_b32 m0, s22\n    s_nop 0")
    a("    buffer_load_dwordx4 v3, s[4:7], s23 offen lds")
    a("    s_add_u32 m0, s22, 1024\n    s_add_u32 s23, s23, 1024")
    a("    buffer_load_dwordx4 v3, s[4:7], s23 offen lds")
    a("    s_lshr_b32 s26, s21, 2\n    s_and_b32 s27, s21, 3")
    a("    v_lshrrev_b32 v10, 5, v1\n    v_lshlrev_b32 v10, 3, v10\n    v_bfe_u32 v11, v1, 2, 2\n    v_add_u32 v10, v10, v11\n    v_lshlrev_b32 v10, 8, v10")
    a("    v_bfe_u32 v11, v1, 4, 1\n    v_lshl_add_u32 v10, v11, 5, v10\n    v_and_b32 v11, 3, v1\n    v_lshl_add_u32 v10, v11, 3, v10")
    a("    s_lshl_b32 s28, s27, 6\n    v_add_u32 v10, s28, v10")
    a("    v_and_b32 v12, 31, v1\n    v_lshrrev_b32 v13, 2, v12\n    s_lshl_b32 s28, s26, 3\n    v_add_u32 v13, s28, v13")
    a(f"    v_mul_u32_u24 v13, {QSTR}, v13\n    v_and_b32 v14, 3, v12\n    v_lshl_add_u32 v13, v14, 8, v13\n    v_add_u32 v13, 32768, v13")
    a("    v_lshrrev_b32 v15, 5, v1\n    v_xor_b32 v15, v15, v14\n    v_lshl_add_u32 v16, v15, 4, v13\n    v_xor_b32 v15, 2, v15\n    v_lshl_add_u32 v17, v15, 4, v13")
    a("    s_lshl_b32 s28, s26, 5\n    s_add_u32 s28, s28, s20\n    v_add_u32 v18, s28, v12\n    v_lshlrev_b32 v18, 8, v18")
    a("    v_lshrrev_b32 v15, 5, v1\n    v_lshl_add_u32 v18, v15, 4, v18\n    s_lshl_b32 s28, s27, 6\n    v_add_u32 v18, s28, v18")
    a(f"    s_add_u32 s16, s16, {WS_B}\n    s_addc_u32 s17, s17, 0\n    s_mov_b32 s18, {N*256}\n    s_mov_b32 s19, 0x00020000")
    a("    s_waitcnt vmcnt(0)")
    a("    s_barrier")
    stamp(a, cfg, 63, 1, 34)
    AW, BH, DD = 20, 36, 44
    for half in range(2):
        for u in range(4):
            s_ = half * 4 + u
            a(f"    ds_read_b64_tr_b16 v[{AW+4*u}:{AW+4*u+1}], v10 offset:{s_ * 4096}")
            a(f"    ds_read_b64_tr_b16 v[{AW+4*u+2}:{AW+4*u+3}], v10 offset:{s_ * 4096 + 1024}")
        for pr in range(2):
            for u in range(2):
                s_ = half * 4 + pr * 2 + u
                ad = 16 if s_ % 2 == 0 else 17
                a(f"    ds_read_b128 v[{BH+4*u}:{BH+4*u+3}], v{ad} offset:{(s_ >> 1) * 64}")
            a("    s_waitcnt lgkmcnt(0)")
            for u in range(2):
                s_ = half * 4 + pr * 2 + u
                c_ = "0" if s_ == 0 else f"v[{DD}:{DD+15}]"
                a(f"    v_mfma_f32_32x32x16_bf16 v[{DD}:{DD+15}], v[{AW+4*(pr*2+u)}:{AW+4*(pr*2+u)+3}], v[{BH+4*u}:{BH+4*u+3}], {c_}")
    a(f"    s_mov_b32 s28, {hex(f32bits(-LOG2E))}")
    a("    s_nop 7\n    s_nop 3")
    for r in range(16): a(f"    v_mul_f32 v{DD+r}, s28, v{DD+r}")
    for j in range(8): a(f"    v_cvt_pk_bf16_f32 v{20+j}, v{DD+2*j}, v{DD+2*j+1}")
    a("    s_nop 1")
    a("    v_permlane32_swap_b32 v20, v22\n    v_permlane32_swap_b32 v21, v23\n    v_permlane32_swap_b32 v24, v26\n    v_permlane32_swap_b32 v25, v27")
    if cfg.gemm_lds:
        a("    s_barrier")
        a("    s_lshl_b32 s28, s26, 5\n    v_add_u32 v30, s28, v12")
        a("    v_lshrrev_b32 v31, 5, v1\n    s_lshl_b32 s28, s27, 2\n    v_add_u32 v31, s28, v31")
        a("    v_and_b32 v32, 15, v30\n    v_xor_b32 v33, v31, v32\n    v_lshlrev_b32 v33, 4, v33\n    v_lshl_add_u32 v33, v30, 8, v33")
        a("    v_add_u32 v31, 2, v31\n    v_xor_b32 v34, v31, v32\n    v_lshlrev_b32 v34, 4, v34\n    v_lshl_add_u32 v34, v30, 8, v34")
        a("    ds_write_b128 v33, v[20:23]\n    ds_write_b128 v34, v[24:27]")
        a("    s_waitcnt lgkmcnt(0)\n    s_barrier")
        a("    v_lshrrev_b32 v30, 4, v1\n    s_lshl_b32 s28, s21, 3\n    v_add_u32 v30, s28, v30")
        a("    v_and_b32 v31, 15, v1\n    v_and_b32 v32, 15, v30\n    v_xor_b32 v32, v31, v32\n    v_lshlrev_b32 v32, 4, v32\n    v_lshl_add_u32 v32, v30, 8, v32")
        a("    v_add_u32 v33, 4, v30\n    v_and_b32 v34, 15, v33\n    v_xor_b32 v34, v31, v34\n    v_lshlrev_b32 v34, 4, v34\n    v_lshl_add_u32 v34, v33, 8, v34")
        a("    ds_read_b128 v[20:23], v32\n    ds_read_b128 v[24:27], v34")
        a("    v_add_u32 v30, s20, v30\n    v_lshlrev_b32 v30, 8, v30\n    v_lshl_add_u32 v30, v31, 4, v30")
        a("    s_waitcnt lgkmcnt(1)")
        a(f"    buffer_store_dwordx4 v[20:23], v30, s[16:19], 0 offen{fl}")
        a("    s_waitcnt lgkmcnt(0)")
        a(f"    buffer_store_dwordx4 v[24:27], v30, s[16:19], 0 offen offset:1024{fl}")
    else:
        a("    s_nop 1")
        a(f"    buffer_store_dwordx4 v[20:23], v18, s[16:19], 0 offen{fl}")
        a(f"    buffer_store_dwordx4 v[24:27], v18, s[16:19], 0 offen offset:32{fl}")
    k1_end()
    a.label("K1_pref")
    if cfg.tlb:
        a("    v_readfirstlane_b32 s40, v0")
        a("    s_cmp_ge_u32 s40, 64")
        a("    s_cbranch_scc1 K1_notlb")
        a("    s_load_dwordx16 s[44:59], s[0:1], 0")
        a("    s_load_dwordx2 s[60:61], s[0:1], 64")
        a("    s_load_dwordx2 s[62:63], s[0:1], 80")
        a("    s_waitcnt lgkmcnt(0)")
        pages = [(44, 0), (44, 2), (46, 0), (48, 0), (48, 2), (48, 4), (50, 0), (52, 0), (54, 0), (56, 0), (58, 0), (60, 0), (60, 2), (62, 0), (62, 2), (62, 4)]
        a("    v_mov_b32 v40, s44\n    v_mov_b32 v41, s45")
        for i, (p, mb) in enumerate(pages):
            a(f"    s_add_u32 s64, s{p}, {mb << 20}\n    s_addc_u32 s65, s{p+1}, 0")
            a(f"    v_writelane_b32 v40, s64, {i}\n    v_writelane_b32 v41, s65, {i}")
        a("    s_mov_b64 exec, 0xffff")
        a("    global_load_dword v42, v[40:41], off")
        a("    s_mov_b64 exec, -1")
        a.label("K1_notlb")
    a("    s_load_dwordx2 s[6:7], s[0:1], 16")
    a("    v_lshlrev_b32 v1, 7, v0")
    a(f"    s_sub_u32 s12, s2, {W_PREF}")
    npf = cfg.g1 - W_PREF
    per = (40000 + npf - 1) // npf
    a(f"    s_mul_i32 s12, s12, {per * 128}")
    a("    s_waitcnt lgkmcnt(0)")
    srd(a, 20, 6, E * 32)
    if cfg.pf_ea:
        a(f"    v_cmp_gt_u32 vcc, {per}, v0")
        a("    s_and_saveexec_b64 s[28:29], vcc")
        a("    s_cbranch_execz K1_pf2")
        a("    buffer_load_dword v3, v1, s[20:23], s12 offen")
        a.label("K1_pf2")
        a("    s_mov_b64 exec, s[28:29]")
    if cfg.pf_code:
        a(f"    s_cmp_lt_u32 s2, {cfg.g1 - 8}")
        a("    s_cbranch_scc1 K1_pfend")
        a("    s_getpc_b64 s[24:25]")
        a.label("K1_pc")
        a("    s_add_u32 s24, s24, k2_kernel-K1_pc")
        a("    s_addc_u32 s25, s25, 0")
        a("    v_cmp_gt_u32 vcc, (K2_end-k2_kernel+127)/128, v0")
        a("    s_and_saveexec_b64 s[28:29], vcc")
        a("    s_cbranch_execz K1_pfend")
        a("    global_load_dword v4, v1, s[24:25]")
    a.label("K1_pfend")
    k1_end()
    a.label("K1_done")
    a("    s_endpgm")

def gen_k2(a, cfg):
    V = Regs("v", 1, 256)
    W4F = V.alloc("W4F", 4, 4); IDN = V.alloc("IDN", 8, 4); X = V.alloc("X", 12, 4); XC = V.alloc("XC", 4, 4)
    D = [V.alloc("D0", 16, 4), V.alloc("D1", 16, 4)]
    DP = V.alloc("DP", 48, 4); DPC = V.alloc("DPC", 16, 4); HP = V.alloc("HP", 12, 4)
    BF = V.alloc("BF", 8, 4); EFB = [V.alloc("EF0", 4, 4), V.alloc("EF1", 4, 4)]; AF = V.alloc("AF", 4, 4)
    TR = V.alloc("TR", 8, 4); M = V.alloc("M", 8, 4); T = V.alloc("T", 16, 4)
    WHH = V.alloc("WHH", 16, 4); WX = V.alloc("WX", 8, 4); RES = V.alloc("RES", 6, 2); POSO = V.alloc("POSO"); OUTA = V.alloc("OUTA")
    iH0 = V.alloc("iH0", 2, 2); iH1 = V.alloc("iH1", 2, 2); iE = V.alloc("iE", 2, 2)
    cBF = V.alloc("cBF"); cHB = V.alloc("cHB")
    aA2 = V.alloc("aA2"); aA3 = V.alloc("aA3"); aRH = V.alloc("aRH"); aRE = V.alloc("aRE"); aBF = V.alloc("aBF")
    vL = V.alloc("vL")
    A0 = V.alloc("A0", 1, 2); A1 = V.alloc("A1"); A2_ = V.alloc("A2"); A3_ = V.alloc("A3"); A4 = V.alloc("A4"); A5 = V.alloc("A5")
    vST = V.alloc("vST") if cfg.dbg else None
    nv = V.hi
    sStg = 3
    sB, sEA, sPOS, sWS, sOUT, sMI = 8, 12, 16, 20, 24, 28
    sW, sSet, sC, sB40 = 32, 33, 34, 35
    sCnt = 36
    sTs, sTf, sI = 42, 43, 45
    sBx, sBx2, sKx = 46, 47, 48
    sBd, sBd2, sKd = 49, 50, 51
    sRingR, sRingW, sStgEnd = 52, 53, 54
    sRem, sRem1, sRem2 = 55, 56, 57
    sMode, sWin, sFirst = 58, 59, 60
    t0, t1, t2, t3, t4, t5 = 61, 62, 63, 64, 65, 66
    sPK, sRet, sWoff, sDPI = 67, 69, 71, 74
    sH = 76
    sX = 4
    l = vL
    st = lambda i: stamp(a, cfg, vST, i)
    def mfma(dst, A, B, C):
        c_ = "0" if C is None else f"v[{C}:{C+15}]"
        return f"    v_mfma_f32_32x32x16_bf16 v[{dst}:{dst+15}], v[{A}:{A+3}], v[{B}:{B+3}], {c_}"

    a(".globl k2_kernel\n.p2align 8\n.type k2_kernel,@function\nk2_kernel:")
    a(f"    s_cmp_ge_u32 s2, {NB}")
    a("    s_cbranch_scc1 K2_done")
    st(0)
    a(f"    s_load_dwordx2 s[{sWS}:{sWS+1}], s[0:1], 80")
    a(f"    s_load_dwordx2 s[{sH}:{sH+1}], s[0:1], 0")
    a(f"    s_load_dwordx2 s[{sPOS}:{sPOS+1}], s[0:1], 8")
    a(f"    s_load_dwordx2 s[{sMI}:{sMI+1}], s[0:1], 40")
    a(f"    s_load_dwordx2 s[{sEA}:{sEA+1}], s[0:1], 16")
    a(f"    s_load_dwordx2 s[{sOUT}:{sOUT+1}], s[0:1], 64")
    a(f"    s_load_dwordx2 s[72:73], s[0:1], 48")
    a(f"    v_and_b32 v{l}, 63, v0")
    a(f"    v_lshrrev_b32 v{A0}, 6, v0")
    a(f"    v_lshlrev_b32 v{A1}, 4, v0")
    a(f"    v_readfirstlane_b32 s{sW}, v{A0}")
    a(f"    s_mul_i32 s{sB40}, s2, 40")
    a(f"    s_lshl_b32 s{t0}, s2, 13")
    a(f"    s_mov_b32 s{sWS+2}, {WS_USED}\n    s_mov_b32 s{sWS+3}, 0x00020000")
    a(f"    s_mov_b32 s{sH+2}, {N}\n    s_mov_b32 s{sH+3}, 0x00020000")
    a(f"    s_mov_b32 s{sPOS+2}, {N*6+4}\n    s_mov_b32 s{sPOS+3}, 0x00020000")
    a(f"    s_lshr_b32 s{sSet}, s{sW}, 2")
    a(f"    s_and_b32 s{sC}, s{sW}, 3")
    a(f"    v_lshrrev_b32 v{A0}, 4, v{l}")
    a(f"    v_and_b32 v{A2_}, 15, v{l}")
    a(f"    v_xor_b32 v{A2_}, v{A2_}, v{A0}")
    HP0, HP1 = D[0], D[0] + 2
    a(f"    v_lshlrev_b32 v{HP0+1}, 4, v{A2_}")
    a(f"    v_mov_b32 v{HP1+1}, v{HP0+1}")
    a(f"    s_lshl_b32 s{t1}, s{sW}, 3")
    a(f"    s_add_u32 s{t1}, s{t1}, s{sB40}")
    a(f"    v_add_u32 v{HP0}, s{t1}, v{A0}")
    a(f"    v_add_u32 v{HP1}, 4, v{HP0}")
    a(f"    s_mul_i32 s{t2}, s{sW}, {2*QSTR}")
    a(f"    s_add_u32 s{t2}, s{t2}, {HOWN}")
    a(f"    v_lshlrev_b32 v{A3_}, 4, v{l}")
    a(f"    s_lshl_b32 s{sWoff}, s{sC}, 10")
    a(f"    s_add_u32 s{sWoff}, s{sWoff}, {WS_FR}")
    a(f"    v_mul_u32_u24 v{A4}, 6, v0")
    a(f"    s_mul_i32 s{t4}, s2, 240")
    a(f"    s_waitcnt lgkmcnt(0)")
    st(1)
    RR = TR; SL = TR + 4; GG = T; PSRC = DPC; OWNP = T + 4; PDST = DPC + 8
    W1F = DP
    WHL = D[1]
    a(f"    buffer_load_dwordx4 v[{RR}:{RR+3}], v{A1}, s[{sWS}:{sWS+3}], s{t0} offen      ; cells")
    a(f"    s_or_b32 s{sH+1}, s{sH+1}, 0x1000000")
    a(f"    s_mov_b32 m0, s{t2}")
    a(f"    s_add_u32 s{t2}, s{t2}, {QSTR}")
    a(f"    buffer_load_dwordx4 v[{HP0}:{HP0+1}], s[{sH}:{sH+3}], 0 idxen offen lds")
    a(f"    s_mov_b32 m0, s{t2}")
    a(f"    v_add_u32 v{A1}, {ZSTART}, v{A1}")
    a(f"    buffer_load_dwordx4 v[{HP1}:{HP1+1}], s[{sH}:{sH+3}], 0 idxen offen lds")
    a(f"    buffer_load_dwordx2 v[{OWNP}:{OWNP+1}], v{A4}, s[{sPOS}:{sPOS+3}], s{t4} offen")
    Z = M
    for r in range(4): a(f"    v_mov_b32 v{Z+r}, 0")
    loads = []
    for q in range(8):
        loads.append([f"buffer_load_dwordx4 v[{W1F+4*q}:{W1F+4*q+3}], v{A3_}, s[{sWS}:{sWS+3}], s{sWoff} offen", f"s_add_u32 s{sWoff}, s{sWoff}, 4096"])
    loads.append([f"s_lshl_b32 s{t1}, s{sW}, 13", f"s_add_u32 s{t1}, s{t1}, {WHF_OFF}", f"buffer_load_dwordx4 v[{WHL}:{WHL+3}], v{A3_}, s[{sWS}:{sWS+3}], s{t1} offen"])
    for s_ in range(1, 4):
        loads.append([f"buffer_load_dwordx4 v[{WHL+4*s_}:{WHL+4*s_+3}], v{A3_}, s[{sWS}:{sWS+3}], s{t1} offen offset:{1024*s_}"])
    zf = []
    for r in range(NZ):
        if r == 8: zf.append([f"v_add_u32 v{A1}, 65536, v{A1}", f"ds_write_b128 v{A1}, v[{Z}:{Z+3}]"])
        else: zf.append([f"ds_write_b128 v{A1}, v[{Z}:{Z+3}] offset:{(r % 8) * 8192}"])
    c = []
    e_, h_ = A0, A2_
    c += [f"v_and_b32 v{e_}, 31, v{l}", f"v_lshrrev_b32 v{h_}, 5, v{l}"]
    c += [f"v_mul_u32_u24 v{A5}, {A2H - A2L}, v{h_}", f"v_lshl_add_u32 v{aA2}, v{e_}, 4, v{A5}", f"v_add_u32 v{aA2}, {A2L}, v{aA2}"]
    c += [f"v_lshlrev_b32 v{aA3}, 8, v{h_}", f"v_bfe_u32 v{A5}, v{l}, 4, 1", f"v_lshl_add_u32 v{aA3}, v{A5}, 5, v{aA3}", f"v_bfe_u32 v{A5}, v{l}, 2, 2",
          f"v_lshl_add_u32 v{aA3}, v{A5}, 6, v{aA3}", f"v_and_b32 v{A5}, 3, v{l}", f"v_lshl_add_u32 v{aA3}, v{A5}, 3, v{aA3}"]
    c += [f"v_lshl_add_u32 v{cBF}, v{h_}, 8, v{aA3}", f"v_add_u32 v{aA3}, {A3T}, v{aA3}"]
    c += [f"v_lshrrev_b32 v{A5}, 2, v{l}", f"v_lshlrev_b32 v{A5}, 3, v{A5}", f"v_add_u32 v{aRH}, {REC}, v{A5}",
          f"v_lshlrev_b32 v{A5}, 3, v{e_}", f"v_add_u32 v{aRE}, {REC}, v{A5}"]
    c += [f"v_and_b32 v{A5}, 3, v{l}", f"v_lshlrev_b32 v{A5}, 4, v{A5}", f"s_lshl_b32 s{t2}, s{sC}, 6", f"v_add_u32 v{iH0+1}, s{t2}, v{A5}", f"v_mov_b32 v{iH1+1}, v{iH0+1}",
          f"v_lshlrev_b32 v{iE+1}, 4, v{h_}"]
    c += [f"v_bfe_u32 v{A5}, v{l}, 2, 2", f"v_mul_u32_u24 v{cHB}, {QSTR}, v{A5}", f"v_and_b32 v{A5}, 3, v{l}", f"v_lshl_add_u32 v{cHB}, v{A5}, 8, v{cHB}",
          f"v_lshrrev_b32 v{A4}, 4, v{l}", f"v_xor_b32 v{A5}, v{A5}, v{A4}", f"v_lshl_add_u32 v{cHB}, v{A5}, 4, v{cHB}", f"v_add_u32 v{cHB}, {HOWN}, v{cHB}"]
    c += [f"v_and_b32 v{A5}, 1, v{e_}", f"v_lshlrev_b32 v{A5}, 4, v{A5}", f"v_mov_b32 v{A4}, 0x3f80", f"v_lshlrev_b32 v{A4}, v{A5}, v{A4}"]
    c += [f"v_bfe_u32 v{A5}, v{e_}, 1, 2", f"v_lshrrev_b32 v{IDN+7}, 4, v{e_}", f"v_lshl_add_u32 v{A5}, v{IDN+7}, 2, v{A5}", f"v_bfe_u32 v{IDN+7}, v{e_}, 3, 1",
          f"v_cmp_eq_u32 vcc, v{IDN+7}, v{h_}", f"s_nop 1", f"v_cndmask_b32 v{A5}, 15, v{A5}, vcc"]
    for q in range(8):
        c += [f"v_cmp_eq_u32 vcc, {q}, v{A5}", f"s_nop 1", f"v_cndmask_b32 v{IDN+q}, 0, v{A4}, vcc"]
    c += [f"s_add_u32 s{sB}, s{sWS}, {WS_B}", f"s_addc_u32 s{sB+1}, s{sWS+1}, 0", f"s_or_b32 s{sB+1}, s{sB+1}, 0x1000000", f"s_mov_b32 s{sB+2}, {N}", f"s_mov_b32 s{sB+3}, 0x00020000",
          f"s_mov_b32 s{sMI+2}, {273*256}", f"s_mov_b32 s{sMI+3}, 0x00020000", f"s_or_b32 s{sEA+1}, s{sEA+1}, 0x200000", f"s_mov_b32 s{sEA+2}, {E}", f"s_mov_b32 s{sEA+3}, 0x00020000",
          f"s_mov_b32 s{sOUT+2}, {N*256+N*6}", f"s_mov_b32 s{sOUT+3}, 0x00020000",
          f"s_mul_i32 s{sStg}, s{sW}, {NR*SSTR}", f"s_add_u32 s{sStgEnd}, s{sStg}, {NR*SSTR}", f"s_mov_b32 s{sMode}, 0", f"s_mov_b32 s{sFirst}, 1", f"s_mov_b32 s{sDPI}, 0"]
    c += [f"v_and_b32 v{A4}, 31, v{l}", f"s_lshl_b32 s{t2}, s{sC}, 5", f"v_add_u32 v{A4}, s{t2}, v{A4}", f"v_lshlrev_b32 v{A4}, 1, v{A4}"]
    ci = 0
    per = (len(c) + len(loads) - 1) // len(loads)
    for k in range(len(loads)):
        for ins in loads[k]:
            if cfg.ab_now and ins.startswith("buffer_load"): ins = "s_nop 0"
            a("    " + ins)
        if k < len(zf) and not cfg.ab_noz:
            for ins in zf[k]: a("    " + ins)
        for ins in c[ci:ci + per]: a("    " + ins)
        ci += per
    for ins in c[ci:]: a("    " + ins)
    WD = XC + 3
    a(f"    s_mov_b32 s{t2}, {256*256}")
    a(f"    buffer_load_ushort v{WD}, v{A4}, s[{sMI}:{sMI+3}], s{t2} offen")
    n0 = 2 + 1 + (0 if cfg.ab_now else 12) + 1
    if cfg.pf_b:
        a(f"    s_lshr_b32 s{t2}, s2, 3")
        a(f"    s_mul_i32 s{t2}, s{t2}, {646*128}")
        a(f"    s_add_u32 s{t2}, s{t2}, {WS_B}")
        a(f"    v_lshlrev_b32 v{A4}, 7, v0")
        a(f"    buffer_load_dword v{T+8}, v{A4}, s[{sWS}:{sWS+3}], s{t2} offen")
        a(f"    v_cmp_gt_u32 vcc, {646-512}, v0")
        a(f"    v_add_u32 v{A4}, 65536, v{A4}")
        a(f"    v_bfrev_b32 v{A5}, -2")
        a(f"    v_cndmask_b32 v{A4}, v{A5}, v{A4}, vcc")
        a(f"    buffer_load_dword v{T+9}, v{A4}, s[{sWS}:{sWS+3}], s{t2} offen")
        n0 += 2
    npf = 2 if cfg.pf_b else 0
    a(f"    s_waitcnt lgkmcnt(0)")
    a(f"    s_barrier")
    st(2)
    a(f"    s_branch K2_fast")
    a.label("K2_zero")
    for r in range(4): a(f"    v_mov_b32 v{Z+r}, 0")
    a(f"    v_lshlrev_b32 v{A1}, 4, v0")
    a(f"    v_add_u32 v{A1}, {ZSTART}, v{A1}")
    for r in range(NZ):
        if r == 8: a(f"    v_add_u32 v{A1}, 65536, v{A1}")
        a(f"    ds_write_b128 v{A1}, v[{Z}:{Z+3}] offset:{(r % 8) * 8192}")
    a(f"    s_waitcnt lgkmcnt(0)")
    a(f"    s_barrier")
    vCB = A5
    a(f"    s_mul_i32 s{t0}, s{sWin}, {WIN}")
    a(f"    s_add_u32 s{sWin}, s{sWin}, 1")
    a(f"    v_add_u32 v{vCB}, s{t0}, v0")
    a(f"    v_lshlrev_b32 v{A0}, 2, v{vCB}")
    a(f"    s_load_dwordx2 s[{sMI}:{sMI+1}], s[0:1], 24")
    a(f"    s_mov_b32 s{sMI+2}, {E*4}")
    a(f"    s_waitcnt lgkmcnt(0)")
    a(f"    buffer_load_dword v{RR+1}, v{A0}, s[{sMI}:{sMI+3}], 0 offen")
    a(f"    s_waitcnt vmcnt(0)")
    a(f"    s_load_dwordx2 s[{sMI}:{sMI+1}], s[0:1], 32")
    a(f"    s_waitcnt lgkmcnt(0)")
    a(f"    buffer_load_dword v{RR+2}, v{A0}, s[{sMI}:{sMI+3}], 0 offen")
    a(f"    s_waitcnt vmcnt(0)")
    a(f"    v_subrev_u32 v{RR+2}, s{sB40}, v{RR+2}")
    a(f"    v_lshl_or_b32 v{RR}, v{RR+2}, 14, v{RR+1}")
    a(f"    v_cmp_gt_u32 vcc, 40, v{RR+2}")
    a(f"    s_movk_i32 s{t0}, {WIN}")
    a(f"    v_cmp_gt_u32 s[{sX}:{sX+1}], s{t0}, v0")
    a(f"    s_and_b64 vcc, vcc, s[{sX}:{sX+1}]")
    a(f"    s_mov_b32 s{t0}, {E}")
    a(f"    v_cmp_gt_u32 s[{sX}:{sX+1}], s{t0}, v{vCB}")
    a(f"    s_and_b64 vcc, vcc, s[{sX}:{sX+1}]")
    a(f"    s_nop 1")
    a(f"    v_cndmask_b32 v{RR}, -1, v{RR}, vcc")
    a(f"    v_mov_b32 v{RR+1}, -1\n    v_mov_b32 v{RR+2}, -1\n    v_mov_b32 v{RR+3}, -1")
    a(f"    s_branch K2_rank")
    a.label("K2_fast")
    a(f"    v_lshrrev_b32 v{vCB}, 3, v0")
    a(f"    v_mul_u32_u24 v{vCB}, {CH}, v{vCB}")
    a(f"    s_waitcnt vmcnt({n0})")
    st(3)
    a(f"    v_cmp_eq_u32 vcc, -2, v{RR}")
    a(f"    s_cbranch_vccnz K2_mark")
    a.label("K2_rank")
    a(f"    v_mov_b32 v{A0}, 1")
    a(f"    v_bfrev_b32 v{A4}, -2")
    ex = []
    ex.append([f"v_lshlrev_b32 v{A3_}, 4, v{l}", f"s_lshl_b32 s{sWoff}, s{sC}, 10", f"s_add_u32 s{sWoff}, s{sWoff}, {WS_FR + 16*4096}",
               f"buffer_load_dwordx4 v[{W4F}:{W4F+3}], v{A3_}, s[{sWS}:{sWS+3}], s{sWoff} offen"])
    ex.append([f"s_lshl_b32 s{sWoff}, s{sW}, 13", f"s_add_u32 s{sWoff}, s{sWoff}, {WHF_OFF + 4096}"] +
              [f"buffer_load_dwordx4 v[{WHH+4*s_}:{WHH+4*s_+3}], v{A3_}, s[{sWS}:{sWS+3}], s{sWoff} offen offset:{1024*s_}" for s_ in range(4)])
    ex.append([f"s_mov_b32 s74, 256" if False else "s_nop 0",
               f"s_mov_b32 s84, s72", f"s_mov_b32 s85, s73", f"s_mov_b32 s86, 256", f"s_mov_b32 s87, 0x00020000",
               f"v_lshrrev_b32 v{A3_}, 5, v{l}", f"v_lshlrev_b32 v{A3_}, 3, v{A3_}", f"s_lshl_b32 s{sWoff}, s{sC}, 6"] +
              [f"buffer_load_dwordx2 v[{WX+4*s_+2*u}:{WX+4*s_+2*u+1}], v{A3_}, s[84:87], s{sWoff} offen offset:{32*s_+16*u}" for s_ in range(2) for u in range(2)])
    ex.append([f"s_mov_b32 s80, s{sH}", f"s_and_b32 s81, s{sH+1}, 0xffff", f"s_mov_b32 s82, {N*256}", f"s_mov_b32 s83, 0x00020000",
               f"v_and_b32 v{A2_}, 15, v{l}", f"v_add_u32 v{A2_}, s{sB40}, v{A2_}", f"v_lshlrev_b32 v{A2_}, 8, v{A2_}", f"v_lshrrev_b32 v{A3_}, 4, v{l}",
               f"v_lshl_add_u32 v{A2_}, v{A3_}, 3, v{A2_}", f"s_lshl_b32 s{sWoff}, s{sW}, 5", f"v_add_u32 v{OUTA}, s{sWoff}, v{A2_}",
               f"s_movk_i32 s{t2}, 0x1000", f"s_movk_i32 s{t3}, 0x2000",
               f"buffer_load_dwordx2 v[{RES}:{RES+1}], v{OUTA}, s[80:83], 0 offen", f"buffer_load_dwordx2 v[{RES+2}:{RES+3}], v{OUTA}, s[80:83], s{t2} offen",
               f"buffer_load_dwordx2 v[{RES+4}:{RES+5}], v{OUTA}, s[80:83], s{t3} offen",
               f"s_mul_i32 s{sWoff}, s2, 240", f"v_lshlrev_b32 v{A3_}, 1, v0", f"buffer_load_ushort v{POSO}, v{A3_}, s[{sPOS}:{sPOS+3}], s{sWoff} offen"])
    for j in range(4):
        r = RR + j
        a(f"    v_cmp_gt_u32 vcc, -2, v{r}")
        a(f"    v_and_b32 v{A1}, 0x3fff, v{r}")
        a(f"    v_mul_u32_u24 v{A1}, 6, v{A1}")
        a(f"    v_bfe_u32 v{GG+j}, v{r}, 17, 3")
        a(f"    v_cndmask_b32 v{A1}, v{A4}, v{A1}, vcc")
        a(f"    s_and_saveexec_b64 s[{sX}:{sX+1}], vcc")
        a(f"    v_lshlrev_b32 v{A2_}, 2, v{GG+j}")
        a(f"    v_add_u32 v{A2_}, {CNT}, v{A2_}")
        a(f"    ds_add_rtn_u32 v{SL+j}, v{A2_}, v{A0}")
        a(f"    s_mov_b64 exec, s[{sX}:{sX+1}]")
        a(f"    buffer_load_dwordx2 v[{PSRC+2*j}:{PSRC+2*j+1}], v{A1}, s[{sPOS}:{sPOS+3}], 0 offen")
    for grp in ex:
        for ins in grp:
            if cfg.ab_notail and ins.startswith("buffer_load"): ins = "s_nop 0"
            a("    " + ins)
    n1 = 4 + (0 if cfg.ab_notail else 13)
    a(f"    s_cmp_eq_u32 s{sFirst}, 0")
    a(f"    s_cbranch_scc1 K2_noown")
    a(f"    s_waitcnt vmcnt({n1 + (1 if cfg.ab_now else 13) + npf})")
    a(f"    v_cmp_gt_u32 vcc, 48, v0")
    a(f"    s_and_saveexec_b64 s[{sX}:{sX+1}], vcc")
    a(f"    v_lshlrev_b32 v{A1}, 3, v0")
    a(f"    v_add_u32 v{A1}, {POSD}, v{A1}")
    a(f"    ds_write_b64 v{A1}, v[{OWNP}:{OWNP+1}]")
    a(f"    s_mov_b64 exec, s[{sX}:{sX+1}]")
    a.label("K2_noown")
    a(f"    s_waitcnt lgkmcnt(0)")
    a(f"    s_barrier")
    st(4)
    a(f"    v_mov_b32 v{A1}, {CNT}")
    a(f"    ds_read_b128 v[{M}:{M+3}], v{A1}")
    a(f"    ds_read_b64 v[{M+4}:{M+5}], v{A1} offset:16")
    for j in range(4):
        a(f"    v_bfe_u32 v{A2_}, v{RR+j}, 14, 6")
        a(f"    v_lshlrev_b32 v{A2_}, 3, v{A2_}")
        a(f"    v_add_u32 v{A2_}, {POSD}, v{A2_}")
        a(f"    ds_read_b64 v[{PDST+2*j}:{PDST+2*j+1}], v{A2_}")
    a(f"    s_waitcnt lgkmcnt(4)")
    for g in range(6): a(f"    v_readfirstlane_b32 s{sCnt+g}, v{M+g}")
    nt = [t0, t1, t2, t3, t4]
    for g in range(5):
        a(f"    s_add_u32 s{nt[g]}, s{sCnt+g}, 31")
        a(f"    s_lshr_b32 s{nt[g]}, s{nt[g]}, 5")
    a(f"    s_add_u32 s4, s{t0}, s{t1}")
    a(f"    s_add_u32 s5, s4, s{t2}")
    a(f"    s_add_u32 s6, s5, s{t3}")
    a(f"    s_add_u32 s7, s6, s{t4}")
    a(f"    s_cmp_gt_u32 s7, {MAXT}")
    a(f"    s_cselect_b32 s{t5}, 1, 0")
    a(f"    s_or_b32 s{t5}, s{t5}, s{sCnt+5}")
    a(f"    s_cmp_lg_u32 s{t5}, 0")
    a(f"    s_cbranch_scc1 K2_toslow")
    a(f"    s_lshl_b32 s{sPK}, s{t0}, 5")
    a(f"    s_lshl_b32 s{t5}, s4, 10\n    s_or_b32 s{sPK}, s{sPK}, s{t5}")
    a(f"    s_lshl_b32 s{t5}, s5, 15\n    s_or_b32 s{sPK}, s{sPK}, s{t5}")
    a(f"    s_lshl_b32 s{t5}, s6, 20\n    s_or_b32 s{sPK}, s{sPK}, s{t5}")
    for j in range(4):
        r = RR + j
        a(f"    v_cmp_gt_u32 vcc, -2, v{r}")
        a(f"    s_and_saveexec_b64 s[84:85], vcc")
        a(f"    s_cbranch_execz K2_rw{j}")
        a(f"    v_mul_u32_u24 v{A0}, 5, v{GG+j}")
        a(f"    v_bfe_u32 v{A0}, s{sPK}, v{A0}, 5")
        a(f"    v_lshl_add_u32 v{SL+j}, v{A0}, 5, v{SL+j}")
        a(f"    v_lshlrev_b32 v{A0}, 3, v{SL+j}")
        a(f"    v_and_b32 v{A2_}, 0x3fff, v{r}")
        a(f"    v_lshrrev_b32 v{A3_}, 20, v{r}")
        a(f"    v_add_u32 v{A3_}, v{A3_}, v{vCB}")
        a(f"    v_add_u32 v{A0}, {REC}, v{A0}")
        a(f"    ds_write_b64 v{A0}, v[{A2_}:{A3_}]")
        a.label(f"K2_rw{j}")
        a(f"    s_mov_b64 exec, s[84:85]")
    a(f"    s_add_u32 s{t5}, s7, 1")
    a(f"    s_lshr_b32 s{t5}, s{t5}, 1")
    a(f"    s_max_u32 s{t5}, s{t5}, s4")
    a(f"    s_min_u32 s{t5}, s{t5}, s5")
    a(f"    s_sub_u32 s{t3}, s7, s{t5}")
    a(f"    s_sub_u32 s{t4}, s{t5}, s4")
    a(f"    s_lshl_b32 s{t4}, s{t4}, 5")
    a(f"    s_min_u32 s{t1}, s{sCnt+2}, s{t4}")
    a(f"    s_sub_u32 s{t2}, s{sCnt+2}, s{t1}")
    a(f"    s_cmp_eq_u32 s{sSet}, 0")
    a(f"    s_cselect_b32 s{sTf}, 0, s{t5}")
    a(f"    s_cselect_b32 s{sTs}, s{t5}, s{t3}")
    a(f"    s_cselect_b32 s{sBx}, s{t0}, s5")
    a(f"    s_cselect_b32 s{sBx2}, s4, s6")
    a(f"    s_cselect_b32 s{sRem}, s{sCnt}, s{t2}")
    a(f"    s_cselect_b32 s{sRem1}, s{sCnt+1}, s{sCnt+3}")
    a(f"    s_cselect_b32 s{sRem2}, s{t1}, s{sCnt+4}")
    a(f"    s_sub_u32 s{sBx}, s{sBx}, s{sTf}")
    a(f"    s_sub_u32 s{sBx2}, s{sBx2}, s{sTf}")
    a(f"    s_mov_b32 s{sBd}, s{sBx}\n    s_mov_b32 s{sBd2}, s{sBx2}")
    a(f"    s_mov_b32 s{sKx}, 0\n    s_mov_b32 s{sKd}, 0")
    a(f"    s_cmp_eq_u32 s{sMode}, 0")
    a(f"    s_cbranch_scc0 K2_readdr")
    a.label("K2_addrok")
    a(f"    s_lshl_b32 s{t0}, s{sTf}, 9")
    a(f"    v_add_u32 v{aA2}, s{t0}, v{aA2}")
    a(f"    s_lshl_b32 s{t0}, s{sTf}, 11")
    a(f"    v_add_u32 v{aA3}, s{t0}, v{aA3}")
    a(f"    s_lshl_b32 s{t0}, s{sTf}, 8")
    a(f"    v_add_u32 v{aRH}, s{t0}, v{aRH}")
    a(f"    v_add_u32 v{aRE}, s{t0}, v{aRE}")
    a(f"    s_waitcnt lgkmcnt(0)")
    a(f"    s_barrier")
    st(5)
    PI = D[0]
    a(f"    ds_read_u16 v{PI+0}, v{aRH}")
    a(f"    ds_read_u16 v{PI+2}, v{aRH} offset:128")
    a(f"    ds_read_b32 v{PI+4}, v{aRE} offset:4")
    a(f"    ds_read_u16 v{PI+6}, v{aRH} offset:256")
    a(f"    ds_read_u16 v{PI+8}, v{aRH} offset:{256+128}")
    a(f"    ds_read_b32 v{PI+10}, v{aRE} offset:{256+4}")
    a(f"    ds_read_u16 v{iH0}, v{aRH} offset:512")
    a(f"    ds_read_u16 v{iH1}, v{aRH} offset:{512+128}")
    a(f"    ds_read_b32 v{iE}, v{aRE} offset:{512+4}")
    for p_ in (1, 3, 7, 9): a(f"    v_mov_b32 v{PI+p_}, v{iH0+1}")
    for p_ in (5, 11): a(f"    v_mov_b32 v{PI+p_}, v{iE+1}")
    def b_issue(p0, p1, ringreg):
        a(f"    s_mov_b32 m0, s{ringreg}")
        a(f"    s_add_u32 s4, s{ringreg}, 1024")
        a(f"    buffer_load_dwordx4 v[{p0}:{p0+1}], s[{sB}:{sB+3}], 0 idxen offen lds")
        a(f"    s_mov_b32 m0, s4")
        a(f"    s_nop 0")
        a(f"    buffer_load_dwordx4 v[{p1}:{p1+1}], s[{sB}:{sB+3}], 0 idxen offen lds")
    def e_issue(pair, dst):
        a(f"    buffer_load_dwordx4 v[{dst}:{dst+3}], v[{pair}:{pair+1}], s[{sEA}:{sEA+3}], 0 idxen offen")
    a(f"    s_waitcnt lgkmcnt(6)")
    b_issue(PI + 0, PI + 2, sStg)
    e_issue(PI + 4, EFB[0])
    a(f"    s_waitcnt lgkmcnt(3)")
    a(f"    s_add_u32 s{t0}, s{sStg}, {SSTR}")
    b_issue(PI + 6, PI + 8, t0)
    e_issue(PI + 10, EFB[1])
    st(6)
    a(f"    s_cmp_eq_u32 s{sFirst}, 0")
    a(f"    s_cbranch_scc1 K2_noX")
    a(f"    s_mov_b32 s{sFirst}, 0")
    a(f"    s_waitcnt vmcnt({n1 + 6 + npf})")
    a(f"    v_and_b32 v{A0}, 31, v{l}")
    a(f"    s_lshl_b32 s{t0}, s{sSet}, 4")
    a(f"    v_add_u32 v{A0}, s{t0}, v{A0}")
    a(f"    v_lshrrev_b32 v{A1}, 2, v{A0}")
    a(f"    v_mul_u32_u24 v{A1}, {QSTR}, v{A1}")
    a(f"    v_and_b32 v{A4}, 3, v{A0}")
    a(f"    v_lshl_add_u32 v{A1}, v{A4}, 8, v{A1}")
    a(f"    v_add_u32 v{A1}, {HOWN}, v{A1}")
    a(f"    v_lshrrev_b32 v{A5}, 5, v{l}")
    a(f"    v_xor_b32 v{A5}, v{A5}, v{A4}")
    a(f"    v_lshl_add_u32 v{A0}, v{A5}, 4, v{A1}")
    a(f"    v_xor_b32 v{A5}, 2, v{A5}")
    a(f"    v_lshl_add_u32 v{A1}, v{A5}, 4, v{A1}")
    XA = D[0]
    FR = T
    fr = [BF, BF + 4, AF, M]
    a(f"    s_waitcnt lgkmcnt(0)")
    for half in range(2):
        for u in range(4):
            s_ = half * 4 + u
            ad = A0 if s_ % 2 == 0 else A1
            a(f"    ds_read_b128 v[{fr[u]}:{fr[u]+3}], v{ad} offset:{(s_ >> 1) * 64}")
        for u in range(4):
            s_ = half * 4 + u
            a(f"    s_waitcnt lgkmcnt({3-u})")
            a(mfma(XA, fr[u], W1F + 4 * s_, None if s_ == 0 else XA))
    for ntile in range(3):
        for s_ in range(4):
            dst = DP + (ntile * 4 + s_) * 4
            a(f"    ds_read_b128 v[{dst}:{dst+3}], v{cHB} offset:{ntile * 4 * QSTR + 64 * s_}")
    cs = -LOG2E
    a(f"    s_mov_b32 s{t0}, {hex(f32bits(cs))}")
    a(f"    v_lshlrev_b32 v{WD}, 16, v{WD}")
    a(f"    v_mul_f32 v{WD}, s{t0}, v{WD}")
    a(f"    v_cvt_pk_bf16_f32 v{A4}, v{WD}, v{WD}")
    a(f"    v_and_b32 v{A5}, 0xffff0000, v{A4}")
    a(f"    v_sub_f32 v{A0}, v{WD}, v{A5}")
    a(f"    v_cvt_pk_bf16_f32 v{A4}, v{A5}, v{A0}")
    a(f"    v_cmp_gt_u32 vcc, 32, v{l}")
    a(f"    s_nop 1")
    a(f"    v_cndmask_b32 v{A4}, 0, v{A4}, vcc")
    for ntile in range(3):
        for s_ in range(4):
            src = DP + (ntile * 4 + s_) * 4
            a(f"    s_waitcnt lgkmcnt({11 - (ntile*4+s_)})")
            c_ = "0" if s_ == 0 else f"v[{HP+4*ntile}:{HP+4*ntile+3}]"
            a(f"    v_mfma_f32_16x16x32_bf16 v[{HP+4*ntile}:{HP+4*ntile+3}], v[{WHL+4*s_}:{WHL+4*s_+3}], v[{src}:{src+3}], {c_}")
    for j in range(3):
        b_ = XA + 4 * j
        a(f"    v_mul_f32 v{b_}, s{t0}, v{b_}\n    v_mul_f32 v{b_+1}, s{t0}, v{b_+1}\n    v_mul_f32 v{b_+2}, s{t0}, v{b_+2}\n    v_mul_f32 v{b_+3}, s{t0}, v{b_+3}")
        x = X + 4 * j
        a(f"    v_cvt_pk_bf16_f32 v{x}, v{b_}, v{b_+1}")
        a(f"    v_cvt_pk_bf16_f32 v{x+1}, v{b_+2}, v{b_+3}")
        a(f"    v_mov_b32 v{x+2}, v{A4}")
        a(f"    v_mov_b32 v{x+3}, 0")
        a(f"    s_nop 1")
        a(f"    v_permlane32_swap_b32 v{x}, v{x+2}")
        a(f"    v_permlane32_swap_b32 v{x+1}, v{x+3}")
    a.label("K2_noX")
    for r in range(4): a(f"    v_mov_b32 v{XC+r}, v{X+r}")
    st(7)
    a(f"    s_waitcnt vmcnt(6) lgkmcnt(0)")
    for j in range(4):
        r = RR + j
        ps, pd = PSRC + 2 * j, PDST + 2 * j
        a(f"    v_cmp_gt_u32 vcc, -2, v{r}")
        a(f"    s_and_saveexec_b64 s[{sX}:{sX+1}], vcc")
        a(f"    s_cbranch_execz K2_bd{j}")
        h0, h1, h2, h3 = BF, BF + 1, BF + 2, BF + 3
        a(f"    v_lshlrev_b32 v{h0}, 16, v{pd}\n    v_lshlrev_b32 v{h1}, 16, v{ps}\n    v_sub_f32 v{h0}, v{h0}, v{h1}")
        a(f"    v_and_b32 v{h1}, 0xffff0000, v{pd}\n    v_and_b32 v{h2}, 0xffff0000, v{ps}\n    v_sub_f32 v{h1}, v{h1}, v{h2}")
        a(f"    v_lshlrev_b32 v{h2}, 16, v{pd+1}\n    v_lshlrev_b32 v{h3}, 16, v{ps+1}\n    v_sub_f32 v{h2}, v{h2}, v{h3}")
        g0, g1, g2, g3 = AF, AF + 1, AF + 2, AF + 3
        a(f"    v_cvt_pk_bf16_f32 v{g0}, v{h0}, v{h1}")
        a(f"    v_cvt_pk_bf16_f32 v{g1}, v{h2}, v{h2}")
        a(f"    v_lshlrev_b32 v{h0}, 16, v{g0}\n    v_and_b32 v{h1}, 0xffff0000, v{g0}\n    v_and_b32 v{h2}, 0xffff0000, v{g1}")
        a(f"    v_mul_f32 v{h0}, v{h0}, v{h0}\n    v_mul_f32 v{h1}, v{h1}, v{h1}\n    v_mul_f32 v{h2}, v{h2}, v{h2}")
        a(f"    v_cvt_pk_bf16_f32 v{g2}, v{h0}, v{h1}\n    v_cvt_pk_bf16_f32 v{g3}, v{h2}, v{h2}")
        a(f"    v_lshlrev_b32 v{h0}, 16, v{g2}\n    v_and_b32 v{h1}, 0xffff0000, v{g2}\n    v_and_b32 v{h2}, 0xffff0000, v{g3}")
        a(f"    v_add_f32 v{h0}, v{h0}, v{h1}\n    v_add_f32 v{h0}, v{h0}, v{h2}")
        a(f"    v_cvt_pk_bf16_f32 v{g2}, v{h0}, v{h0}")
        a(f"    v_mov_b32 v{h0}, 0x3f80")
        a(f"    v_lshl_or_b32 v{h2}, v{g0}, 16, v{h0}")
        a(f"    v_alignbit_b32 v{h3}, v{g1}, v{g0}, 16")
        a(f"    v_bfe_u32 v{A1}, v{r}, 14, 3")
        a(f"    v_lshlrev_b32 v{A4}, 6, v{SL+j}")
        a(f"    v_lshl_add_u32 v{A4}, v{A1}, 3, v{A4}")
        a(f"    v_add_u32 v{A4}, {A3T}, v{A4}")
        a(f"    ds_write_b64 v{A4}, v[{h2}:{h3}]")
        a(f"    v_lshlrev_b32 v{A4}, 4, v{SL+j}")
        a(f"    v_add_u32 v{A5}, {A2H}, v{A4}")
        a(f"    ds_write_b32 v{A5}, v{g2}")
        a(f"    v_lshl_add_u32 v{A4}, v{A1}, 1, v{A4}")
        a(f"    v_add_u32 v{A4}, {A2L}, v{A4}")
        a(f"    ds_write_b16 v{A4}, v{h0}")
        a.label(f"K2_bd{j}")
        a(f"    s_mov_b64 exec, s[{sX}:{sX+1}]")
    a(f"    s_cmp_eq_u32 s{sDPI}, 1")
    a(f"    s_cbranch_scc1 K2_nodp")
    for r in range(48): a(f"    v_mov_b32 v{DP+r}, 0")
    a(f"    s_mov_b32 s{sDPI}, 1")
    a.label("K2_nodp")
    for r in range(16): a(f"    v_mov_b32 v{DPC+r}, 0")
    a(f"    s_mov_b32 s{sI}, -1")
    a(f"    s_mov_b32 s{sRingR}, s{sStg}")
    a(f"    s_add_u32 s{sRingW}, s{sStg}, {2*SSTR}")
    a(f"    v_add_u32 v{aBF}, s{sRingR}, v{cBF}")
    a(f"    v_add_u32 v{aRH}, {3*256}, v{aRH}")
    a(f"    v_add_u32 v{aRE}, {3*256}, v{aRE}")
    a(f"    v_subrev_u32 v{aA3}, 2048, v{aA3}")
    a(f"    s_waitcnt lgkmcnt(0)")
    st(8)
    a(f"    s_barrier")
    st(9)
    a(f"    s_cmp_eq_u32 s{sTs}, 0")
    a(f"    s_cbranch_scc1 K2_loopdone")

    def top(with_tr=True):
        a(f"    s_waitcnt vmcnt(3)")
        for u in range(4):
            a(f"    ds_read_b64_tr_b16 v[{BF+2*u}:{BF+2*u+1}], v{aBF} offset:{[0, 256, 1024, 1280][u]}")
        a(f"    ds_read_b128 v[{AF}:{AF+3}], v{aA2}")
        if with_tr:
            for u in range(4):
                a(f"    ds_read_b64_tr_b16 v[{TR+2*u}:{TR+2*u+1}], v{aA3} offset:{512*u}")
        b_issue(iH0, iH1, sRingW)
        a(f"    ds_read_u16 v{iH0}, v{aRH}")
        a(f"    ds_read_u16 v{iH1}, v{aRH} offset:128")
        a(f"    s_mov_b32 s{sRingW}, s{sRingR}")
        a(f"    s_add_u32 s{sRingR}, s{sRingR}, {SSTR}")
        a(f"    s_cmp_eq_u32 s{sRingR}, s{sStgEnd}")
        a(f"    s_cselect_b32 s{sRingR}, s{sStg}, s{sRingR}")
        a(f"    v_add_u32 v{aA2}, 512, v{aA2}")
        a(f"    v_add_u32 v{aA3}, 2048, v{aA3}")
        a(f"    v_add_u32 v{aRH}, 256, v{aRH}")
    def after_ef(EFc):
        e_issue(iE, EFc)
        a(f"    ds_read_b32 v{iE}, v{aRE} offset:4")
        a(f"    v_add_u32 v{aRE}, 256, v{aRE}")
        a(f"    v_add_u32 v{aBF}, s{sRingR}, v{cBF}")
    def xcheck(ret):
        a(f"    s_add_u32 s4, s{sI}, 1")
        a(f"    s_cmp_eq_u32 s4, s{sBx}")
        a(f"    s_cbranch_scc1 K2_xsw{ret}")
        a.label(f"K2_xret{ret}")
    def dcheck(ret):
        a(f"    s_cmp_eq_u32 s{sI}, s{sBd}")
        a(f"    s_cbranch_scc1 K2_dsw{ret}")
        a.label(f"K2_dret{ret}")
    def silu_h(Dc, hf, mids):
        d = Dc + 8 * hf
        for k, m_ in enumerate(mids):
            pass
        if mids[0]: mids[0]()
        for i in range(4): a(f"    v_exp_f32 v{T+i}, v{d+i}")
        if mids[1]: mids[1]()
        for i in range(4, 8): a(f"    v_exp_f32 v{T+i}, v{d+i}")
        for i in range(0, 8, 2): a(f"    v_pk_add_f32 v[{T+i}:{T+i+1}], v[{T+i}:{T+i+1}], 1.0 op_sel_hi:[1,0]")
        if mids[2]: mids[2]()
        for i in range(4): a(f"    v_rcp_f32 v{T+i}, v{T+i}")
        if mids[3]: mids[3]()
        for i in range(4, 8): a(f"    v_rcp_f32 v{T+i}, v{T+i}")
        for i in range(0, 8, 2): a(f"    v_pk_mul_f32 v[{T+8+i}:{T+8+i+1}], v[{d+i}:{d+i+1}], v[{T+i}:{T+i+1}]")
        for i in range(4): a(f"    v_cvt_pk_bf16_f32 v{M+4*hf+i}, v{T+8+2*i}, v{T+8+2*i+1}")
    def silu_q(Dc, q):
        d = Dc + 4 * q
        for i in range(4): a(f"    v_exp_f32 v{T+i}, v{d+i}")
        a(f"    s_nop 0")
        for i in range(0, 4, 2): a(f"    v_pk_add_f32 v[{T+i}:{T+i+1}], v[{T+i}:{T+i+1}], 1.0 op_sel_hi:[1,0]")
        for i in range(4): a(f"    v_rcp_f32 v{T+i}, v{T+i}")
        a(f"    s_nop 0")
        for i in range(0, 4, 2): a(f"    v_pk_mul_f32 v[{T+8+i}:{T+8+i+1}], v[{d+i}:{d+i+1}], v[{T+i}:{T+i+1}]")
        for i in range(2): a(f"    v_cvt_pk_bf16_f32 v{M+2*q+i}, v{T+8+2*i}, v{T+8+2*i+1}")
    def endit():
        a(f"    s_add_u32 s{sI}, s{sI}, 1")
        a(f"    s_add_u32 s4, s{sI}, 1")
        a(f"    s_cmp_ge_u32 s4, s{sTs}")

    top(with_tr=False)
    xcheck(2)
    Dn = D[1]
    a(mfma(Dn, EFB[0], W4F, None))
    after_ef(EFB[0])
    a(f"    s_waitcnt lgkmcnt(3)")
    a(mfma(Dn, AF, XC, Dn))
    a(mfma(Dn, IDN, BF, Dn))
    a(mfma(Dn, IDN + 4, BF + 4, Dn))
    endit()
    a(f"    s_cbranch_scc1 K2_epi1")
    a(f"    s_branch K2_it1")

    def body(p):
        Dc, Dn = D[p], D[1 - p]
        EFc = EFB[p]
        a.label(f"K2_it{p}")
        top()
        xcheck(p)
        f = lambda ins: (lambda: a(ins))
        def m_ef():
            a(mfma(Dn, EFc, W4F, None))
        def m_af():
            a(f"    s_waitcnt lgkmcnt(7)")
            a(mfma(Dn, AF, XC, Dn))
        def seg0():
            a(mfma(DPC, M, TR, DPC))
        dcheck(p)
        if cfg.qskip:
            a(f"    s_cmp_lt_u32 s{sRem}, 25")
            a(f"    s_cbranch_scc1 K2_part{p}")
        m_ef()
        after_ef(EFc)
        silu_h(Dc, 0, [None, m_af, f(mfma(Dn, IDN, BF, Dn)), f(mfma(Dn, IDN + 4, BF + 4, Dn))])
        a(f"    s_waitcnt lgkmcnt(0)")
        silu_h(Dc, 1, [None, seg0, None, None])
        a(f"    s_nop 1")
        a(mfma(DPC, M + 4, TR + 4, DPC))
        a.label(f"K2_join{p}")
        a(f"    s_sub_u32 s{sRem}, s{sRem}, 32")
        endit()
        a(f"    s_cbranch_scc1 K2_epi{1-p}")
    body(1)
    body(0)
    a(f"    s_branch K2_it1")

    def partial(p, epi):
        Dc = D[p]
        tag = f"e" if epi else f"{p}"
        for q in range(3):
            a(f"    s_cmp_gt_i32 s{sRem}, {8*q}")
            a(f"    s_cbranch_scc0 K2_pz{tag}_{q}")
            silu_q(Dc, q)
        a(f"    s_branch K2_pz{tag}_3")
        for q in range(3):
            a.label(f"K2_pz{tag}_{q}")
            a(f"    v_mov_b32 v{M+2*q}, 0\n    v_mov_b32 v{M+2*q+1}, 0")
        a.label(f"K2_pz{tag}_3")
        a(f"    v_mov_b32 v{M+6}, 0\n    v_mov_b32 v{M+7}, 0")
    if cfg.qskip:
        for p in (0, 1):
            Dn = D[1 - p]
            a.label(f"K2_part{p}")
            a(mfma(Dn, EFB[p], W4F, None))
            after_ef(EFB[p])
            a(f"    s_waitcnt lgkmcnt(7)")
            a(mfma(Dn, AF, XC, Dn))
            a(mfma(Dn, IDN, BF, Dn))
            a(mfma(Dn, IDN + 4, BF + 4, Dn))
            partial(p, False)
            a(f"    s_waitcnt lgkmcnt(0)")
            a(mfma(DPC, M, TR, DPC))
            a(mfma(DPC, M + 4, TR + 4, DPC))
            a(f"    s_branch K2_join{p}")

    for ret in (0, 1, 2):
        a.label(f"K2_xsw{ret}")
        a(f"    s_mov_b32 s{sRet}, {ret}")
        if ret != 2: a(f"    s_branch K2_xsw")
    a.label("K2_xsw")
    a(f"    s_add_u32 s{sKx}, s{sKx}, 1")
    a(f"    s_mov_b32 s{sBx}, s{sBx2}")
    a(f"    s_mov_b32 s{sBx2}, -1")
    a(f"    s_cmp_eq_u32 s{sKx}, 1")
    a(f"    s_cbranch_scc0 K2_xsw_2")
    for r in range(4): a(f"    v_mov_b32 v{XC+r}, v{X+4+r}")
    a(f"    s_branch K2_xsw_c")
    a.label("K2_xsw_2")
    for r in range(4): a(f"    v_mov_b32 v{XC+r}, v{X+8+r}")
    a.label("K2_xsw_c")
    a(f"    s_cmp_eq_u32 s4, s{sBx}")
    a(f"    s_cbranch_scc1 K2_xsw")
    a(f"    s_cmp_eq_u32 s{sRet}, 0\n    s_cbranch_scc1 K2_xret0")
    a(f"    s_cmp_eq_u32 s{sRet}, 1\n    s_cbranch_scc1 K2_xret1")
    a(f"    s_branch K2_xret2")
    rets = [0, 1, 2, 3]
    for ret in rets:
        a.label(f"K2_dsw{ret}")
        a(f"    s_mov_b32 s{sRet}, {ret}")
        if ret != rets[-1]: a(f"    s_branch K2_dsw")
    a.label("K2_dsw")
    a(f"    s_nop 7\n    s_nop 7")
    a(f"    s_cmp_eq_u32 s{sKd}, 1\n    s_cbranch_scc1 K2_dsw_1")
    a(f"    s_cmp_eq_u32 s{sKd}, 2\n    s_cbranch_scc1 K2_dsw_2")
    for k in range(3):
        if k: a.label(f"K2_dsw_{k}")
        for r in range(16): a(f"    v_add_f32 v{DP+16*k+r}, v{DP+16*k+r}, v{DPC+r}")
        if k < 2: a(f"    s_branch K2_dsw_c")
    a.label("K2_dsw_c")
    for r in range(16): a(f"    v_mov_b32 v{DPC+r}, 0")
    a(f"    s_add_u32 s{sKd}, s{sKd}, 1")
    a(f"    s_cmp_eq_u32 s{sKd}, 1")
    a(f"    s_cselect_b32 s{sRem}, s{sRem1}, s{sRem2}")
    a(f"    s_mov_b32 s{sBd}, s{sBd2}")
    a(f"    s_mov_b32 s{sBd2}, -1")
    a(f"    s_cmp_eq_u32 s{sRet}, 3\n    s_cbranch_scc1 K2_dret3")
    a(f"    s_cmp_eq_u32 s{sI}, s{sBd}")
    a(f"    s_cbranch_scc1 K2_dsw")
    a(f"    s_nop 1")
    for ret in rets:
        if ret == 3: continue
        a(f"    s_cmp_eq_u32 s{sRet}, {ret}\n    s_cbranch_scc1 K2_dret{ret}")
    a(f"    s_endpgm")
    a.label("K2_mark")
    a(f"    v_mov_b32 v{A0}, 1")
    a(f"    v_mov_b32 v{A1}, {CNT + 20}")
    a(f"    ds_write_b32 v{A1}, v{A0}")
    a(f"    s_branch K2_rank")
    a.label("K2_toslow")
    a(f"    s_mov_b32 s{sMode}, 1")
    a(f"    s_mov_b32 s{sWin}, 0")
    a(f"    s_waitcnt vmcnt(0)")
    a(f"    s_barrier")
    a(f"    s_branch K2_zero")
    a.label("K2_readdr")
    a(f"    v_and_b32 v{A0}, 31, v{l}\n    v_lshrrev_b32 v{A2_}, 5, v{l}")
    a(f"    v_mul_u32_u24 v{A4}, {A2H - A2L}, v{A2_}\n    v_lshl_add_u32 v{aA2}, v{A0}, 4, v{A4}\n    v_add_u32 v{aA2}, {A2L}, v{aA2}")
    a(f"    v_lshlrev_b32 v{A4}, 8, v{A2_}\n    v_sub_u32 v{aA3}, v{cBF}, v{A4}\n    v_add_u32 v{aA3}, {A3T}, v{aA3}")
    a(f"    v_lshrrev_b32 v{A4}, 2, v{l}\n    v_lshlrev_b32 v{A4}, 3, v{A4}\n    v_add_u32 v{aRH}, {REC}, v{A4}")
    a(f"    v_lshlrev_b32 v{A4}, 3, v{A0}\n    v_add_u32 v{aRE}, {REC}, v{A4}")
    a(f"    s_branch K2_addrok")

    a.label("K2_epi0")
    for r in range(16): a(f"    v_mov_b32 v{D[1]+r}, v{D[0]+r}")
    a.label("K2_epi1")
    for u in range(4):
        a(f"    ds_read_b64_tr_b16 v[{TR+2*u}:{TR+2*u+1}], v{aA3} offset:{512*u}")
    dcheck(2)
    if cfg.qskip:
        a(f"    s_cmp_lt_u32 s{sRem}, 25")
        a(f"    s_cbranch_scc1 K2_parte")
    silu_h(D[1], 0, [None, None, None, None])
    silu_h(D[1], 1, [None, None, None, None])
    if cfg.qskip:
        a(f"    s_branch K2_epij")
        a.label("K2_parte")
        partial(1, True)
        a.label("K2_epij")
    a(f"    s_waitcnt lgkmcnt(0)")
    a(mfma(DPC, M, TR, DPC))
    a(mfma(DPC, M + 4, TR + 4, DPC))
    a(f"    s_nop 3")
    a(f"    s_branch K2_dsw3")
    a.label("K2_dret3")
    a.label("K2_loopdone")
    st(10)
    a(f"    s_cmp_eq_u32 s{sMode}, 0")
    a(f"    s_cbranch_scc1 K2_tail")
    a(f"    s_waitcnt vmcnt(0)")
    a(f"    s_barrier")
    a(f"    s_mul_i32 s{t0}, s{sWin}, {WIN}")
    a(f"    s_cmp_ge_u32 s{t0}, {E}")
    a(f"    s_cbranch_scc0 K2_zero")
    a.label("K2_tail")
    a(f"    v_bfe_u32 v{A0}, v{l}, 2, 3")
    a(f"    v_lshrrev_b32 v{A1}, 2, v{A0}")
    a(f"    v_mul_u32_u24 v{A1}, {QSTR}, v{A1}")
    a(f"    v_and_b32 v{A3_}, 3, v{A0}")
    a(f"    v_lshl_add_u32 v{A1}, v{A3_}, 8, v{A1}")
    a(f"    v_lshl_add_u32 v{A1}, v{A3_}, 4, v{A1}")
    a(f"    v_lshrrev_b32 v{A3_}, 5, v{l}")
    a(f"    v_lshl_add_u32 v{A1}, v{A3_}, 3, v{A1}")
    a(f"    s_lshl_b32 s{t1}, s{sC}, 6")
    a(f"    s_add_u32 s{t1}, s{t1}, {HOWN}")
    a(f"    v_add_u32 v{A1}, s{t1}, v{A1}")
    PK = T
    PKr = [T, T + 8, BF]
    for k in range(3):
        dp = DP + 16 * k
        for u in range(8):
            a(f"    v_cvt_pk_bf16_f32 v{PKr[k]+u}, v{dp+2*u}, v{dp+2*u+1}")
    TD = [D[0], D[1], DPC]
    for k in range(3):
        a(mfma(TD[k], WX, PKr[k], None))
        a(mfma(TD[k], WX + 4, PKr[k] + 4, TD[k]))
    a(f"    s_mov_b32 s{sX}, 0x11111111\n    s_mov_b32 s{sX+1}, 0x11111111")
    a(f"    s_cmp_eq_u32 s{sSet}, 0")
    for k in range(3):
        rb0, rb1 = 8 * k, [48, 24, 32][k]
        a(f"    s_mov_b32 s{t1}, {rb1 // 4 * QSTR}")
        a(f"    s_cselect_b32 s{t1}, {rb0 // 4 * QSTR}, s{t1}")
        a(f"    v_add_u32 v{A5}, s{t1}, v{A1}")
        a(f"    v_xor_b32 v{A0}, 16, v{A5}\n    v_xor_b32 v{A2_}, 32, v{A5}\n    v_xor_b32 v{A3_}, 48, v{A5}")
        a(f"    s_mov_b64 exec, s[{sX}:{sX+1}]")
        for j, ad in enumerate((A5, A0, A2_, A3_)):
            a(f"    ds_write_b64 v{ad}, v[{PKr[k]+2*j}:{PKr[k]+2*j+1}]")
        a(f"    s_mov_b64 exec, -1")
    a(f"    s_waitcnt vmcnt(0)")
    a(f"    v_and_b32 v{A4}, 31, v{l}")
    a(f"    v_lshlrev_b32 v{A4}, 2, v{A4}")
    a(f"    v_add_u32 v{A5}, s{sStg}, v{A4}")
    a(f"    s_mov_b32 s6, -1\n    s_mov_b32 s7, 0")
    a(f"    s_mov_b64 exec, s[6:7]")
    for k in range(3):
        a(f"    ds_write_b32 v{A5}, v{TD[k]} offset:{128*k}")
    a(f"    s_mov_b64 exec, -1")
    XB = T
    for r in range(16): a(f"    v_mov_b32 v{XB+r}, 0")
    a(f"    s_waitcnt lgkmcnt(0)")
    a(f"    s_barrier")
    st(12)
    AC = D[0]
    FB = DP
    for ntile in range(3):
        for s_ in range(4):
            a(f"    ds_read_b128 v[{FB+16*ntile+4*s_}:{FB+16*ntile+4*s_+3}], v{cHB} offset:{ntile * 4 * QSTR + 64 * s_}")
    a(f"    s_mov_b32 s{sX}, 0x00ff00ff\n    s_mov_b32 s{sX+1}, 0x00ff00ff")
    a(f"    s_mov_b64 exec, s[{sX}:{sX+1}]")
    a(f"    s_waitcnt lgkmcnt(8)")
    for s_ in range(4):
        a(f"    ds_read_b128 v[{XB+4*s_}:{XB+4*s_+3}], v{cHB} offset:{12 * QSTR + 64 * s_}")
    a(f"    s_mov_b64 exec, -1")
    a(f"    v_mul_u32_u24 v{A0}, 171, v0")
    a(f"    v_lshrrev_b32 v{A0}, 9, v{A0}")
    a(f"    v_min_u32 v{A0}, 39, v{A0}")
    a(f"    v_mul_u32_u24 v{A1}, 3, v{A0}")
    a(f"    v_sub_u32 v{A1}, v0, v{A1}")
    a(f"    v_and_b32 v{A1}, 3, v{A1}")
    a(f"    v_and_b32 v{A4}, 7, v{A0}")
    a(f"    v_lshlrev_b32 v{A4}, 4, v{A4}")
    a(f"    v_lshl_add_u32 v{A4}, v{A1}, 2, v{A4}")
    a(f"    v_lshrrev_b32 v{A0}, 3, v{A0}")
    a(f"    v_cmp_lt_u32 vcc, 2, v{A0}")
    a(f"    v_lshlrev_b32 v{A1}, 7, v{A0}")
    a(f"    v_mov_b32 v{A5}, {4*NR*SSTR - 256}")
    a(f"    v_cndmask_b32 v{A5}, 0, v{A5}, vcc")
    a(f"    v_add3_u32 v{A4}, v{A4}, v{A1}, v{A5}")
    a(f"    v_add_u32 v{A4}, 4, v{A4}")
    PQ = M
    for cc in range(4):
        a(f"    ds_read_b32 v{PQ+cc}, v{A4} offset:{NR*SSTR*cc}")
    a(f"    v_cmp_eq_u32 vcc, 2, v{A0}")
    a(f"    v_add_u32 v{A5}, {4*NR*SSTR - 256}, v{A4}")
    a(f"    s_nop 0")
    a(f"    v_cndmask_b32 v{A5}, v{A4}, v{A5}, vcc")
    for cc in range(4):
        a(f"    ds_read_b32 v{PQ+4+cc}, v{A5} offset:{NR*SSTR*cc}")
    for ntile in range(3):
        for s_ in range(4):
            a(f"    s_waitcnt lgkmcnt({min(15, 11 - (ntile*4+s_) + 4 + 8)})")
            c_ = "0" if s_ == 0 else f"v[{AC+4*ntile}:{AC+4*ntile+3}]"
            a(f"    v_mfma_f32_16x16x32_bf16 v[{AC+4*ntile}:{AC+4*ntile+3}], v[{WHH+4*s_}:{WHH+4*s_+3}], v[{FB+16*ntile+4*s_}:{FB+16*ntile+4*s_+3}], {c_}")
    for s_ in range(4):
        a(f"    s_waitcnt lgkmcnt({3 - s_ + 8})")
        a(f"    v_mfma_f32_16x16x32_bf16 v[{AC+4}:{AC+7}], v[{WHH+4*s_}:{WHH+4*s_+3}], v[{XB+4*s_}:{XB+4*s_+3}], v[{AC+4}:{AC+7}]")
    a(f"    s_mov_b32 s{t0}, {hex(f32bits(-LN2))}")
    a(f"    s_mov_b32 s{t1}, {hex(f32bits(-LOG2E))}")
    a(f"    s_waitcnt lgkmcnt(0)")
    a(f"    v_add_f32 v{M}, v{M}, v{M+1}\n    v_add_f32 v{M+2}, v{M+2}, v{M+3}\n    v_add_f32 v{M}, v{M}, v{M+2}")
    a(f"    v_add_f32 v{M+4}, v{M+4}, v{M+5}\n    v_add_f32 v{M+6}, v{M+6}, v{M+7}\n    v_add_f32 v{M+4}, v{M+4}, v{M+6}")
    a(f"    v_cndmask_b32 v{M+4}, 0, v{M+4}, vcc")
    a(f"    v_add_f32 v{A1}, v{M}, v{M+4}")
    a(f"    v_lshlrev_b32 v{POSO}, 16, v{POSO}")
    a(f"    v_fma_f32 v{A1}, v{A1}, s{t0}, v{POSO}")
    a(f"    v_cvt_pk_bf16_f32 v{A1}, v{A1}, v{A1}")
    a(f"    s_mul_i32 s{t2}, s2, 240")
    a(f"    s_add_u32 s{t2}, s{t2}, {N*256}")
    a(f"    v_lshlrev_b32 v{A0}, 1, v0")
    a(f"    v_cmp_gt_u32 vcc, 120, v0")
    a(f"    s_and_saveexec_b64 s[{sX}:{sX+1}], vcc")
    a(f"    s_cbranch_execz K2_nopos")
    a(f"    buffer_store_short v{A1}, v{A0}, s[{sOUT}:{sOUT+3}], s{t2} offen")
    a.label("K2_nopos")
    a(f"    s_mov_b64 exec, s[{sX}:{sX+1}]")
    a(f"    s_movk_i32 s{t2}, 0x1000")
    a(f"    s_movk_i32 s{t3}, 0x2000")
    TT = BF
    for ntile in [0, 2, 1]:
        x = AC + 4 * ntile; hp = HP + 4 * ntile
        for i in range(4): a(f"    v_fma_f32 v{x+i}, v{x+i}, s{t0}, v{hp+i}")
        for i in range(4): a(f"    v_mul_f32 v{TT+i}, s{t1}, v{x+i}")
        for i in range(4): a(f"    v_exp_f32 v{TT+i}, v{TT+i}")
        rs = RES + 2 * ntile
        a(f"    v_lshlrev_b32 v{TT+4}, 16, v{rs}")
        for i in range(4): a(f"    v_add_f32 v{TT+i}, 1.0, v{TT+i}")
        for i in range(4): a(f"    v_rcp_f32 v{TT+i}, v{TT+i}")
        a(f"    v_and_b32 v{TT+5}, 0xffff0000, v{rs}")
        a(f"    v_lshlrev_b32 v{TT+6}, 16, v{rs+1}\n    v_and_b32 v{TT+7}, 0xffff0000, v{rs+1}")
        for i in range(4): a(f"    v_fma_f32 v{x+i}, v{x+i}, v{TT+i}, v{TT+4+i}")
        a(f"    v_cvt_pk_bf16_f32 v{TR+2*ntile}, v{x}, v{x+1}")
        a(f"    v_cvt_pk_bf16_f32 v{TR+2*ntile+1}, v{x+2}, v{x+3}")
        if ntile == 0: a(f"    buffer_store_dwordx2 v[{TR}:{TR+1}], v{OUTA}, s[{sOUT}:{sOUT+3}], 0 offen")
        if ntile == 1: a(f"    buffer_store_dwordx2 v[{TR+2}:{TR+3}], v{OUTA}, s[{sOUT}:{sOUT+3}], s{t2} offen")
        if ntile == 2:
            a(f"    s_mov_b32 s{sX}, 0x00ff00ff\n    s_mov_b32 s{sX+1}, 0x00ff00ff")
            a(f"    s_mov_b64 exec, s[{sX}:{sX+1}]")
            a(f"    buffer_store_dwordx2 v[{TR+4}:{TR+5}], v{OUTA}, s[{sOUT}:{sOUT+3}], s{t3} offen")
            a(f"    s_mov_b64 exec, -1")
    if cfg.dbg:
        st(13)
        a(f"    s_waitcnt vmcnt(0)")
        st(14)
        a(f"    v_writelane_b32 v{vST}, s{sTs}, 15")
        stamp_store(a, cfg, vST, sWS, 0x100000, sW, A0, sMI)
    a.label("K2_done")
    a("    s_endpgm")
    a.label("K2_end")
    return nv

HEADER = """; EGNN layer, two launches.  Kernarg (88 bytes): h, pos, e_attr, src, dst, w_e, w_x, w_h, out, debug, ws
; @launch kernel=k1_kernel grid=({g1},1,1) block=(1024,1,1) lds={lds1}
; @launch kernel=k2_kernel grid=(250,1,1) block=(512,1,1) lds={lds2}
.amdgcn_target "amdgcn-amd-amdhsa--gfx950"
.text
"""
def desc(name, nv, ns):
    acc = (nv + 3) // 4 * 4
    return f""".p2align 6
.amdhsa_kernel {name}
  .amdhsa_next_free_vgpr {nv}
  .amdhsa_next_free_sgpr {ns}
  .amdhsa_accum_offset {acc}
  .amdhsa_group_segment_fixed_size 0
  .amdhsa_kernarg_size 88
  .amdhsa_user_sgpr_count 2
  .amdhsa_user_sgpr_kernarg_segment_ptr 1
  .amdhsa_system_sgpr_workgroup_id_x 1
  .amdhsa_float_denorm_mode_32 3
.end_amdhsa_kernel
"""
def generate(cfg):
    a = Asm()
    a(HEADER.format(g1=cfg.g1, lds1=K1_LDS, lds2=LDS2))
    gen_k1(a, cfg)
    nv = gen_k2(a, cfg)
    a('.section .rodata,"a"')
    a(desc("k1_kernel", 64, 72))
    a(desc("k2_kernel", nv, 102))
    return a.text(), nv

if __name__ == "__main__":
    cfg = Cfg()
    out = sys.argv[1] if len(sys.argv) > 1 else "egnn4.s"
    for kv in sys.argv[2:]:
        k, val = kv.split("=", 1)
        cur = getattr(cfg, k)
        setattr(cfg, k, val if isinstance(cur, str) else type(cur)(eval(val)))
    txt, nv = generate(cfg)
    open(out, "w").write(txt)
    print("vgprs", nv)
    check_hazards(txt)
```

```python
import sys, struct
from asmlib import *

def f32bits(x): return struct.unpack("<I", struct.pack("<f", x))[0]
LOG2E = 1.4426950408889634
LN2 = 0.6931471805599453
N = 10000; E = 160000; NB = 250; CH = 2500
CELL_BYTES = NB * 64 * 128
WS_FR = 0x200000
WEF_BYTES = 17 * 4 * 1024
WHF_OFF = WS_FR + WEF_BYTES
FRS = 0x22000
WS_B = 0x320000
WS_USED = WS_B + N * 256
DBG_OFF = 0x800000
QSTR = 1088
MAXT = 27
STG = 0; SSTR = 2048; NR = 3
A3T = 8 * NR * SSTR
A2L = A3T + MAXT * 32 * 64
A2H = A2L + MAXT * 32 * 16
REC = A2H + MAXT * 32 * 16
CNT = REC + (MAXT + 6) * 32 * 8
ZSTART = A3T; NZ = 12
ZEND = ZSTART + NZ * 8192
assert CNT + 64 <= ZEND
POSD = ZEND
HOWN = POSD + 512
LDS2 = 163840
WIN = 192
K1_LDS = 32768 + 16 * QSTR
G_GEMM = 157
W_SORT = 160; W_PREP = 224; W_PREF = 256
PPO = CNT + 64

class Cfg:
    g1 = 264
    pf_ea = False
    pf_code = True
    pf_b = False
    dbg = False
    qskip = True
    st_k1 = ""
    gemm_lds = True
    tlb = False
    pf_h = False
    ab_nob = False
    only_set = -1
    prio = -1
    l_nolds = False
    l_novm = False
    l_nomf = False
    l_nosi = False
    l_nopk = False
    ab_noe = False
    ab_now = False
    ab_noz = False
    ab_noc = False
    ab_notail = False

def srd(a, d, base, nrec, stride=0):
    a(f"    s_mov_b32 s{d}, s{base}")
    a(f"    s_and_b32 s{d+1}, s{base+1}, 0xffff")
    if stride: a(f"    s_or_b32 s{d+1}, s{d+1}, {hex(stride << 16)}")
    a(f"    s_mov_b32 s{d+2}, {nrec}")
    a(f"    s_mov_b32 s{d+3}, 0x00020000")
def stamp(a, cfg, vreg, idx, sp=6):
    if not cfg.dbg: return
    a(f"    s_memrealtime s[{sp}:{sp+1}]")
    a(f"    s_waitcnt lgkmcnt(0)")
    a(f"    v_writelane_b32 v{vreg}, s{sp}, {idx}")
    a(f"    s_memtime s[{sp}:{sp+1}]")
    a(f"    s_waitcnt lgkmcnt(0)")
    a(f"    v_writelane_b32 v{vreg}, s{sp}, {idx + 32}")
def stamp_store(a, cfg, vreg, pws, region, swave, tmpv, srdb):
    if not cfg.dbg: return
    a(f"    s_mov_b64 exec, -1")
    a(f"    s_mov_b32 s{srdb}, s{pws}\n    s_and_b32 s{srdb+1}, s{pws+1}, 0xffff\n    s_mov_b32 s{srdb+2}, 0x1000000\n    s_mov_b32 s{srdb+3}, 0x00020000")
    a(f"    s_lshl_b32 s6, s2, 4")
    a(f"    s_add_u32 s6, s6, s{swave}")
    a(f"    s_lshl_b32 s6, s6, 8")
    a(f"    s_add_u32 s6, s6, {DBG_OFF + region}")
    a(f"    v_mbcnt_lo_u32_b32 v{tmpv}, -1, 0\n    v_mbcnt_hi_u32_b32 v{tmpv}, -1, v{tmpv}\n    v_lshlrev_b32 v{tmpv}, 2, v{tmpv}")
    a(f"    buffer_store_dword v{vreg}, v{tmpv}, s[{srdb}:{srdb+3}], s6 offen")

def gen_k1(a, cfg):
    fl = (" " + cfg.st_k1) if cfg.st_k1 else ""
    def k1_end():
        if cfg.dbg:
            a("    s_mov_b64 exec, -1")
            stamp(a, cfg, 127, 4, 34)
            a("    s_waitcnt vmcnt(0)")
            stamp(a, cfg, 127, 5, 34)
            a("    s_load_dwordx2 s[8:9], s[0:1], 80\n    s_waitcnt lgkmcnt(0)")
            a("    s_getreg_b32 s34, hwreg(HW_REG_XCC_ID)\n    s_add_u32 s34, s34, 1\n    v_writelane_b32 v127, s34, 20")
            a("    v_lshrrev_b32 v126, 6, v0\n    s_nop 0\n    v_readfirstlane_b32 s33, v126")
            stamp_store(a, cfg, 127, 8, 0, 33, 126, 36)
        a("    s_endpgm")
    a(".globl k1_kernel\n.p2align 8\n.type k1_kernel,@function\nk1_kernel:")
    a(f"    s_cmp_ge_u32 s2, {G_GEMM}")
    a("    s_cbranch_scc1 K1_notgemm")
    stamp(a, cfg, 127, 0, 34)
    a("    s_load_dwordx2 s[4:5], s[0:1], 40")
    a("    s_load_dwordx2 s[8:9], s[0:1], 0")
    a("    s_load_dwordx2 s[16:17], s[0:1], 80")
    a("    v_and_b32 v1, 63, v0")
    a("    v_lshrrev_b32 v2, 6, v0")
    a("    s_lshl_b32 s20, s2, 6")
    a("    v_readfirstlane_b32 s21, v2")
    a("    v_lshlrev_b32 v3, 4, v1")
    a("    s_mov_b32 s6, " + str(273 * 256) + "\n    s_mov_b32 s7, 0x00020000")
    a("    v_lshrrev_b32 v4, 4, v1")
    a("    v_and_b32 v5, 15, v1\n    v_xor_b32 v5, v5, v4\n    v_lshlrev_b32 v7, 4, v5")
    a(f"    s_mov_b32 s10, {N}\n    s_mov_b32 s11, 0x00020000")
    a("    s_lshl_b32 s22, s21, 12")
    a(f"    s_add_u32 s23, s22, {128*256}")
    a("    s_lshl_b32 s24, s21, 3\n    s_add_u32 s24, s24, s20")
    a("    v_add_u32 v6, s24, v4")
    a("    v_add_u32 v8, 4, v6\n    v_mov_b32 v9, v7")
    a(f"    s_mul_i32 s25, s21, {2*QSTR}\n    s_add_u32 s25, s25, 32768")
    a("    s_waitcnt lgkmcnt(0)")
    a("    s_or_b32 s9, s9, 0x1000000")
    for j in range(2):
        a(f"    s_add_u32 m0, s25, {j*QSTR}\n    s_nop 0")
        a(f"    buffer_load_dwordx4 v[{6+2*j}:{7+2*j}], s[8:11], 0 idxen offen lds")
    for j in range(4):
        a(f"    s_add_u32 m0, s22, {j*1024}\n    s_add_u32 s26, s23, {j*1024}")
        a(f"    buffer_load_dwordx4 v3, s[4:7], s26 offen lds")
    a("    s_lshr_b32 s26, s21, 2\n    s_and_b32 s27, s21, 3")
    a("    v_lshrrev_b32 v14, 5, v1\n    v_lshlrev_b32 v14, 3, v14\n    v_bfe_u32 v15, v1, 2, 2\n    v_add_u32 v14, v14, v15\n    v_lshlrev_b32 v14, 8, v14")
    a("    v_bfe_u32 v15, v1, 4, 1\n    v_lshl_add_u32 v14, v15, 5, v14\n    v_and_b32 v15, 3, v1\n    v_lshl_add_u32 v14, v15, 3, v14")
    a("    s_lshl_b32 s28, s27, 6\n    v_add_u32 v14, s28, v14")
    a("    v_and_b32 v15, 31, v1\n    v_lshrrev_b32 v16, 2, v15\n    s_lshl_b32 s28, s26, 3\n    v_add_u32 v16, s28, v16")
    a(f"    v_mul_u32_u24 v16, {QSTR}, v16\n    v_and_b32 v17, 3, v15\n    v_lshl_add_u32 v16, v17, 8, v16\n    v_add_u32 v16, 32768, v16")
    a("    v_lshrrev_b32 v18, 5, v1\n    v_xor_b32 v18, v18, v17\n    v_lshl_add_u32 v19, v18, 4, v16\n    v_xor_b32 v18, 2, v18\n    v_lshl_add_u32 v16, v18, 4, v16")
    a("    s_lshl_b32 s28, s26, 5\n    s_add_u32 s28, s28, s20\n    v_add_u32 v18, s28, v15\n    v_lshlrev_b32 v18, 8, v18")
    a("    v_lshrrev_b32 v17, 5, v1\n    v_lshl_add_u32 v18, v17, 4, v18\n    s_lshl_b32 s28, s27, 6\n    v_add_u32 v18, s28, v18")
    a(f"    s_add_u32 s16, s16, {WS_B}\n    s_addc_u32 s17, s17, 0\n    s_mov_b32 s18, {N*256}\n    s_mov_b32 s19, 0x00020000")
    a(f"    s_mov_b32 s28, {hex(f32bits(-LOG2E))}")
    a("    s_waitcnt vmcnt(0)")
    a("    s_barrier")
    stamp(a, cfg, 127, 1, 34)
    AW, BH, DD = 20, 52, 84
    for s_ in range(4):
        a(f"    ds_read_b64_tr_b16 v[{AW+4*s_}:{AW+4*s_+1}], v14 offset:{s_ * 4096}")
        a(f"    ds_read_b64_tr_b16 v[{AW+4*s_+2}:{AW+4*s_+3}], v14 offset:{s_ * 4096 + 1024}")
    for s_ in range(4):
        a(f"    ds_read_b128 v[{BH+4*s_}:{BH+4*s_+3}], v{19 if s_ % 2 == 0 else 16} offset:{(s_ >> 1) * 64}")
    a("    s_waitcnt lgkmcnt(4)")
    for s_ in range(4, 8):
        a(f"    ds_read_b64_tr_b16 v[{AW+4*s_}:{AW+4*s_+1}], v14 offset:{s_ * 4096}")
        a(f"    ds_read_b64_tr_b16 v[{AW+4*s_+2}:{AW+4*s_+3}], v14 offset:{s_ * 4096 + 1024}")
    def mf(d, A, B, first): return f"    v_mfma_f32_32x32x16_bf16 v[{d}:{d+15}], v[{A}:{A+3}], v[{B}:{B+3}], " + ("0" if first else f"v[{d}:{d+15}]")
    a("    s_waitcnt lgkmcnt(8)")
    for s_ in range(4, 8):
        a(f"    ds_read_b128 v[{BH+4*s_}:{BH+4*s_+3}], v{19 if s_ % 2 == 0 else 16} offset:{(s_ >> 1) * 64}")
    for s_ in range(4): a(mf(DD, AW + 4 * s_, BH + 4 * s_, s_ == 0))
    a("    s_waitcnt lgkmcnt(0)")
    for s_ in range(4, 8): a(mf(DD, AW + 4 * s_, BH + 4 * s_, False))
    a("    s_nop 7\n    s_nop 3")
    for r in range(16): a(f"    v_mul_f32 v{DD+r}, s28, v{DD+r}")
    for j in range(8): a(f"    v_cvt_pk_bf16_f32 v{AW+j}, v{DD+2*j}, v{DD+2*j+1}")
    b = AW
    a("    s_nop 1")
    a(f"    v_permlane32_swap_b32 v{b}, v{b+2}\n    v_permlane32_swap_b32 v{b+1}, v{b+3}\n    v_permlane32_swap_b32 v{b+4}, v{b+6}\n    v_permlane32_swap_b32 v{b+5}, v{b+7}")
    a("    s_nop 1")
    a(f"    buffer_store_dwordx4 v[{b}:{b+3}], v18, s[16:19], 0 offen{fl}")
    a(f"    buffer_store_dwordx4 v[{b+4}:{b+7}], v18, s[16:19], 0 offen offset:32{fl}")
    k1_end()

    a.label("K1_notgemm")
    a(f"    s_cmp_ge_u32 s2, {cfg.g1}")
    a("    s_cbranch_scc1 K1_done")
    a(f"    s_cmp_lt_u32 s2, {W_SORT}")
    a("    s_cbranch_scc1 K1_done")
    stamp(a, cfg, 127, 0, 34)
    a(f"    s_cmp_ge_u32 s2, {W_PREF}")
    a("    s_cbranch_scc1 K1_pref")
    a(f"    s_cmp_ge_u32 s2, {W_PREP}")
    a("    s_cbranch_scc1 K1_prep")
    a("    s_load_dwordx4 s[4:7], s[0:1], 24")
    a("    s_load_dwordx2 s[8:9], s[0:1], 80")
    a("    v_lshlrev_b32 v1, 4, v0")
    a("    v_lshlrev_b32 v2, 2, v0")
    a("    v_mov_b32 v4, -1\n    v_mov_b32 v5, -1\n    v_mov_b32 v6, -1\n    v_mov_b32 v7, -1\n    v_mov_b32 v3, 0")
    for r in range(4): a(f"    ds_write_b128 v1, v[4:7] offset:{8192*r}")
    a("    ds_write_b32 v2, v3 offset:32768")
    a(f"    s_sub_u32 s23, s2, {W_SORT}")
    a("    s_mul_i32 s10, s23, 10000")
    a("    s_waitcnt lgkmcnt(0)")
    a("    s_add_u32 s12, s4, s10\n    s_addc_u32 s13, s5, 0\n    s_mov_b32 s14, 10000\n    s_mov_b32 s15, 0x00020000")
    a("    s_add_u32 s16, s6, s10\n    s_addc_u32 s17, s7, 0\n    s_mov_b32 s18, 10000\n    s_mov_b32 s19, 0x00020000")
    for e in range(5):
        so = "0" if e == 0 else f"s{39+e}"
        if e: a(f"    s_movk_i32 s{39+e}, {2048*e}")
        a(f"    buffer_load_dword v{11+2*e}, v2, s[16:19], {so} offen")
        a(f"    buffer_load_dword v{10+2*e}, v2, s[12:15], {so} offen")
    srd(a, 24, 8, CELL_BYTES)
    a("    s_lshl_b32 s22, s23, 7")
    a("    v_mov_b32 v30, 1")
    a("    s_movk_i32 s33, 452")
    a("    v_cmp_gt_u32 s[30:31], s33, v0")
    a("    s_barrier")
    stamp(a, cfg, 127, 1, 34)
    for e in range(5):
        S, D, B, R, K = 10 + 2 * e, 11 + 2 * e, 32 + e, 40 + e, 48 + e
        a(f"    s_waitcnt vmcnt({8 - 2 * e})")
        a(f"    v_mul_u32_u24 v{B}, 52429, v{D}")
        a(f"    v_lshrrev_b32 v{B}, 21, v{B}")
        a(f"    v_lshlrev_b32 v26, 2, v{B}")
        if e == 4: a("    s_mov_b64 exec, s[30:31]")
        a(f"    ds_add_rtn_u32 v{K}, v26, v30 offset:32768")
        a(f"    v_mul_u32_u24 v24, 40, v{B}")
        a(f"    v_sub_u32 v24, v{D}, v24")
        a(f"    v_lshl_or_b32 v{R}, v24, 14, v{S}")
        a(f"    v_add_u32 v25, {512 * e}, v0")
        a(f"    v_lshl_or_b32 v{R}, v25, 20, v{R}")
    a("    s_mov_b64 exec, -1")
    stamp(a, cfg, 127, 2, 34)
    a("    s_waitcnt lgkmcnt(0)")
    for e in range(5):
        B, R, K = 32 + e, 40 + e, 48 + e
        a(f"    v_cmp_gt_u32 vcc, 32, v{K}")
        a(f"    v_and_b32 v24, 7, v{K}")
        a(f"    v_lshlrev_b32 v24, 4, v24")
        a(f"    v_lshl_add_u32 v24, v{B}, 7, v24")
        a(f"    v_lshrrev_b32 v25, 3, v{K}")
        a(f"    v_lshl_add_u32 v24, v25, 2, v24")
        if e == 4: a("    s_and_b64 vcc, vcc, s[30:31]")
        a("    s_mov_b64 exec, vcc")
        a(f"    ds_write_b32 v24, v{R}")
        a("    s_mov_b64 exec, -1")
    a("    s_waitcnt lgkmcnt(0)")
    a("    s_barrier")
    stamp(a, cfg, 127, 3, 34)
    for r in range(4): a(f"    ds_read_b128 v[{8+4*r}:{11+4*r}], v1 offset:{8192*r}")
    a("    v_lshrrev_b32 v26, 3, v0")
    a("    v_lshlrev_b32 v27, 2, v26")
    for r in range(4): a(f"    ds_read_b32 v{32+r}, v27 offset:{32768 + 256*r}")
    a("    v_and_b32 v28, 7, v0")
    a("    v_lshlrev_b32 v29, 4, v28")
    a("    v_lshl_add_u32 v29, v26, 13, v29")
    a("    v_mov_b32 v31, -2")
    a("    v_cmp_eq_u32 s[30:31], 0, v28")
    a("    s_waitcnt lgkmcnt(0)")
    for r in range(4):
        a(f"    v_cmp_lt_u32 vcc, 32, v{32+r}")
        a("    s_and_b64 vcc, vcc, s[30:31]")
        a(f"    s_mov_b32 s34, {64*8192*r}" if r else "    s_nop 0")
        a(f"    v_add_u32 v{36+r}, {64*8192*r}, v29")
        a(f"    v_cndmask_b32 v{8+4*r}, v{8+4*r}, v31, vcc")
    for r in range(4):
        a(f"    buffer_store_dwordx4 v[{8+4*r}:{11+4*r}], v{36+r}, s[24:27], s22 offen{fl}")
    k1_end()
    a.label("K1_prep")
    a("    s_load_dwordx2 s[4:5], s[0:1], 40")
    a("    s_load_dwordx2 s[6:7], s[0:1], 56")
    a("    s_load_dwordx2 s[8:9], s[0:1], 80")
    a(f"    s_sub_u32 s10, s2, {W_PREP}")
    a("    s_lshr_b32 s10, s10, 3")
    a("    s_lshl_b32 s10, s10, 9")
    a("    s_and_b32 s26, s2, 7")
    a(f"    s_mul_i32 s26, s26, {FRS}")
    a(f"    s_add_u32 s26, s26, {WS_FR}")
    a("    v_lshrrev_b32 v2, 6, v0\n    s_nop 0\n    v_readfirstlane_b32 s27, v2")
    a("    s_lshl_b32 s27, s27, 6\n    s_add_u32 s27, s27, s10")
    a("    v_and_b32 v2, 63, v0")
    a("    s_waitcnt lgkmcnt(0)")
    srd(a, 16, 4, 273 * 256)
    srd(a, 28, 6, 256 * 256)
    srd(a, 20, 8, WS_USED)
    for r in range(4):
        g = 36 + r
        a(f"    s_add_u32 s{g}, s27, {2048*r}")
        a(f"    s_cmp_ge_u32 s{g}, 6400")
        a(f"    s_cbranch_scc1 K1_pr{r}x")
        a(f"    s_cmp_ge_u32 s{g}, 2304")
        a(f"    s_cbranch_scc1 K1_pr{r}h")
        a(f"    s_lshr_b32 s12, s{g}, 8\n    s_lshl_b32 s13, s12, 4\n    s_cmp_eq_u32 s12, 8\n    s_cselect_b32 s13, 257, s13")
        a(f"    s_cselect_b32 s{40+r}, {hex(f32bits(-LOG2E))}, 1.0")
        a(f"    s_cselect_b32 s25, {8*4096}, 0")
        a(f"    s_lshr_b32 s15, s{g}, 6\n    s_and_b32 s15, s15, 3\n    s_lshl_b32 s15, s15, 5")
        a(f"    v_lshrrev_b32 v3, 5, v2\n    v_lshlrev_b32 v3, 3, v3\n    v_add_u32 v3, s13, v3\n    v_and_b32 v4, 31, v2\n    v_add_u32 v4, s15, v4")
        a(f"    v_lshlrev_b32 v3, 8, v3\n    v_lshl_add_u32 v3, v4, 1, v3")
        a(f"    s_add_u32 s{44+r}, s25, s26")
        for j in range(8): a(f"    buffer_load_ushort v{8+8*r+j}, v3, s[16:19], 0 offen offset:{j*256}")
        a(f"    s_branch K1_pr{r}d")
        a.label(f"K1_pr{r}h")
        a(f"    s_sub_u32 s12, s{g}, 2304\n    s_lshr_b32 s13, s12, 6\n    s_and_b32 s13, s13, 7\n    s_lshl_b32 s13, s13, 5")
        a(f"    s_lshr_b32 s15, s12, 9\n    s_lshl_b32 s15, s15, 4\n    s_mov_b32 s{40+r}, 1.0")
        a(f"    v_lshrrev_b32 v3, 4, v2\n    v_lshlrev_b32 v3, 3, v3\n    v_add_u32 v3, s13, v3\n    v_and_b32 v4, 15, v2\n    v_add_u32 v4, s15, v4")
        a(f"    v_lshlrev_b32 v3, 8, v3\n    v_lshl_add_u32 v3, v4, 1, v3")
        a(f"    s_add_u32 s{44+r}, s26, {WEF_BYTES - 2304*16}")
        for j in range(8): a(f"    buffer_load_ushort v{8+8*r+j}, v3, s[28:31], 0 offen offset:{j*256}")
        a(f"    s_branch K1_pr{r}d")
        a.label(f"K1_pr{r}x")
        a(f"    s_mov_b32 s{44+r}, 0x7fffff00")
        a(f"    s_mov_b32 s{40+r}, 1.0")
        a.label(f"K1_pr{r}d")
    a("    s_waitcnt vmcnt(0)")
    for r in range(4):
        b = 8 + 8 * r
        for j in range(8): a(f"    v_lshlrev_b32 v{b+j}, 16, v{b+j}")
        for j in range(8): a(f"    v_mul_f32 v{b+j}, s{40+r}, v{b+j}")
        for j in range(4): a(f"    v_cvt_pk_bf16_f32 v{44+4*r+j}, v{b+2*j}, v{b+2*j+1}")
        a(f"    s_lshl_b32 s12, s{36+r}, 4")
        a(f"    v_lshlrev_b32 v3, 4, v2\n    v_add_u32 v{60+r}, s12, v3")
        a(f"    buffer_store_dwordx4 v[{44+4*r}:{47+4*r}], v{60+r}, s[20:23], s{44+r} offen{fl}")
    k1_end()
    a.label("K1_pref")
    if cfg.pf_h:
        a("    s_load_dwordx2 s[4:5], s[0:1], 0")
        a("    s_and_b32 s10, s2, 7")
        a("    s_waitcnt lgkmcnt(0)")
        srd(a, 16, 4, N * 256)
        for r in range(6):
            a(f"    v_add_u32 v8, {512*r}, v0")
            a(f"    v_mul_u32_u24 v9, 43691, v8\n    v_lshrrev_b32 v9, 22, v9")
            a(f"    v_mul_u32_u24 v10, 96, v9\n    v_sub_u32 v10, v8, v10")
            a(f"    v_lshlrev_b32 v9, 3, v9\n    v_add_u32 v9, s10, v9")
            a(f"    v_mul_u32_u24 v9, {40*256}, v9\n    v_lshl_add_u32 v9, v10, 7, v9")
            a(f"    buffer_load_dword v{12+r}, v9, s[16:19], 0 offen")
    if cfg.pf_code:
        a("    v_lshlrev_b32 v1, 7, v0")
        a("    s_getpc_b64 s[24:25]")
        a.label("K1_pc")
        a("    s_add_u32 s24, s24, k2_kernel-K1_pc")
        a("    s_addc_u32 s25, s25, 0")
        a("    v_cmp_gt_u32 vcc, (K2_end-k2_kernel+127)/128, v0")
        a("    s_and_saveexec_b64 s[28:29], vcc")
        a("    s_cbranch_execz K1_pfend")
        a("    global_load_dword v4, v1, s[24:25]")
    a.label("K1_pfend")
    k1_end()
    a.label("K1_done")
    a("    s_endpgm")

def gen_k2(a, cfg):
    V = Regs("v", 1, 256)
    W4F = V.alloc("W4F", 4, 4); IDN = V.alloc("IDN", 8, 4); X = V.alloc("X", 12, 4); XC = V.alloc("XC", 4, 4)
    D = [V.alloc("D0", 16, 4), V.alloc("D1", 16, 4)]
    DP = V.alloc("DP", 48, 4); DPC = V.alloc("DPC", 16, 4); HP = V.alloc("HP", 12, 4)
    BF = V.alloc("BF", 8, 4); EFB = [V.alloc("EF0", 4, 4), V.alloc("EF1", 4, 4)]; AF = V.alloc("AF", 4, 4)
    TR = V.alloc("TR", 8, 4); M = V.alloc("M", 8, 4); T = V.alloc("T", 16, 4)
    WHH = V.alloc("WHH", 16, 4); WX = V.alloc("WX", 8, 4); RES = V.alloc("RES", 6, 2); POSO = V.alloc("POSO"); OUTA = V.alloc("OUTA")
    iH0 = V.alloc("iH0", 2, 2); iH1 = V.alloc("iH1", 2, 2); iE = V.alloc("iE", 2, 2)
    cBF = V.alloc("cBF"); cHB = V.alloc("cHB")
    aA2 = V.alloc("aA2"); aA3 = V.alloc("aA3"); aRH = V.alloc("aRH"); aRE = V.alloc("aRE"); aBF = V.alloc("aBF")
    vL = V.alloc("vL")
    A0 = V.alloc("A0", 1, 2); A1 = V.alloc("A1"); A2_ = V.alloc("A2"); A3_ = V.alloc("A3"); A4 = V.alloc("A4"); A5 = V.alloc("A5")
    vST = V.alloc("vST") if cfg.dbg else None
    nv = V.hi
    sStg = 3
    sB, sEA, sPOS, sWS, sOUT, sMI = 8, 12, 16, 20, 24, 28
    sW, sSet, sC, sB40 = 32, 33, 34, 35
    sCnt = 36
    sTs, sTf, sI = 42, 43, 45
    sBx, sBx2, sKx = 46, 47, 48
    sBd, sBd2, sKd = 49, 50, 51
    sRingR, sRingW, sStgEnd = 52, 53, 54
    sRem, sRem1, sRem2 = 55, 56, 57
    sMode, sWin, sFirst = 58, 59, 60
    t0, t1, t2, t3, t4, t5 = 61, 62, 63, 64, 65, 66
    sPK, sRet, sWoff, sDPI = 67, 69, 71, 74
    sEn, sTL, sFr = 75, 70, 68
    sH = 76
    sX = 4
    l = vL
    st = lambda i: stamp(a, cfg, vST, i)
    def mfma(dst, A, B, C):
        c_ = "0" if C is None else f"v[{C}:{C+15}]"
        return f"    v_mfma_f32_32x32x16_bf16 v[{dst}:{dst+15}], v[{A}:{A+3}], v[{B}:{B+3}], {c_}"

    a(".globl k2_kernel\n.p2align 8\n.type k2_kernel,@function\nk2_kernel:")
    a(f"    s_cmp_ge_u32 s2, {NB}")
    a("    s_cbranch_scc1 K2_done")
    st(0)
    a(f"    s_load_dwordx2 s[{sWS}:{sWS+1}], s[0:1], 80")
    a(f"    s_load_dwordx2 s[{sH}:{sH+1}], s[0:1], 0")
    a(f"    s_load_dwordx2 s[{sPOS}:{sPOS+1}], s[0:1], 8")
    a(f"    s_load_dwordx2 s[{sMI}:{sMI+1}], s[0:1], 40")
    a(f"    s_load_dwordx2 s[{sEA}:{sEA+1}], s[0:1], 16")
    a(f"    s_load_dwordx2 s[{sOUT}:{sOUT+1}], s[0:1], 64")
    a(f"    s_load_dwordx2 s[72:73], s[0:1], 48")
    a(f"    v_and_b32 v{l}, 63, v0")
    a(f"    v_lshrrev_b32 v{A0}, 6, v0")
    a(f"    v_lshlrev_b32 v{A1}, 4, v0")
    a(f"    v_readfirstlane_b32 s{sW}, v{A0}")
    a(f"    s_mul_i32 s{sB40}, s2, 40")
    a(f"    s_lshl_b32 s{t0}, s2, 13")
    a(f"    s_mov_b32 s{sWS+2}, {WS_USED}\n    s_mov_b32 s{sWS+3}, 0x00020000")
    a(f"    s_mov_b32 s{sH+2}, {N}\n    s_mov_b32 s{sH+3}, 0x00020000")
    a(f"    s_mov_b32 s{sPOS+2}, {N*6+4}\n    s_mov_b32 s{sPOS+3}, 0x00020000")
    a(f"    s_lshr_b32 s{sSet}, s{sW}, 2")
    a(f"    s_and_b32 s{sC}, s{sW}, 3")
    a(f"    v_lshrrev_b32 v{A0}, 4, v{l}")
    a(f"    v_and_b32 v{A2_}, 15, v{l}")
    a(f"    v_xor_b32 v{A2_}, v{A2_}, v{A0}")
    HP0, HP1 = D[0], D[0] + 2
    a(f"    v_lshlrev_b32 v{HP0+1}, 4, v{A2_}")
    a(f"    v_mov_b32 v{HP1+1}, v{HP0+1}")
    a(f"    s_lshl_b32 s{t1}, s{sW}, 3")
    a(f"    s_add_u32 s{t1}, s{t1}, s{sB40}")
    a(f"    v_add_u32 v{HP0}, s{t1}, v{A0}")
    a(f"    v_add_u32 v{HP1}, 4, v{HP0}")
    a(f"    s_mul_i32 s{t2}, s{sW}, {2*QSTR}")
    a(f"    s_add_u32 s{t2}, s{t2}, {HOWN}")
    VL16, VOWN, VWD = D[0] + 4, D[0] + 5, D[0] + 6
    a(f"    v_lshlrev_b32 v{VL16}, 4, v{l}")
    a(f"    v_mul_u32_u24 v{VOWN}, 6, v0")
    a(f"    v_and_b32 v{VWD}, 31, v{l}")
    a(f"    s_lshl_b32 s{t4}, s{sC}, 5")
    a(f"    v_add_u32 v{VWD}, s{t4}, v{VWD}")
    a(f"    v_lshlrev_b32 v{VWD}, 1, v{VWD}")
    a(f"    s_mul_i32 s{t4}, s2, 240")
    a(f"    s_lshl_b32 s{t5}, s{sW}, 12")
    a(f"    s_and_b32 s{sFr}, s2, 7")
    a(f"    s_mul_i32 s{sFr}, s{sFr}, {FRS}")
    a(f"    s_add_u32 s{sFr}, s{sFr}, {WS_FR}")
    a(f"    s_waitcnt lgkmcnt(0)")
    st(1)
    RR = TR; SL = TR + 4; GG = T; PSRC = DPC; OWNP = T + 4; PDST = DPC + 8
    W1F = DP
    WHL = D[1]
    a(f"    buffer_load_dwordx4 v[{RR}:{RR+3}], v{A1}, s[{sWS}:{sWS+3}], s{t0} offen      ; cells")
    Z = M
    WD = XC + 3
    def blockV():
        a(f"    s_or_b32 s{sH+1}, s{sH+1}, 0x1000000")
        a(f"    s_mov_b32 m0, s{t2}")
        a(f"    s_add_u32 s{t2}, s{t2}, {QSTR}")
        a(f"    buffer_load_dwordx4 v[{HP0}:{HP0+1}], s[{sH}:{sH+3}], 0 idxen offen lds")
        a(f"    s_mov_b32 m0, s{t2}")
        a(f"    s_add_u32 s{sWoff}, s{t5}, s{sFr}")
        a(f"    buffer_load_dwordx4 v[{HP1}:{HP1+1}], s[{sH}:{sH+3}], 0 idxen offen lds")
        for j in range(4):
            a(f"    s_add_u32 m0, s{t5}, {STG + j*1024}")
            if j: a(f"    s_add_u32 s{sWoff}, s{sWoff}, 1024")
            else: a(f"    s_nop 0")
            a(f"    buffer_load_dwordx4 v{VL16}, s[{sWS}:{sWS+3}], s{sWoff} offen lds")
        a(f"    s_lshl_b32 s{sWoff}, s{sC}, 10")
        a(f"    s_add_u32 m0, s{sWoff}, {STG + 32768}")
        a(f"    s_add_u32 s{sWoff}, s{sWoff}, s{sFr}")
        a(f"    s_add_u32 s{sWoff}, s{sWoff}, {16*4096}")
        a(f"    buffer_load_dwordx4 v{VL16}, s[{sWS}:{sWS+3}], s{sWoff} offen lds")
        a(f"    buffer_load_dwordx2 v[{OWNP}:{OWNP+1}], v{VOWN}, s[{sPOS}:{sPOS+3}], s{t4} offen")
        a(f"    s_mov_b32 s{sMI+2}, {273*256}\n    s_mov_b32 s{sMI+3}, 0x00020000\n    s_mov_b32 s{t2}, {256*256}")
        a(f"    buffer_load_ushort v{WD}, v{VWD}, s[{sMI}:{sMI+3}], s{t2} offen")
        a(f"    s_lshl_b32 s{sWoff}, s{sW}, 13\n    s_add_u32 s{sWoff}, s{sWoff}, s{sFr}\n    s_add_u32 s{sWoff}, s{sWoff}, {WEF_BYTES}")
        for s_ in range(4):
            a(f"    buffer_load_dwordx4 v[{WHL+4*s_}:{WHL+4*s_+3}], v{VL16}, s[{sWS}:{sWS+3}], s{sWoff} offen offset:{1024*s_}")
    zf = []
    for r in range(NZ):
        if r == 8: zf.append([f"v_add_u32 v{A1}, 65536, v{A1}", f"ds_write_b128 v{A1}, v[{Z}:{Z+3}]"])
        else: zf.append([f"ds_write_b128 v{A1}, v[{Z}:{Z+3}] offset:{(r % 8) * 8192}"])
    c = []
    e_, h_ = A0, A2_
    c += [f"v_and_b32 v{e_}, 31, v{l}", f"v_lshrrev_b32 v{h_}, 5, v{l}"]
    c += [f"v_mul_u32_u24 v{A5}, {A2H - A2L}, v{h_}", f"v_lshl_add_u32 v{aA2}, v{e_}, 4, v{A5}", f"v_add_u32 v{aA2}, {A2L}, v{aA2}"]
    c += [f"v_lshlrev_b32 v{aA3}, 8, v{h_}", f"v_bfe_u32 v{A5}, v{l}, 4, 1", f"v_lshl_add_u32 v{aA3}, v{A5}, 5, v{aA3}", f"v_bfe_u32 v{A5}, v{l}, 2, 2",
          f"v_lshl_add_u32 v{aA3}, v{A5}, 6, v{aA3}", f"v_and_b32 v{A5}, 3, v{l}", f"v_lshl_add_u32 v{aA3}, v{A5}, 3, v{aA3}"]
    c += [f"v_lshl_add_u32 v{cBF}, v{h_}, 8, v{aA3}", f"v_add_u32 v{aA3}, {A3T}, v{aA3}"]
    c += [f"v_lshrrev_b32 v{A5}, 2, v{l}", f"v_lshlrev_b32 v{A5}, 3, v{A5}", f"v_add_u32 v{aRH}, {REC}, v{A5}",
          f"v_lshlrev_b32 v{A5}, 3, v{e_}", f"v_add_u32 v{aRE}, {REC}, v{A5}"]
    c += [f"v_and_b32 v{A5}, 3, v{l}", f"v_lshlrev_b32 v{A5}, 4, v{A5}", f"s_lshl_b32 s{t3}, s{sC}, 6", f"v_add_u32 v{iH0+1}, s{t3}, v{A5}", f"v_mov_b32 v{iH1+1}, v{iH0+1}",
          f"v_lshlrev_b32 v{iE+1}, 4, v{h_}"]
    c += [f"v_bfe_u32 v{A5}, v{l}, 2, 2", f"v_mul_u32_u24 v{cHB}, {QSTR}, v{A5}", f"v_and_b32 v{A5}, 3, v{l}", f"v_lshl_add_u32 v{cHB}, v{A5}, 8, v{cHB}",
          f"v_lshrrev_b32 v{A4}, 4, v{l}", f"v_xor_b32 v{A5}, v{A5}, v{A4}", f"v_lshl_add_u32 v{cHB}, v{A5}, 4, v{cHB}", f"v_add_u32 v{cHB}, {HOWN}, v{cHB}"]
    c += [f"v_and_b32 v{A5}, 1, v{e_}", f"v_lshlrev_b32 v{A5}, 4, v{A5}", f"v_mov_b32 v{A4}, 0x3f80", f"v_lshlrev_b32 v{A4}, v{A5}, v{A4}"]
    c += [f"v_bfe_u32 v{A5}, v{e_}, 1, 2", f"v_lshrrev_b32 v{IDN+7}, 4, v{e_}", f"v_lshl_add_u32 v{A5}, v{IDN+7}, 2, v{A5}", f"v_bfe_u32 v{IDN+7}, v{e_}, 3, 1",
          f"v_cmp_eq_u32 vcc, v{IDN+7}, v{h_}", f"s_nop 1", f"v_cndmask_b32 v{A5}, 15, v{A5}, vcc"]
    for q in range(8):
        c += [f"v_cmp_eq_u32 vcc, {q}, v{A5}", f"s_nop 1", f"v_cndmask_b32 v{IDN+q}, 0, v{A4}, vcc"]
    c += [f"s_add_u32 s{sB}, s{sWS}, {WS_B}", f"s_addc_u32 s{sB+1}, s{sWS+1}, 0", f"s_or_b32 s{sB+1}, s{sB+1}, 0x1000000", f"s_mov_b32 s{sB+2}, {N}", f"s_mov_b32 s{sB+3}, 0x00020000",
          f"s_or_b32 s{sEA+1}, s{sEA+1}, 0x200000", f"s_mov_b32 s{sEA+2}, {E}", f"s_mov_b32 s{sEA+3}, 0x00020000",
          f"s_mov_b32 s{sOUT+2}, {N*256+N*6}", f"s_mov_b32 s{sOUT+3}, 0x00020000",
          f"s_mul_i32 s{sStg}, s{sW}, {NR*SSTR}", f"s_add_u32 s{sStgEnd}, s{sStg}, {NR*SSTR}", f"s_mov_b32 s{sMode}, 0", f"s_mov_b32 s{sFirst}, 1", f"s_mov_b32 s{sDPI}, 0", f"s_mov_b32 s{sEn}, {E}", f"s_mov_b32 s{sTL}, 0"]
    def blockL():
        a(f"    v_lshlrev_b32 v{A1}, 4, v0")
        a(f"    v_add_u32 v{A1}, {ZSTART}, v{A1}")
        for r in range(4): a(f"    v_mov_b32 v{Z+r}, 0")
        ci = 0
        per = (len(c) + len(zf) - 1) // len(zf)
        for k in range(len(zf)):
            for ins in zf[k]: a("    " + ins)
            for ins in c[ci:ci + per]: a("    " + ins)
            ci += per
        for ins in c[ci:]: a("    " + ins)
    a(f"    s_cmp_eq_u32 s{sSet}, 0")
    a(f"    s_cbranch_scc0 K2_L")
    a.label("K2_V")
    blockV()
    a(f"    s_cmp_eq_u32 s{sSet}, 0")
    a(f"    s_cbranch_scc0 K2_VLd")
    a.label("K2_L")
    blockL()
    a(f"    s_cmp_eq_u32 s{sSet}, 0")
    a(f"    s_cbranch_scc0 K2_V")
    a.label("K2_VLd")
    n0 = 13
    if cfg.pf_b:
        a(f"    s_lshr_b32 s{t2}, s2, 3")
        a(f"    s_mul_i32 s{t2}, s{t2}, {646*128}")
        a(f"    s_add_u32 s{t2}, s{t2}, {WS_B}")
        a(f"    v_lshlrev_b32 v{A4}, 7, v0")
        a(f"    buffer_load_dword v{T+8}, v{A4}, s[{sWS}:{sWS+3}], s{t2} offen")
        a(f"    v_cmp_gt_u32 vcc, {646-512}, v0")
        a(f"    v_add_u32 v{A4}, 65536, v{A4}")
        a(f"    v_bfrev_b32 v{A5}, -2")
        a(f"    v_cndmask_b32 v{A4}, v{A5}, v{A4}, vcc")
        a(f"    buffer_load_dword v{T+9}, v{A4}, s[{sWS}:{sWS+3}], s{t2} offen")
        n0 += 2
    npf = 2 if cfg.pf_b else 0
    a(f"    s_waitcnt lgkmcnt(0)")
    a(f"    s_barrier")
    st(2)
    a(f"    s_branch K2_fast")
    a.label("K2_zero")
    for r in range(4): a(f"    v_mov_b32 v{Z+r}, 0")
    a(f"    v_lshlrev_b32 v{A1}, 4, v0")
    a(f"    v_add_u32 v{A1}, {ZSTART}, v{A1}")
    for r in range(NZ):
        if r == 8: a(f"    v_add_u32 v{A1}, 65536, v{A1}")
        a(f"    ds_write_b128 v{A1}, v[{Z}:{Z+3}] offset:{(r % 8) * 8192}")
    a(f"    s_waitcnt lgkmcnt(0)")
    a(f"    s_barrier")
    vCB = A5
    a(f"    s_mul_i32 s{t0}, s{sWin}, {WIN}")
    a(f"    s_add_u32 s{sWin}, s{sWin}, 1")
    a(f"    v_add_u32 v{vCB}, s{t0}, v0")
    a(f"    v_lshlrev_b32 v{A0}, 2, v{vCB}")
    a(f"    s_load_dwordx2 s[{sMI}:{sMI+1}], s[0:1], 24")
    a(f"    s_mov_b32 s{sMI+2}, {E*4}")
    a(f"    s_waitcnt lgkmcnt(0)")
    a(f"    buffer_load_dword v{RR+1}, v{A0}, s[{sMI}:{sMI+3}], 0 offen")
    a(f"    s_waitcnt vmcnt(0)")
    a(f"    s_load_dwordx2 s[{sMI}:{sMI+1}], s[0:1], 32")
    a(f"    s_waitcnt lgkmcnt(0)")
    a(f"    buffer_load_dword v{RR+2}, v{A0}, s[{sMI}:{sMI+3}], 0 offen")
    a(f"    s_waitcnt vmcnt(0)")
    a(f"    v_subrev_u32 v{RR+2}, s{sB40}, v{RR+2}")
    a(f"    v_lshl_or_b32 v{RR}, v{RR+2}, 14, v{RR+1}")
    a(f"    v_cmp_gt_u32 vcc, 40, v{RR+2}")
    a(f"    s_movk_i32 s{t0}, {WIN}")
    a(f"    v_cmp_gt_u32 s[{sX}:{sX+1}], s{t0}, v0")
    a(f"    s_and_b64 vcc, vcc, s[{sX}:{sX+1}]")
    a(f"    s_mov_b32 s{t0}, {E}")
    a(f"    v_cmp_gt_u32 s[{sX}:{sX+1}], s{t0}, v{vCB}")
    a(f"    s_and_b64 vcc, vcc, s[{sX}:{sX+1}]")
    a(f"    s_nop 1")
    a(f"    v_cndmask_b32 v{RR}, -1, v{RR}, vcc")
    a(f"    v_mov_b32 v{RR+1}, -1\n    v_mov_b32 v{RR+2}, -1\n    v_mov_b32 v{RR+3}, -1")
    a(f"    s_branch K2_rank")
    a.label("K2_fast")
    a(f"    v_lshrrev_b32 v{vCB}, 3, v0")
    a(f"    v_mul_u32_u24 v{vCB}, {CH}, v{vCB}")
    a(f"    s_waitcnt vmcnt({n0})")
    st(3)
    a(f"    v_cmp_eq_u32 vcc, -2, v{RR}")
    a(f"    s_cbranch_vccnz K2_mark")
    a.label("K2_rank")
    a(f"    v_mov_b32 v{A0}, 1")
    a(f"    v_bfrev_b32 v{A4}, -2")
    for j in range(4):
        r = RR + j
        a(f"    v_cmp_gt_u32 vcc, -2, v{r}")
        a(f"    v_and_b32 v{A1}, 0x3fff, v{r}")
        a(f"    v_mul_u32_u24 v{A1}, 6, v{A1}")
        a(f"    v_bfe_u32 v{GG+j}, v{r}, 17, 3")
        a(f"    v_cndmask_b32 v{A1}, v{A4}, v{A1}, vcc")
        a(f"    s_and_saveexec_b64 s[{sX}:{sX+1}], vcc")
        a(f"    v_lshlrev_b32 v{A2_}, 2, v{GG+j}")
        a(f"    v_add_u32 v{A2_}, {CNT}, v{A2_}")
        a(f"    ds_add_rtn_u32 v{SL+j}, v{A2_}, v{A0}")
        a(f"    s_mov_b64 exec, s[{sX}:{sX+1}]")
        a(f"    buffer_load_dwordx2 v[{PSRC+2*j}:{PSRC+2*j+1}], v{A1}, s[{sPOS}:{sPOS+3}], 0 offen")
    n1 = 4
    a(f"    s_cmp_eq_u32 s{sFirst}, 0")
    a(f"    s_cbranch_scc1 K2_noown")
    a(f"    s_waitcnt vmcnt({n1 + npf})")
    a(f"    v_cmp_gt_u32 vcc, 48, v0")
    a(f"    s_and_saveexec_b64 s[{sX}:{sX+1}], vcc")
    a(f"    v_lshlrev_b32 v{A1}, 3, v0")
    a(f"    v_add_u32 v{A1}, {POSD}, v{A1}")
    a(f"    ds_write_b64 v{A1}, v[{OWNP}:{OWNP+1}]")
    a(f"    s_mov_b64 exec, s[{sX}:{sX+1}]")
    a.label("K2_noown")
    a(f"    s_waitcnt lgkmcnt(0)")
    a(f"    s_barrier")
    st(4)
    a(f"    v_mov_b32 v{A1}, {CNT}")
    a(f"    ds_read_b128 v[{M}:{M+3}], v{A1}")
    a(f"    ds_read_b64 v[{M+4}:{M+5}], v{A1} offset:16")
    for j in range(4):
        a(f"    v_bfe_u32 v{A2_}, v{RR+j}, 14, 6")
        a(f"    v_lshlrev_b32 v{A2_}, 3, v{A2_}")
        a(f"    v_add_u32 v{A2_}, {POSD}, v{A2_}")
        a(f"    ds_read_b64 v[{PDST+2*j}:{PDST+2*j+1}], v{A2_}")
    a(f"    s_waitcnt lgkmcnt(4)")
    for g in range(6): a(f"    v_readfirstlane_b32 s{sCnt+g}, v{M+g}")
    a(f"    s_cmp_eq_u32 s{sFirst}, 0")
    a(f"    s_cbranch_scc1 K2_nowf")
    a(f"    v_lshlrev_b32 v{A2_}, 4, v{l}")
    a(f"    s_lshl_b32 s{t5}, s{sC}, 10")
    a(f"    v_add_u32 v{A2_}, s{t5}, v{A2_}")
    for q in range(8):
        a(f"    ds_read_b128 v[{W1F+4*q}:{W1F+4*q+3}], v{A2_} offset:{STG + q*4096}")
    a(f"    ds_read_b128 v[{W4F}:{W4F+3}], v{A2_} offset:{STG + 32768}")
    a.label("K2_nowf")
    nt = [t0, t1, t2, t3, t4]
    for g in range(5):
        a(f"    s_add_u32 s{nt[g]}, s{sCnt+g}, 31")
        a(f"    s_lshr_b32 s{nt[g]}, s{nt[g]}, 5")
    a(f"    s_add_u32 s4, s{t0}, s{t1}")
    a(f"    s_add_u32 s5, s4, s{t2}")
    a(f"    s_add_u32 s6, s5, s{t3}")
    a(f"    s_add_u32 s7, s6, s{t4}")
    a(f"    s_cmp_gt_u32 s7, {MAXT}")
    a(f"    s_cselect_b32 s{t5}, 1, 0")
    a(f"    s_or_b32 s{t5}, s{t5}, s{sCnt+5}")
    a(f"    s_cmp_lg_u32 s{t5}, 0")
    a(f"    s_cbranch_scc1 K2_toslow")
    a(f"    s_lshl_b32 s{sPK}, s{t0}, 5")
    a(f"    s_lshl_b32 s{t5}, s4, 10\n    s_or_b32 s{sPK}, s{sPK}, s{t5}")
    a(f"    s_lshl_b32 s{t5}, s5, 15\n    s_or_b32 s{sPK}, s{sPK}, s{t5}")
    a(f"    s_lshl_b32 s{t5}, s6, 20\n    s_or_b32 s{sPK}, s{sPK}, s{t5}")
    for j in range(4):
        r = RR + j
        a(f"    v_cmp_gt_u32 vcc, -2, v{r}")
        a(f"    s_and_saveexec_b64 s[84:85], vcc")
        a(f"    s_cbranch_execz K2_rw{j}")
        a(f"    v_mul_u32_u24 v{A0}, 5, v{GG+j}")
        a(f"    v_bfe_u32 v{A0}, s{sPK}, v{A0}, 5")
        a(f"    v_lshl_add_u32 v{SL+j}, v{A0}, 5, v{SL+j}")
        a(f"    v_lshlrev_b32 v{A0}, 3, v{SL+j}")
        a(f"    v_and_b32 v{A2_}, 0x3fff, v{r}")
        a(f"    v_lshrrev_b32 v{A3_}, 20, v{r}")
        a(f"    v_add_u32 v{A3_}, v{A3_}, v{vCB}")
        a(f"    v_add_u32 v{A0}, {REC}, v{A0}")
        a(f"    ds_write_b64 v{A0}, v[{A2_}:{A3_}]")
        a.label(f"K2_rw{j}")
        a(f"    s_mov_b64 exec, s[84:85]")
    a(f"    s_add_u32 s{t5}, s7, 1")
    a(f"    s_lshr_b32 s{t5}, s{t5}, 1")
    a(f"    s_max_u32 s{t5}, s{t5}, s4")
    a(f"    s_min_u32 s{t5}, s{t5}, s5")
    a(f"    s_sub_u32 s{t3}, s7, s{t5}")
    a(f"    s_sub_u32 s{t4}, s{t5}, s4")
    a(f"    s_lshl_b32 s{t4}, s{t4}, 5")
    a(f"    s_min_u32 s{t1}, s{sCnt+2}, s{t4}")
    a(f"    s_sub_u32 s{t2}, s{sCnt+2}, s{t1}")
    a(f"    s_cmp_eq_u32 s{sSet}, 0")
    a(f"    s_cselect_b32 s{sTf}, 0, s{t5}")
    a(f"    s_cselect_b32 s{sTs}, s{t5}, s{t3}")
    a(f"    s_cselect_b32 s{sBx}, s{t0}, s5")
    a(f"    s_cselect_b32 s{sBx2}, s4, s6")
    a(f"    s_cselect_b32 s{sRem}, s{sCnt}, s{t2}")
    a(f"    s_cselect_b32 s{sRem1}, s{sCnt+1}, s{sCnt+3}")
    a(f"    s_cselect_b32 s{sRem2}, s{t1}, s{sCnt+4}")
    a(f"    s_sub_u32 s{sBx}, s{sBx}, s{sTf}")
    a(f"    s_sub_u32 s{sBx2}, s{sBx2}, s{sTf}")
    a(f"    s_mov_b32 s{sBd}, s{sBx}\n    s_mov_b32 s{sBd2}, s{sBx2}")
    a(f"    s_mov_b32 s{sKx}, 0\n    s_mov_b32 s{sKd}, 0")
    a(f"    s_cmp_eq_u32 s{sMode}, 0")
    a(f"    s_cbranch_scc0 K2_readdr")
    a.label("K2_addrok")
    a(f"    s_lshl_b32 s{t0}, s{sTf}, 9")
    a(f"    v_add_u32 v{aA2}, s{t0}, v{aA2}")
    a(f"    s_lshl_b32 s{t0}, s{sTf}, 11")
    a(f"    v_add_u32 v{aA3}, s{t0}, v{aA3}")
    a(f"    s_lshl_b32 s{t0}, s{sTf}, 8")
    a(f"    v_add_u32 v{aRH}, s{t0}, v{aRH}")
    a(f"    v_add_u32 v{aRE}, s{t0}, v{aRE}")
    a(f"    s_waitcnt lgkmcnt(0)")
    a(f"    s_barrier")
    st(5)
    a(f"    s_mov_b32 s{sB+2}, {N}")
    a(f"    s_mov_b32 s{sEA+2}, s{sEn}")
    PI = D[0]
    a(f"    ds_read_u16 v{PI+0}, v{aRH}")
    a(f"    ds_read_u16 v{PI+2}, v{aRH} offset:128")
    a(f"    ds_read_b32 v{PI+4}, v{aRE} offset:4")
    PJ = WHH
    a(f"    ds_read_u16 v{PJ+0}, v{aRH} offset:256")
    a(f"    ds_read_u16 v{PJ+2}, v{aRH} offset:{256+128}")
    a(f"    ds_read_b32 v{PJ+4}, v{aRE} offset:{256+4}")
    a(f"    ds_read_u16 v{iH0}, v{aRH} offset:512")
    a(f"    ds_read_u16 v{iH1}, v{aRH} offset:{512+128}")
    a(f"    ds_read_b32 v{iE}, v{aRE} offset:{512+4}")
    for p_ in (PI + 1, PI + 3, PJ + 1, PJ + 3): a(f"    v_mov_b32 v{p_}, v{iH0+1}")
    for p_ in (PI + 5, PJ + 5): a(f"    v_mov_b32 v{p_}, v{iE+1}")
    def b_issue(p0, p1, ringreg):
        a(f"    s_mov_b32 m0, s{ringreg}")
        a(f"    s_add_u32 s4, s{ringreg}, 1024")
        a(f"    buffer_load_dwordx4 v[{p0}:{p0+1}], s[{sB}:{sB+3}], 0 idxen offen lds")
        a(f"    s_mov_b32 m0, s4")
        a(f"    s_nop 0")
        a(f"    buffer_load_dwordx4 v[{p1}:{p1+1}], s[{sB}:{sB+3}], 0 idxen offen lds")
    def e_issue(pair, dst):
        a(f"    buffer_load_dwordx4 v[{dst}:{dst+3}], v[{pair}:{pair+1}], s[{sEA}:{sEA+3}], 0 idxen offen")
    a(f"    s_waitcnt lgkmcnt(6)")
    b_issue(PI + 0, PI + 2, sStg)
    e_issue(PI + 4, EFB[0])
    st(6)
    a(f"    s_cmp_eq_u32 s{sFirst}, 0")
    a(f"    s_cbranch_scc1 K2_noX")
    a(f"    s_mov_b32 s{sFirst}, 0")
    a(f"    v_and_b32 v{A0}, 31, v{l}")
    a(f"    s_lshl_b32 s{t0}, s{sSet}, 4")
    a(f"    v_add_u32 v{A0}, s{t0}, v{A0}")
    a(f"    v_lshrrev_b32 v{A1}, 2, v{A0}")
    a(f"    v_mul_u32_u24 v{A1}, {QSTR}, v{A1}")
    a(f"    v_and_b32 v{A4}, 3, v{A0}")
    a(f"    v_lshl_add_u32 v{A1}, v{A4}, 8, v{A1}")
    a(f"    v_add_u32 v{A1}, {HOWN}, v{A1}")
    a(f"    v_lshrrev_b32 v{A5}, 5, v{l}")
    a(f"    v_xor_b32 v{A5}, v{A5}, v{A4}")
    a(f"    v_lshl_add_u32 v{A0}, v{A5}, 4, v{A1}")
    a(f"    v_xor_b32 v{A5}, 2, v{A5}")
    a(f"    v_lshl_add_u32 v{A1}, v{A5}, 4, v{A1}")
    XA = D[0]
    FR = T
    fr = [BF, BF + 4, AF, M]
    a(f"    s_waitcnt lgkmcnt(0)")
    for half in range(2):
        for u in range(4):
            s_ = half * 4 + u
            ad = A0 if s_ % 2 == 0 else A1
            a(f"    ds_read_b128 v[{fr[u]}:{fr[u]+3}], v{ad} offset:{(s_ >> 1) * 64}")
        for u in range(4):
            s_ = half * 4 + u
            a(f"    s_waitcnt lgkmcnt({3-u})")
            a(mfma(XA, fr[u], W1F + 4 * s_, None if s_ == 0 else XA))
    for ntile in range(3):
        for s_ in range(4):
            dst = DP + (ntile * 4 + s_) * 4
            a(f"    ds_read_b128 v[{dst}:{dst+3}], v{cHB} offset:{ntile * 4 * QSTR + 64 * s_}")
    a(f"    v_lshrrev_b32 v{A4}, 4, v{l}")
    a(f"    v_lshrrev_b32 v{A5}, 1, v{A4}")
    a(f"    s_lshl_b32 s{t0}, s{sW}, 1")
    a(f"    v_add_u32 v{A5}, s{t0}, v{A5}")
    a(f"    v_and_b32 v{A0}, 3, v{l}")
    a(f"    v_xor_b32 v{A5}, v{A5}, v{A0}")
    a(f"    v_lshlrev_b32 v{A5}, 4, v{A5}")
    a(f"    v_and_b32 v{A4}, 1, v{A4}")
    a(f"    v_lshl_add_u32 v{A5}, v{A4}, 3, v{A5}")
    a(f"    v_lshl_add_u32 v{A5}, v{A0}, 8, v{A5}")
    a(f"    v_bfe_u32 v{A4}, v{l}, 2, 2")
    a(f"    v_mul_u32_u24 v{A4}, {QSTR}, v{A4}")
    a(f"    v_add3_u32 v{A5}, v{A5}, v{A4}, v{A1}" if False else f"    v_add_u32 v{A5}, v{A5}, v{A4}")
    a(f"    v_add_u32 v{A5}, {HOWN}, v{A5}")
    for ntile in range(3):
        a(f"    ds_read_b64 v[{RES+2*ntile}:{RES+2*ntile+1}], v{A5} offset:{ntile * 4 * QSTR}")
    cs = -LOG2E
    a(f"    s_mov_b32 s{t0}, {hex(f32bits(cs))}")
    a(f"    v_lshlrev_b32 v{WD}, 16, v{WD}")
    a(f"    v_mul_f32 v{WD}, s{t0}, v{WD}")
    a(f"    v_cvt_pk_bf16_f32 v{A4}, v{WD}, v{WD}")
    a(f"    v_and_b32 v{A5}, 0xffff0000, v{A4}")
    a(f"    v_sub_f32 v{A0}, v{WD}, v{A5}")
    a(f"    v_cvt_pk_bf16_f32 v{A4}, v{A5}, v{A0}")
    a(f"    v_cmp_gt_u32 vcc, 32, v{l}")
    a(f"    s_nop 1")
    a(f"    v_cndmask_b32 v{A4}, 0, v{A4}, vcc")
    for ntile in range(3):
        for s_ in range(4):
            src = DP + (ntile * 4 + s_) * 4
            a(f"    s_waitcnt lgkmcnt({11 - (ntile*4+s_) + 3})" )
            c_ = "0" if s_ == 0 else f"v[{HP+4*ntile}:{HP+4*ntile+3}]"
            a(f"    v_mfma_f32_16x16x32_bf16 v[{HP+4*ntile}:{HP+4*ntile+3}], v[{WHL+4*s_}:{WHL+4*s_+3}], v[{src}:{src+3}], {c_}")
    for j in range(3):
        b_ = XA + 4 * j
        a(f"    v_mul_f32 v{b_}, s{t0}, v{b_}\n    v_mul_f32 v{b_+1}, s{t0}, v{b_+1}\n    v_mul_f32 v{b_+2}, s{t0}, v{b_+2}\n    v_mul_f32 v{b_+3}, s{t0}, v{b_+3}")
        x = X + 4 * j
        a(f"    v_cvt_pk_bf16_f32 v{x}, v{b_}, v{b_+1}")
        a(f"    v_cvt_pk_bf16_f32 v{x+1}, v{b_+2}, v{b_+3}")
        a(f"    v_mov_b32 v{x+2}, v{A4}")
        a(f"    v_mov_b32 v{x+3}, 0")
        a(f"    s_nop 1")
        a(f"    v_permlane32_swap_b32 v{x}, v{x+2}")
        a(f"    v_permlane32_swap_b32 v{x+1}, v{x+3}")
    a.label("K2_noX")
    a(f"    s_waitcnt lgkmcnt(0)")
    a(f"    s_add_u32 s{t0}, s{sStg}, {SSTR}")
    b_issue(PJ + 0, PJ + 2, t0)
    e_issue(PJ + 4, EFB[1])
    for r in range(4): a(f"    v_mov_b32 v{XC+r}, v{X+r}")
    st(7)
    a(f"    s_waitcnt vmcnt(6) lgkmcnt(0)")
    for j in range(4):
        r = RR + j
        ps, pd = PSRC + 2 * j, PDST + 2 * j
        a(f"    v_cmp_gt_u32 vcc, -2, v{r}")
        a(f"    s_and_saveexec_b64 s[{sX}:{sX+1}], vcc")
        a(f"    s_cbranch_execz K2_bd{j}")
        h0, h1, h2, h3 = BF, BF + 1, BF + 2, BF + 3
        a(f"    v_lshlrev_b32 v{h0}, 16, v{pd}\n    v_lshlrev_b32 v{h1}, 16, v{ps}\n    v_sub_f32 v{h0}, v{h0}, v{h1}")
        a(f"    v_and_b32 v{h1}, 0xffff0000, v{pd}\n    v_and_b32 v{h2}, 0xffff0000, v{ps}\n    v_sub_f32 v{h1}, v{h1}, v{h2}")
        a(f"    v_lshlrev_b32 v{h2}, 16, v{pd+1}\n    v_lshlrev_b32 v{h3}, 16, v{ps+1}\n    v_sub_f32 v{h2}, v{h2}, v{h3}")
        g0, g1, g2, g3 = AF, AF + 1, AF + 2, AF + 3
        a(f"    v_cvt_pk_bf16_f32 v{g0}, v{h0}, v{h1}")
        a(f"    v_cvt_pk_bf16_f32 v{g1}, v{h2}, v{h2}")
        a(f"    v_lshlrev_b32 v{h0}, 16, v{g0}\n    v_and_b32 v{h1}, 0xffff0000, v{g0}\n    v_and_b32 v{h2}, 0xffff0000, v{g1}")
        a(f"    v_mul_f32 v{h0}, v{h0}, v{h0}\n    v_mul_f32 v{h1}, v{h1}, v{h1}\n    v_mul_f32 v{h2}, v{h2}, v{h2}")
        a(f"    v_cvt_pk_bf16_f32 v{g2}, v{h0}, v{h1}\n    v_cvt_pk_bf16_f32 v{g3}, v{h2}, v{h2}")
        a(f"    v_lshlrev_b32 v{h0}, 16, v{g2}\n    v_and_b32 v{h1}, 0xffff0000, v{g2}\n    v_and_b32 v{h2}, 0xffff0000, v{g3}")
        a(f"    v_add_f32 v{h0}, v{h0}, v{h1}\n    v_add_f32 v{h0}, v{h0}, v{h2}")
        a(f"    v_cvt_pk_bf16_f32 v{g2}, v{h0}, v{h0}")
        a(f"    v_mov_b32 v{h0}, 0x3f80")
        a(f"    v_lshl_or_b32 v{h2}, v{g0}, 16, v{h0}")
        a(f"    v_alignbit_b32 v{h3}, v{g1}, v{g0}, 16")
        a(f"    v_bfe_u32 v{A1}, v{r}, 14, 3")
        a(f"    v_lshlrev_b32 v{A4}, 6, v{SL+j}")
        a(f"    v_lshl_add_u32 v{A4}, v{A1}, 3, v{A4}")
        a(f"    v_add_u32 v{A4}, {A3T}, v{A4}")
        a(f"    ds_write_b64 v{A4}, v[{h2}:{h3}]")
        a(f"    v_lshlrev_b32 v{A4}, 4, v{SL+j}")
        a(f"    v_add_u32 v{A5}, {A2H}, v{A4}")
        a(f"    ds_write_b32 v{A5}, v{g2}")
        a(f"    v_lshl_add_u32 v{A4}, v{A1}, 1, v{A4}")
        a(f"    v_add_u32 v{A4}, {A2L}, v{A4}")
        a(f"    ds_write_b16 v{A4}, v{h0}")
        a.label(f"K2_bd{j}")
        a(f"    s_mov_b64 exec, s[{sX}:{sX+1}]")
    a(f"    s_cmp_eq_u32 s{sDPI}, 1")
    a(f"    s_cbranch_scc1 K2_nodp")
    for r in range(48): a(f"    v_mov_b32 v{DP+r}, 0")
    a(f"    s_mov_b32 s{sDPI}, 1")
    a.label("K2_nodp")
    for r in range(16): a(f"    v_mov_b32 v{DPC+r}, 0")
    a(f"    s_mov_b32 s{sI}, -1")
    a(f"    s_mov_b32 s{sRingR}, s{sStg}")
    a(f"    s_add_u32 s{sRingW}, s{sStg}, {2*SSTR}")
    a(f"    v_add_u32 v{aBF}, s{sRingR}, v{cBF}")
    a(f"    v_add_u32 v{aRH}, {3*256}, v{aRH}")
    a(f"    v_add_u32 v{aRE}, {3*256}, v{aRE}")
    a(f"    v_subrev_u32 v{aA3}, 2048, v{aA3}")
    a(f"    s_waitcnt lgkmcnt(0)")
    st(8)
    a(f"    s_barrier")
    st(9)
    if cfg.only_set >= 0:
        a(f"    s_cmp_eq_u32 s{sSet}, {cfg.only_set}")
        a(f"    s_cselect_b32 s{sTs}, s{sTs}, 0")
    if cfg.prio >= 0:
        a(f"    s_cmp_eq_u32 s{sSet}, {cfg.prio}")
        a(f"    s_cbranch_scc0 K2_noprio")
        a(f"    s_setprio 1")
        a.label("K2_noprio")
    a(f"    s_cmp_eq_u32 s{sTs}, 0")
    a(f"    s_cbranch_scc1 K2_loopdone")

    def top(with_tr=True):
        a(f"    s_waitcnt vmcnt(3)")
        for u in range(4):
            a(f"    ds_read_b64_tr_b16 v[{BF+2*u}:{BF+2*u+1}], v{aBF} offset:{[0, 256, 1024, 1280][u]}")
        a(f"    ds_read_b128 v[{AF}:{AF+3}], v{aA2}")
        if with_tr:
            for u in range(4):
                a(f"    ds_read_b64_tr_b16 v[{TR+2*u}:{TR+2*u+1}], v{aA3} offset:{512*u}")
        a(f"    s_add_u32 s5, s{sI}, 3")
        a(f"    s_cmp_lt_i32 s5, s{sTs}")
        a(f"    s_cselect_b32 s{sB+2}, {0 if cfg.ab_nob else N}, 0")
        a(f"    s_cselect_b32 s{sEA+2}, " + ("0" if cfg.ab_noe else f"s{sEn}") + ", 0")
        b_issue(iH0, iH1, sRingW)
        a(f"    ds_read_u16 v{iH0}, v{aRH}")
        a(f"    ds_read_u16 v{iH1}, v{aRH} offset:128")
        a(f"    s_mov_b32 s{sRingW}, s{sRingR}")
        a(f"    s_add_u32 s{sRingR}, s{sRingR}, {SSTR}")
        a(f"    s_cmp_eq_u32 s{sRingR}, s{sStgEnd}")
        a(f"    s_cselect_b32 s{sRingR}, s{sStg}, s{sRingR}")
        a(f"    v_add_u32 v{aA2}, 512, v{aA2}")
        a(f"    v_add_u32 v{aA3}, 2048, v{aA3}")
        a(f"    v_add_u32 v{aRH}, 256, v{aRH}")
    def after_ef(EFc):
        e_issue(iE, EFc)
        a(f"    ds_read_b32 v{iE}, v{aRE} offset:4")
        a(f"    v_add_u32 v{aRE}, 256, v{aRE}")
        a(f"    v_add_u32 v{aBF}, s{sRingR}, v{cBF}")
    def xcheck(ret):
        a(f"    s_add_u32 s4, s{sI}, 1")
        a(f"    s_cmp_eq_u32 s4, s{sBx}")
        a(f"    s_cbranch_scc1 K2_xsw{ret}")
        a.label(f"K2_xret{ret}")
    def dcheck(ret):
        a(f"    s_cmp_eq_u32 s{sI}, s{sBd}")
        a(f"    s_cbranch_scc1 K2_dsw{ret}")
        a.label(f"K2_dret{ret}")
    def silu_h(Dc, hf, mids):
        d = Dc + 8 * hf
        for k, m_ in enumerate(mids):
            pass
        if mids[0]: mids[0]()
        for i in range(4): a(f"    v_exp_f32 v{T+i}, v{d+i}")
        if mids[1]: mids[1]()
        for i in range(4, 8): a(f"    v_exp_f32 v{T+i}, v{d+i}")
        for i in range(0, 8, 2): a(f"    v_pk_add_f32 v[{T+i}:{T+i+1}], v[{T+i}:{T+i+1}], 1.0 op_sel_hi:[1,0]")
        if mids[2]: mids[2]()
        for i in range(4): a(f"    v_rcp_f32 v{T+i}, v{T+i}")
        if mids[3]: mids[3]()
        for i in range(4, 8): a(f"    v_rcp_f32 v{T+i}, v{T+i}")
        for i in range(0, 8, 2): a(f"    v_pk_mul_f32 v[{T+8+i}:{T+8+i+1}], v[{d+i}:{d+i+1}], v[{T+i}:{T+i+1}]")
        for i in range(4): a(f"    v_cvt_pk_bf16_f32 v{M+4*hf+i}, v{T+8+2*i}, v{T+8+2*i+1}")
    def silu_q(Dc, q):
        d = Dc + 4 * q
        for i in range(4): a(f"    v_exp_f32 v{T+i}, v{d+i}")
        a(f"    s_nop 0")
        for i in range(0, 4, 2): a(f"    v_pk_add_f32 v[{T+i}:{T+i+1}], v[{T+i}:{T+i+1}], 1.0 op_sel_hi:[1,0]")
        for i in range(4): a(f"    v_rcp_f32 v{T+i}, v{T+i}")
        a(f"    s_nop 0")
        for i in range(0, 4, 2): a(f"    v_pk_mul_f32 v[{T+8+i}:{T+8+i+1}], v[{d+i}:{d+i+1}], v[{T+i}:{T+i+1}]")
        for i in range(2): a(f"    v_cvt_pk_bf16_f32 v{M+2*q+i}, v{T+8+2*i}, v{T+8+2*i+1}")
    def endit():
        a(f"    s_add_u32 s{sI}, s{sI}, 1")
        a(f"    s_add_u32 s4, s{sI}, 1")
        a(f"    s_cmp_ge_u32 s4, s{sTs}")

    top(with_tr=False)
    xcheck(2)
    Dn = D[1]
    a(mfma(Dn, EFB[0], W4F, None))
    after_ef(EFB[0])
    a(f"    s_waitcnt lgkmcnt(3)")
    a(mfma(Dn, AF, XC, Dn))
    a(mfma(Dn, IDN, BF, Dn))
    a(mfma(Dn, IDN + 4, BF + 4, Dn))
    endit()
    a(f"    s_cbranch_scc1 K2_epi1")
    a(f"    s_branch K2_it1")

    def body(p):
        Dc, Dn = D[p], D[1 - p]
        EFc = EFB[p]
        a.label(f"K2_it{p}")
        top()
        xcheck(p)
        f = lambda ins: (lambda: a(ins))
        def m_ef():
            a(mfma(Dn, EFc, W4F, None))
        def m_af():
            a(f"    s_waitcnt lgkmcnt(7)")
            a(mfma(Dn, AF, XC, Dn))
        def seg0():
            a(mfma(DPC, M, TR, DPC))
        dcheck(p)
        if cfg.qskip:
            a(f"    s_cmp_lt_u32 s{sRem}, 25")
            a(f"    s_cbranch_scc1 K2_part{p}")
        m_ef()
        after_ef(EFc)
        silu_h(Dc, 0, [None, m_af, f(mfma(Dn, IDN, BF, Dn)), f(mfma(Dn, IDN + 4, BF + 4, Dn))])
        a(f"    s_waitcnt lgkmcnt(0)")
        silu_h(Dc, 1, [None, seg0, None, None])
        a(f"    s_nop 1")
        a(mfma(DPC, M + 4, TR + 4, DPC))
        a.label(f"K2_join{p}")
        a(f"    s_sub_u32 s{sRem}, s{sRem}, 32")
        endit()
        a(f"    s_cbranch_scc1 K2_epi{1-p}")
    _l0 = len(a.lines)
    body(1)
    body(0)
    new = []
    for ln in "\n".join(a.lines[_l0:]).split("\n"):
        t = ln.strip()
        if cfg.l_nolds and t.startswith("ds_read") and "u16" not in t and "ds_read_b32" not in t: continue
        if cfg.l_novm and t.startswith("buffer_load"): continue
        if cfg.l_nomf and t.startswith("v_mfma"): continue
        if cfg.l_nosi and t.startswith(("v_exp", "v_rcp", "v_pk_", "v_cvt_pk")): continue
        if cfg.l_nopk and t.startswith("v_pk_add"):
            import re
            m = re.match(r"v_pk_add_f32 v\[(\d+):(\d+)\]", t)
            new.append(f"    v_add_f32 v{m.group(1)}, 1.0, v{m.group(1)}"); new.append(f"    v_add_f32 v{m.group(2)}, 1.0, v{m.group(2)}"); continue
        if cfg.l_nopk and t.startswith("v_pk_mul"):
            import re
            m = re.match(r"v_pk_mul_f32 v\[(\d+):(\d+)\], v\[(\d+):(\d+)\], v\[(\d+):(\d+)\]", t)
            g = list(map(int, m.groups()))
            new.append(f"    v_mul_f32 v{g[0]}, v{g[2]}, v{g[4]}"); new.append(f"    v_mul_f32 v{g[1]}, v{g[3]}, v{g[5]}"); continue
        new.append(ln)
    a.lines[_l0:] = new
    a(f"    s_branch K2_it1")

    def partial(p, epi):
        Dc = D[p]
        tag = f"e" if epi else f"{p}"
        for q in range(3):
            a(f"    s_cmp_gt_i32 s{sRem}, {8*q}")
            a(f"    s_cbranch_scc0 K2_pz{tag}_{q}")
            silu_q(Dc, q)
        a(f"    s_branch K2_pz{tag}_3")
        for q in range(3):
            a.label(f"K2_pz{tag}_{q}")
            a(f"    v_mov_b32 v{M+2*q}, 0\n    v_mov_b32 v{M+2*q+1}, 0")
        a.label(f"K2_pz{tag}_3")
        a(f"    v_mov_b32 v{M+6}, 0\n    v_mov_b32 v{M+7}, 0")
    if cfg.qskip:
        for p in (0, 1):
            Dn = D[1 - p]
            a.label(f"K2_part{p}")
            a(mfma(Dn, EFB[p], W4F, None))
            after_ef(EFB[p])
            a(f"    s_waitcnt lgkmcnt(7)")
            a(mfma(Dn, AF, XC, Dn))
            a(mfma(Dn, IDN, BF, Dn))
            a(mfma(Dn, IDN + 4, BF + 4, Dn))
            partial(p, False)
            a(f"    s_waitcnt lgkmcnt(0)")
            a(mfma(DPC, M, TR, DPC))
            a(mfma(DPC, M + 4, TR + 4, DPC))
            a(f"    s_branch K2_join{p}")

    for ret in (0, 1, 2):
        a.label(f"K2_xsw{ret}")
        a(f"    s_mov_b32 s{sRet}, {ret}")
        if ret != 2: a(f"    s_branch K2_xsw")
    a.label("K2_xsw")
    a(f"    s_add_u32 s{sKx}, s{sKx}, 1")
    a(f"    s_mov_b32 s{sBx}, s{sBx2}")
    a(f"    s_mov_b32 s{sBx2}, -1")
    a(f"    s_cmp_eq_u32 s{sKx}, 1")
    a(f"    s_cbranch_scc0 K2_xsw_2")
    for r in range(4): a(f"    v_mov_b32 v{XC+r}, v{X+4+r}")
    a(f"    s_branch K2_xsw_c")
    a.label("K2_xsw_2")
    for r in range(4): a(f"    v_mov_b32 v{XC+r}, v{X+8+r}")
    a.label("K2_xsw_c")
    a(f"    s_cmp_eq_u32 s4, s{sBx}")
    a(f"    s_cbranch_scc1 K2_xsw")
    a(f"    s_cmp_eq_u32 s{sRet}, 0\n    s_cbranch_scc1 K2_xret0")
    a(f"    s_cmp_eq_u32 s{sRet}, 1\n    s_cbranch_scc1 K2_xret1")
    a(f"    s_branch K2_xret2")
    rets = [0, 1, 2, 3]
    for ret in rets:
        a.label(f"K2_dsw{ret}")
        a(f"    s_mov_b32 s{sRet}, {ret}")
        if ret != rets[-1]: a(f"    s_branch K2_dsw")
    a.label("K2_dsw")
    a(f"    s_nop 7\n    s_nop 7")
    a(f"    s_cmp_eq_u32 s{sKd}, 1\n    s_cbranch_scc1 K2_dsw_1")
    a(f"    s_cmp_eq_u32 s{sKd}, 2\n    s_cbranch_scc1 K2_dsw_2")
    for k in range(3):
        if k: a.label(f"K2_dsw_{k}")
        for r in range(16): a(f"    v_add_f32 v{DP+16*k+r}, v{DP+16*k+r}, v{DPC+r}")
        if k < 2: a(f"    s_branch K2_dsw_c")
    a.label("K2_dsw_c")
    for r in range(16): a(f"    v_mov_b32 v{DPC+r}, 0")
    a(f"    s_add_u32 s{sKd}, s{sKd}, 1")
    a(f"    s_cmp_eq_u32 s{sKd}, 1")
    a(f"    s_cselect_b32 s{sRem}, s{sRem1}, s{sRem2}")
    a(f"    s_mov_b32 s{sBd}, s{sBd2}")
    a(f"    s_mov_b32 s{sBd2}, -1")
    a(f"    s_cmp_eq_u32 s{sRet}, 3\n    s_cbranch_scc1 K2_dret3")
    a(f"    s_cmp_eq_u32 s{sI}, s{sBd}")
    a(f"    s_cbranch_scc1 K2_dsw")
    a(f"    s_nop 1")
    for ret in rets:
        if ret == 3: continue
        a(f"    s_cmp_eq_u32 s{sRet}, {ret}\n    s_cbranch_scc1 K2_dret{ret}")
    a(f"    s_endpgm")
    a.label("K2_mark")
    a(f"    v_mov_b32 v{A0}, 1")
    a(f"    v_mov_b32 v{A1}, {CNT + 20}")
    a(f"    ds_write_b32 v{A1}, v{A0}")
    a(f"    s_branch K2_rank")
    a.label("K2_toslow")
    a(f"    s_mov_b32 s{sMode}, 1")
    a(f"    s_mov_b32 s{sWin}, 0")
    a(f"    s_waitcnt vmcnt(0)")
    a(f"    s_barrier")
    a(f"    s_branch K2_zero")
    a.label("K2_readdr")
    a(f"    v_and_b32 v{A0}, 31, v{l}\n    v_lshrrev_b32 v{A2_}, 5, v{l}")
    a(f"    v_mul_u32_u24 v{A4}, {A2H - A2L}, v{A2_}\n    v_lshl_add_u32 v{aA2}, v{A0}, 4, v{A4}\n    v_add_u32 v{aA2}, {A2L}, v{aA2}")
    a(f"    v_lshlrev_b32 v{A4}, 8, v{A2_}\n    v_sub_u32 v{aA3}, v{cBF}, v{A4}\n    v_add_u32 v{aA3}, {A3T}, v{aA3}")
    a(f"    v_lshrrev_b32 v{A4}, 2, v{l}\n    v_lshlrev_b32 v{A4}, 3, v{A4}\n    v_add_u32 v{aRH}, {REC}, v{A4}")
    a(f"    v_lshlrev_b32 v{A4}, 3, v{A0}\n    v_add_u32 v{aRE}, {REC}, v{A4}")
    a(f"    s_branch K2_addrok")

    a.label("K2_epi0")
    for r in range(16): a(f"    v_mov_b32 v{D[1]+r}, v{D[0]+r}")
    def tail_loads():
        a(f"    v_lshlrev_b32 v{A0}, 4, v{l}")
        a(f"    s_lshl_b32 s{t1}, s{sW}, 13")
        a(f"    s_add_u32 s{t1}, s{t1}, s{sFr}")
        a(f"    s_add_u32 s{t1}, s{t1}, {WEF_BYTES + 4096}")
        a(f"    s_mov_b32 s84, s72\n    s_mov_b32 s85, s73\n    s_mov_b32 s86, 256\n    s_mov_b32 s87, 0x00020000")
        a(f"    v_lshrrev_b32 v{A1}, 5, v{l}\n    v_lshlrev_b32 v{A1}, 3, v{A1}\n    s_lshl_b32 s{t2}, s{sC}, 6")
        for s_ in range(2):
            for u in range(2):
                a(f"    buffer_load_dwordx2 v[{WX+4*s_+2*u}:{WX+4*s_+2*u+1}], v{A1}, s[84:87], s{t2} offen offset:{32*s_+16*u}")
        for s_ in range(4):
            a(f"    buffer_load_dwordx4 v[{WHH+4*s_}:{WHH+4*s_+3}], v{A0}, s[{sWS}:{sWS+3}], s{t1} offen offset:{1024*s_}")
    a.label("K2_epi1")
    st(18)
    for u in range(4):
        a(f"    ds_read_b64_tr_b16 v[{TR+2*u}:{TR+2*u+1}], v{aA3} offset:{512*u}")
    a(f"    s_cmp_eq_u32 s{sMode}, 0")
    a(f"    s_cbranch_scc0 K2_epib")
    a(f"    s_mov_b32 s{sTL}, 1")
    tail_loads()
    a.label("K2_epib")
    dcheck(2)
    if cfg.qskip:
        a(f"    s_cmp_lt_u32 s{sRem}, 25")
        a(f"    s_cbranch_scc1 K2_parte")
    silu_h(D[1], 0, [None, None, None, None])
    silu_h(D[1], 1, [None, None, None, None])
    if cfg.qskip:
        a(f"    s_branch K2_epij")
        a.label("K2_parte")
        partial(1, True)
        a.label("K2_epij")
    a(f"    s_waitcnt lgkmcnt(0)")
    a(mfma(DPC, M, TR, DPC))
    a(mfma(DPC, M + 4, TR + 4, DPC))
    a(f"    s_nop 3")
    a(f"    s_branch K2_dsw3")
    a.label("K2_dret3")
    a.label("K2_loopdone")
    st(10)
    a(f"    s_cmp_eq_u32 s{sMode}, 0")
    a(f"    s_cbranch_scc1 K2_tail")
    a(f"    s_waitcnt vmcnt(0)")
    a(f"    s_barrier")
    a(f"    s_mul_i32 s{t0}, s{sWin}, {WIN}")
    a(f"    s_cmp_ge_u32 s{t0}, {E}")
    a(f"    s_cbranch_scc0 K2_zero")
    a.label("K2_tail")
    a(f"    s_cmp_eq_u32 s{sTL}, 1")
    a(f"    s_cbranch_scc1 K2_tail2")
    tail_loads()
    a.label("K2_tail2")
    a(f"    v_bfe_u32 v{A0}, v{l}, 2, 3")
    a(f"    v_lshrrev_b32 v{A1}, 2, v{A0}")
    a(f"    v_mul_u32_u24 v{A1}, {QSTR}, v{A1}")
    a(f"    v_and_b32 v{A3_}, 3, v{A0}")
    a(f"    v_lshl_add_u32 v{A1}, v{A3_}, 8, v{A1}")
    a(f"    v_lshl_add_u32 v{A1}, v{A3_}, 4, v{A1}")
    a(f"    v_lshrrev_b32 v{A3_}, 5, v{l}")
    a(f"    v_lshl_add_u32 v{A1}, v{A3_}, 3, v{A1}")
    a(f"    s_lshl_b32 s{t1}, s{sC}, 6")
    a(f"    s_add_u32 s{t1}, s{t1}, {HOWN}")
    a(f"    v_add_u32 v{A1}, s{t1}, v{A1}")
    PK = T
    PKr = [T, T + 8, BF]
    for k in range(3):
        dp = DP + 16 * k
        for u in range(8):
            a(f"    v_cvt_pk_bf16_f32 v{PKr[k]+u}, v{dp+2*u}, v{dp+2*u+1}")
    TD = [D[0], D[1], DPC]
    a(f"    s_waitcnt vmcnt(4)")
    for k in range(3):
        a(mfma(TD[k], WX, PKr[k], None))
        a(mfma(TD[k], WX + 4, PKr[k] + 4, TD[k]))
    a(f"    s_mov_b32 s{sX}, 0x11111111\n    s_mov_b32 s{sX+1}, 0x11111111")
    a(f"    s_cmp_eq_u32 s{sSet}, 0")
    for k in range(3):
        rb0, rb1 = 8 * k, [48, 24, 32][k]
        a(f"    s_mov_b32 s{t1}, {rb1 // 4 * QSTR}")
        a(f"    s_cselect_b32 s{t1}, {rb0 // 4 * QSTR}, s{t1}")
        a(f"    v_add_u32 v{A5}, s{t1}, v{A1}")
        a(f"    v_xor_b32 v{A0}, 16, v{A5}\n    v_xor_b32 v{A2_}, 32, v{A5}\n    v_xor_b32 v{A3_}, 48, v{A5}")
        a(f"    s_mov_b64 exec, s[{sX}:{sX+1}]")
        for j, ad in enumerate((A5, A0, A2_, A3_)):
            a(f"    ds_write_b64 v{ad}, v[{PKr[k]+2*j}:{PKr[k]+2*j+1}]")
        a(f"    s_mov_b64 exec, -1")
    a(f"    v_and_b32 v{A4}, 31, v{l}")
    a(f"    v_lshlrev_b32 v{A4}, 2, v{A4}")
    a(f"    s_mul_i32 s{t2}, s{sSet}, {3*512}")
    a(f"    s_lshl_b32 s{t1}, s{sC}, 7")
    a(f"    s_add_u32 s{t2}, s{t2}, s{t1}")
    a(f"    s_add_u32 s{t2}, s{t2}, {PPO}")
    a(f"    v_add_u32 v{A5}, s{t2}, v{A4}")
    a(f"    s_mov_b32 s6, -1\n    s_mov_b32 s7, 0")
    a(f"    s_mov_b64 exec, s[6:7]")
    for k in range(3):
        a(f"    ds_write_b32 v{A5}, v{TD[k]} offset:{512*k}")
    a(f"    s_mov_b64 exec, -1")
    XB = T
    for r in range(16): a(f"    v_mov_b32 v{XB+r}, 0")
    a(f"    s_waitcnt lgkmcnt(0)")
    st(16)
    a(f"    s_barrier")
    st(12)
    AC = D[0]
    FB = DP
    for ntile in range(3):
        for s_ in range(4):
            a(f"    ds_read_b128 v[{FB+16*ntile+4*s_}:{FB+16*ntile+4*s_+3}], v{cHB} offset:{ntile * 4 * QSTR + 64 * s_}")
    a(f"    s_mov_b32 s{sX}, 0x00ff00ff\n    s_mov_b32 s{sX+1}, 0x00ff00ff")
    a(f"    s_mov_b64 exec, s[{sX}:{sX+1}]")
    a(f"    s_waitcnt lgkmcnt(8)")
    for s_ in range(4):
        a(f"    ds_read_b128 v[{XB+4*s_}:{XB+4*s_+3}], v{cHB} offset:{12 * QSTR + 64 * s_}")
    a(f"    s_mov_b64 exec, -1")
    a(f"    v_mul_u32_u24 v{A0}, 171, v0")
    a(f"    v_lshrrev_b32 v{A0}, 9, v{A0}")
    a(f"    v_min_u32 v{A0}, 39, v{A0}")
    a(f"    v_mul_u32_u24 v{A1}, 3, v{A0}")
    a(f"    v_sub_u32 v{A1}, v0, v{A1}")
    a(f"    v_and_b32 v{A1}, 3, v{A1}")
    a(f"    v_lshlrev_b32 v{A2_}, 3, v{A0}")
    a(f"    v_lshl_add_u32 v{A2_}, v{A1}, 1, v{A2_}")
    a(f"    v_add_u32 v{A2_}, {POSD}, v{A2_}")
    a(f"    v_and_b32 v{A4}, 7, v{A0}")
    a(f"    v_lshlrev_b32 v{A4}, 4, v{A4}")
    a(f"    v_lshl_add_u32 v{A4}, v{A1}, 2, v{A4}")
    a(f"    v_lshrrev_b32 v{A0}, 3, v{A0}")
    a(f"    v_cmp_lt_u32 vcc, 2, v{A0}")
    a(f"    s_nop 1")
    a(f"    v_addc_co_u32 v{A1}, vcc, 0, v{A0}, vcc")
    a(f"    v_lshl_add_u32 v{A4}, v{A1}, 9, v{A4}")
    a(f"    v_add_u32 v{A4}, {PPO + 4}, v{A4}")
    PQ = M
    for cc in range(4):
        a(f"    ds_read_b32 v{PQ+cc}, v{A4} offset:{128*cc}")
    a(f"    v_cmp_eq_u32 vcc, 2, v{A0}")
    for cc in range(3):
        a(f"    ds_read_b32 v{PQ+4+cc}, v{A4} offset:{512+128*cc}")
    a(f"    ds_read_b32 v{PQ+7}, v{A4} offset:{512+128*3}")
    a(f"    ds_read_u16 v{POSO}, v{A2_}")
    for ntile in range(3):
        for s_ in range(4):
            a(f"    s_waitcnt lgkmcnt({min(15, 11 - (ntile*4+s_) + 4 + 9)})" + (" vmcnt(0)" if ntile == 0 and s_ == 0 else ""))
            c_ = "0" if s_ == 0 else f"v[{AC+4*ntile}:{AC+4*ntile+3}]"
            a(f"    v_mfma_f32_16x16x32_bf16 v[{AC+4*ntile}:{AC+4*ntile+3}], v[{WHH+4*s_}:{WHH+4*s_+3}], v[{FB+16*ntile+4*s_}:{FB+16*ntile+4*s_+3}], {c_}")
    for s_ in range(4):
        a(f"    s_waitcnt lgkmcnt({3 - s_ + 9})")
        a(f"    v_mfma_f32_16x16x32_bf16 v[{AC+4}:{AC+7}], v[{WHH+4*s_}:{WHH+4*s_+3}], v[{XB+4*s_}:{XB+4*s_+3}], v[{AC+4}:{AC+7}]")
    st(17)
    a(f"    s_mov_b32 s{t0}, {hex(f32bits(-LN2))}")
    a(f"    s_mov_b32 s{t1}, {hex(f32bits(-LOG2E))}")
    a(f"    s_waitcnt lgkmcnt(0)")
    a(f"    v_add_f32 v{M}, v{M}, v{M+1}\n    v_add_f32 v{M+2}, v{M+2}, v{M+3}\n    v_add_f32 v{M}, v{M}, v{M+2}")
    a(f"    v_add_f32 v{M+4}, v{M+4}, v{M+5}\n    v_add_f32 v{M+6}, v{M+6}, v{M+7}\n    v_add_f32 v{M+4}, v{M+4}, v{M+6}")
    a(f"    v_cndmask_b32 v{M+4}, 0, v{M+4}, vcc")
    a(f"    v_add_f32 v{A1}, v{M}, v{M+4}")
    a(f"    v_lshlrev_b32 v{POSO}, 16, v{POSO}")
    a(f"    v_fma_f32 v{A1}, v{A1}, s{t0}, v{POSO}")
    a(f"    v_cvt_pk_bf16_f32 v{A1}, v{A1}, v{A1}")
    a(f"    s_mul_i32 s{t2}, s2, 240")
    a(f"    s_add_u32 s{t2}, s{t2}, {N*256}")
    a(f"    v_lshlrev_b32 v{A0}, 1, v0")
    a(f"    v_cmp_gt_u32 vcc, 120, v0")
    a(f"    s_and_saveexec_b64 s[{sX}:{sX+1}], vcc")
    a(f"    s_cbranch_execz K2_nopos")
    a(f"    buffer_store_short v{A1}, v{A0}, s[{sOUT}:{sOUT+3}], s{t2} offen")
    a.label("K2_nopos")
    a(f"    s_mov_b64 exec, s[{sX}:{sX+1}]")
    a(f"    v_and_b32 v{A2_}, 15, v{l}")
    a(f"    v_add_u32 v{A2_}, s{sB40}, v{A2_}")
    a(f"    v_lshlrev_b32 v{A2_}, 8, v{A2_}")
    a(f"    v_lshrrev_b32 v{A3_}, 4, v{l}")
    a(f"    v_lshl_add_u32 v{A2_}, v{A3_}, 3, v{A2_}")
    a(f"    s_lshl_b32 s{t2}, s{sW}, 5")
    a(f"    v_add_u32 v{OUTA}, s{t2}, v{A2_}")
    a(f"    s_movk_i32 s{t2}, 0x1000")
    a(f"    s_movk_i32 s{t3}, 0x2000")
    TT = BF
    for ntile in [0, 2, 1]:
        x = AC + 4 * ntile; hp = HP + 4 * ntile
        for i in range(4): a(f"    v_fma_f32 v{x+i}, v{x+i}, s{t0}, v{hp+i}")
        for i in range(4): a(f"    v_mul_f32 v{TT+i}, s{t1}, v{x+i}")
        for i in range(4): a(f"    v_exp_f32 v{TT+i}, v{TT+i}")
        rs = RES + 2 * ntile
        a(f"    v_lshlrev_b32 v{TT+4}, 16, v{rs}")
        for i in range(4): a(f"    v_add_f32 v{TT+i}, 1.0, v{TT+i}")
        for i in range(4): a(f"    v_rcp_f32 v{TT+i}, v{TT+i}")
        a(f"    v_and_b32 v{TT+5}, 0xffff0000, v{rs}")
        a(f"    v_lshlrev_b32 v{TT+6}, 16, v{rs+1}\n    v_and_b32 v{TT+7}, 0xffff0000, v{rs+1}")
        for i in range(4): a(f"    v_fma_f32 v{x+i}, v{x+i}, v{TT+i}, v{TT+4+i}")
        a(f"    v_cvt_pk_bf16_f32 v{TR+2*ntile}, v{x}, v{x+1}")
        a(f"    v_cvt_pk_bf16_f32 v{TR+2*ntile+1}, v{x+2}, v{x+3}")
        if ntile == 0: a(f"    buffer_store_dwordx2 v[{TR}:{TR+1}], v{OUTA}, s[{sOUT}:{sOUT+3}], 0 offen")
        if ntile == 1: a(f"    buffer_store_dwordx2 v[{TR+2}:{TR+3}], v{OUTA}, s[{sOUT}:{sOUT+3}], s{t2} offen")
        if ntile == 2:
            a(f"    s_mov_b32 s{sX}, 0x00ff00ff\n    s_mov_b32 s{sX+1}, 0x00ff00ff")
            a(f"    s_mov_b64 exec, s[{sX}:{sX+1}]")
            a(f"    buffer_store_dwordx2 v[{TR+4}:{TR+5}], v{OUTA}, s[{sOUT}:{sOUT+3}], s{t3} offen")
            a(f"    s_mov_b64 exec, -1")
    if cfg.dbg:
        st(13)
        a(f"    s_waitcnt vmcnt(0)")
        st(14)
        a(f"    v_writelane_b32 v{vST}, s{sTs}, 15")
        a(f"    s_getreg_b32 s6, hwreg(HW_REG_XCC_ID)\n    s_add_u32 s6, s6, 1\n    v_writelane_b32 v{vST}, s6, 20")
        stamp_store(a, cfg, vST, sWS, 0x140000, sW, A0, sMI)
    a.label("K2_done")
    a("    s_endpgm")
    a.label("K2_end")
    return nv

HEADER = """; EGNN layer, two launches.  Kernarg (88 bytes): h, pos, e_attr, src, dst, w_e, w_x, w_h, out, debug, ws
; @launch kernel=k1_kernel grid=({g1},1,1) block=(512,1,1) lds={lds1}
; @launch kernel=k2_kernel grid=(250,1,1) block=(512,1,1) lds={lds2}
.amdgcn_target "amdgcn-amd-amdhsa--gfx950"
.text
"""
def desc(name, nv, ns):
    acc = (nv + 3) // 4 * 4
    return f""".p2align 6
.amdhsa_kernel {name}
  .amdhsa_next_free_vgpr {nv}
  .amdhsa_next_free_sgpr {ns}
  .amdhsa_accum_offset {acc}
  .amdhsa_group_segment_fixed_size 0
  .amdhsa_kernarg_size 88
  .amdhsa_user_sgpr_count 2
  .amdhsa_user_sgpr_kernarg_segment_ptr 1
  .amdhsa_system_sgpr_workgroup_id_x 1
  .amdhsa_float_denorm_mode_32 3
.end_amdhsa_kernel
"""
def generate(cfg):
    a = Asm()
    a(HEADER.format(g1=cfg.g1, lds1=K1_LDS, lds2=LDS2))
    gen_k1(a, cfg)
    nv = gen_k2(a, cfg)
    a('.section .rodata,"a"')
    a(desc("k1_kernel", 128, 72))
    a(desc("k2_kernel", nv, 102))
    return a.text(), nv

if __name__ == "__main__":
    cfg = Cfg()
    out = sys.argv[1] if len(sys.argv) > 1 else "egnn7.s"
    for kv in sys.argv[2:]:
        k, val = kv.split("=", 1)
        cur = getattr(cfg, k)
        setattr(cfg, k, val if isinstance(cur, str) else type(cur)(eval(val)))
    txt, nv = generate(cfg)
    open(out, "w").write(txt)
    print("vgprs", nv)
    check_hazards(txt)
```

```python
import sys, struct
from asmlib import *

def f32bits(x): return struct.unpack("<I", struct.pack("<f", x))[0]
LOG2E = 1.4426950408889634
LN2 = 0.6931471805599453
N = 10000; E = 160000; NB = 250; CH = 2500
CELL_BYTES = NB * 64 * 128
WS_FR = 0x200000
WEF_BYTES = 17 * 4 * 1024
WHF_OFF = WS_FR + WEF_BYTES
FRS = 0x22000
WS_B = 0x320000
WS_USED = WS_B + N * 256
DBG_OFF = 0x800000
QSTR = 1088
MAXT = 27
STG = 0; SSTR = 2048; NR = 4
SLOT = 8 * SSTR
A3T = NR * SLOT
A2L = A3T + MAXT * 32 * 64
A2H = A2L + MAXT * 32 * 16
REC = A2H + MAXT * 32 * 16
CNT = REC + (MAXT + 7) * 32 * 8
ZSTART = A3T; NZ = 12
POSD = 163840 - 512
ZLAST = (POSD - (ZSTART + 11 * 8192)) // 16
HOWN = 3 * SLOT
LDS2 = 163840
WIN = 192
K1_LDS = 32768 + 16 * QSTR
G_GEMM = 157
W_SORT = 160; W_PREP = 224; W_PREF = 256
PPO = CNT + 64
assert PPO + 3072 <= POSD and ZLAST <= 512

class Cfg:
    g1 = 264
    pf_ea = False
    pf_code = True
    pf_b = False
    dbg = False
    qskip = True
    st_k1 = ""
    gemm_lds = True
    tlb = False
    pf_h = False
    ab_nob = False
    st_out = ""
    tprio = 1
    few = False
    only_set = -1
    prio = -1
    l_nolds = False
    l_novm = 0
    l_nomf = False
    l_nosi = False
    l_nopk = False
    ab_noe = False
    ab_now = False
    ab_noz = False
    ab_noc = False
    ab_notail = False

def srd(a, d, base, nrec, stride=0):
    a(f"    s_mov_b32 s{d}, s{base}")
    a(f"    s_and_b32 s{d+1}, s{base+1}, 0xffff")
    if stride: a(f"    s_or_b32 s{d+1}, s{d+1}, {hex(stride << 16)}")
    a(f"    s_mov_b32 s{d+2}, {nrec}")
    a(f"    s_mov_b32 s{d+3}, 0x00020000")
def stamp(a, cfg, vreg, idx, sp=6):
    if not cfg.dbg: return
    if cfg.few and vreg != 127 and idx not in (0, 9, 12, 14): return
    if cfg.few and vreg == 127 and idx not in (0, 5): return
    a(f"    s_memrealtime s[{sp}:{sp+1}]")
    a(f"    s_waitcnt lgkmcnt(0)")
    a(f"    v_writelane_b32 v{vreg}, s{sp}, {idx}")
    a(f"    s_memtime s[{sp}:{sp+1}]")
    a(f"    s_waitcnt lgkmcnt(0)")
    a(f"    v_writelane_b32 v{vreg}, s{sp}, {idx + 32}")
def stamp_store(a, cfg, vreg, pws, region, swave, tmpv, srdb):
    if not cfg.dbg: return
    a(f"    s_mov_b64 exec, -1")
    a(f"    s_mov_b32 s{srdb}, s{pws}\n    s_and_b32 s{srdb+1}, s{pws+1}, 0xffff\n    s_mov_b32 s{srdb+2}, 0x1000000\n    s_mov_b32 s{srdb+3}, 0x00020000")
    a(f"    s_lshl_b32 s6, s2, 4")
    a(f"    s_add_u32 s6, s6, s{swave}")
    a(f"    s_lshl_b32 s6, s6, 8")
    a(f"    s_add_u32 s6, s6, {DBG_OFF + region}")
    a(f"    v_mbcnt_lo_u32_b32 v{tmpv}, -1, 0\n    v_mbcnt_hi_u32_b32 v{tmpv}, -1, v{tmpv}\n    v_lshlrev_b32 v{tmpv}, 2, v{tmpv}")
    a(f"    buffer_store_dword v{vreg}, v{tmpv}, s[{srdb}:{srdb+3}], s6 offen")

def gen_k1(a, cfg):
    fl = (" " + cfg.st_k1) if cfg.st_k1 else ""
    def k1_end():
        if cfg.dbg:
            a("    s_mov_b64 exec, -1")
            stamp(a, cfg, 127, 4, 34)
            a("    s_waitcnt vmcnt(0)")
            stamp(a, cfg, 127, 5, 34)
            a("    s_load_dwordx2 s[8:9], s[0:1], 80\n    s_waitcnt lgkmcnt(0)")
            a("    s_getreg_b32 s34, hwreg(HW_REG_XCC_ID)\n    s_add_u32 s34, s34, 1\n    v_writelane_b32 v127, s34, 20")
            a("    v_lshrrev_b32 v126, 6, v0\n    s_nop 0\n    v_readfirstlane_b32 s33, v126")
            stamp_store(a, cfg, 127, 8, 0, 33, 126, 36)
        a("    s_endpgm")
    a(".globl k1_kernel\n.p2align 8\n.type k1_kernel,@function\nk1_kernel:")
    a(f"    s_cmp_ge_u32 s2, {G_GEMM}")
    a("    s_cbranch_scc1 K1_notgemm")
    stamp(a, cfg, 127, 0, 34)
    a("    s_load_dwordx2 s[4:5], s[0:1], 40")
    a("    s_load_dwordx2 s[8:9], s[0:1], 0")
    a("    s_load_dwordx2 s[16:17], s[0:1], 80")
    a("    v_and_b32 v1, 63, v0")
    a("    v_lshrrev_b32 v2, 6, v0")
    a("    s_lshl_b32 s20, s2, 6")
    a("    v_readfirstlane_b32 s21, v2")
    a("    v_lshlrev_b32 v3, 4, v1")
    a("    s_mov_b32 s6, " + str(273 * 256) + "\n    s_mov_b32 s7, 0x00020000")
    a("    v_lshrrev_b32 v4, 4, v1")
    a("    v_and_b32 v5, 15, v1\n    v_xor_b32 v5, v5, v4\n    v_lshlrev_b32 v7, 4, v5")
    a(f"    s_mov_b32 s10, {N}\n    s_mov_b32 s11, 0x00020000")
    a("    s_lshl_b32 s22, s21, 12")
    a(f"    s_add_u32 s23, s22, {128*256}")
    a("    s_lshl_b32 s24, s21, 3\n    s_add_u32 s24, s24, s20")
    a("    v_add_u32 v6, s24, v4")
    a("    v_add_u32 v8, 4, v6\n    v_mov_b32 v9, v7")
    a(f"    s_mul_i32 s25, s21, {2*QSTR}\n    s_add_u32 s25, s25, 32768")
    a("    s_waitcnt lgkmcnt(0)")
    a("    s_or_b32 s9, s9, 0x1000000")
    for j in range(2):
        a(f"    s_add_u32 m0, s25, {j*QSTR}\n    s_nop 0")
        a(f"    buffer_load_dwordx4 v[{6+2*j}:{7+2*j}], s[8:11], 0 idxen offen lds")
    for j in range(4):
        a(f"    s_add_u32 m0, s22, {j*1024}\n    s_add_u32 s26, s23, {j*1024}")
        a(f"    buffer_load_dwordx4 v3, s[4:7], s26 offen lds")
    a("    s_lshr_b32 s26, s21, 2\n    s_and_b32 s27, s21, 3")
    a("    v_lshrrev_b32 v14, 5, v1\n    v_lshlrev_b32 v14, 3, v14\n    v_bfe_u32 v15, v1, 2, 2\n    v_add_u32 v14, v14, v15\n    v_lshlrev_b32 v14, 8, v14")
    a("    v_bfe_u32 v15, v1, 4, 1\n    v_lshl_add_u32 v14, v15, 5, v14\n    v_and_b32 v15, 3, v1\n    v_lshl_add_u32 v14, v15, 3, v14")
    a("    s_lshl_b32 s28, s27, 6\n    v_add_u32 v14, s28, v14")
    a("    v_and_b32 v15, 31, v1\n    v_lshrrev_b32 v16, 2, v15\n    s_lshl_b32 s28, s26, 3\n    v_add_u32 v16, s28, v16")
    a(f"    v_mul_u32_u24 v16, {QSTR}, v16\n    v_and_b32 v17, 3, v15\n    v_lshl_add_u32 v16, v17, 8, v16\n    v_add_u32 v16, 32768, v16")
    a("    v_lshrrev_b32 v18, 5, v1\n    v_xor_b32 v18, v18, v17\n    v_lshl_add_u32 v19, v18, 4, v16\n    v_xor_b32 v18, 2, v18\n    v_lshl_add_u32 v16, v18, 4, v16")
    a("    s_lshl_b32 s28, s26, 5\n    s_add_u32 s28, s28, s20\n    v_add_u32 v18, s28, v15\n    v_lshlrev_b32 v18, 8, v18")
    a("    v_lshrrev_b32 v17, 5, v1\n    v_lshl_add_u32 v18, v17, 4, v18\n    s_lshl_b32 s28, s27, 6\n    v_add_u32 v18, s28, v18")
    a(f"    s_add_u32 s16, s16, {WS_B}\n    s_addc_u32 s17, s17, 0\n    s_mov_b32 s18, {N*256}\n    s_mov_b32 s19, 0x00020000")
    a(f"    s_mov_b32 s28, {hex(f32bits(-LOG2E))}")
    a("    s_waitcnt vmcnt(0)")
    a("    s_barrier")
    stamp(a, cfg, 127, 1, 34)
    AW, BH, DD = 20, 52, 84
    for s_ in range(4):
        a(f"    ds_read_b64_tr_b16 v[{AW+4*s_}:{AW+4*s_+1}], v14 offset:{s_ * 4096}")
        a(f"    ds_read_b64_tr_b16 v[{AW+4*s_+2}:{AW+4*s_+3}], v14 offset:{s_ * 4096 + 1024}")
    for s_ in range(4):
        a(f"    ds_read_b128 v[{BH+4*s_}:{BH+4*s_+3}], v{19 if s_ % 2 == 0 else 16} offset:{(s_ >> 1) * 64}")
    a("    s_waitcnt lgkmcnt(4)")
    for s_ in range(4, 8):
        a(f"    ds_read_b64_tr_b16 v[{AW+4*s_}:{AW+4*s_+1}], v14 offset:{s_ * 4096}")
        a(f"    ds_read_b64_tr_b16 v[{AW+4*s_+2}:{AW+4*s_+3}], v14 offset:{s_ * 4096 + 1024}")
    def mf(d, A, B, first): return f"    v_mfma_f32_32x32x16_bf16 v[{d}:{d+15}], v[{A}:{A+3}], v[{B}:{B+3}], " + ("0" if first else f"v[{d}:{d+15}]")
    a("    s_waitcnt lgkmcnt(8)")
    for s_ in range(4, 8):
        a(f"    ds_read_b128 v[{BH+4*s_}:{BH+4*s_+3}], v{19 if s_ % 2 == 0 else 16} offset:{(s_ >> 1) * 64}")
    for s_ in range(4): a(mf(DD, AW + 4 * s_, BH + 4 * s_, s_ == 0))
    a("    s_waitcnt lgkmcnt(0)")
    for s_ in range(4, 8): a(mf(DD, AW + 4 * s_, BH + 4 * s_, False))
    a("    s_nop 7\n    s_nop 3")
    for r in range(16): a(f"    v_mul_f32 v{DD+r}, s28, v{DD+r}")
    for j in range(8): a(f"    v_cvt_pk_bf16_f32 v{AW+j}, v{DD+2*j}, v{DD+2*j+1}")
    b = AW
    a("    s_nop 1")
    a(f"    v_permlane32_swap_b32 v{b}, v{b+2}\n    v_permlane32_swap_b32 v{b+1}, v{b+3}\n    v_permlane32_swap_b32 v{b+4}, v{b+6}\n    v_permlane32_swap_b32 v{b+5}, v{b+7}")
    a("    s_nop 1")
    a(f"    buffer_store_dwordx4 v[{b}:{b+3}], v18, s[16:19], 0 offen{fl}")
    a(f"    buffer_store_dwordx4 v[{b+4}:{b+7}], v18, s[16:19], 0 offen offset:32{fl}")
    k1_end()

    a.label("K1_notgemm")
    a(f"    s_cmp_ge_u32 s2, {cfg.g1}")
    a("    s_cbranch_scc1 K1_done")
    a(f"    s_cmp_lt_u32 s2, {W_SORT}")
    a("    s_cbranch_scc1 K1_done")
    stamp(a, cfg, 127, 0, 34)
    a(f"    s_cmp_ge_u32 s2, {W_PREF}")
    a("    s_cbranch_scc1 K1_pref")
    a(f"    s_cmp_ge_u32 s2, {W_PREP}")
    a("    s_cbranch_scc1 K1_prep")
    a("    s_load_dwordx4 s[4:7], s[0:1], 24")
    a("    s_load_dwordx2 s[8:9], s[0:1], 80")
    a("    v_lshlrev_b32 v1, 4, v0")
    a("    v_lshlrev_b32 v2, 2, v0")
    a("    v_mov_b32 v4, -1\n    v_mov_b32 v5, -1\n    v_mov_b32 v6, -1\n    v_mov_b32 v7, -1\n    v_mov_b32 v3, 0")
    for r in range(4): a(f"    ds_write_b128 v1, v[4:7] offset:{8192*r}")
    a("    ds_write_b32 v2, v3 offset:32768")
    a(f"    s_sub_u32 s23, s2, {W_SORT}")
    a("    s_mul_i32 s10, s23, 10000")
    a("    s_waitcnt lgkmcnt(0)")
    a("    s_add_u32 s12, s4, s10\n    s_addc_u32 s13, s5, 0\n    s_mov_b32 s14, 10000\n    s_mov_b32 s15, 0x00020000")
    a("    s_add_u32 s16, s6, s10\n    s_addc_u32 s17, s7, 0\n    s_mov_b32 s18, 10000\n    s_mov_b32 s19, 0x00020000")
    for e in range(5):
        so = "0" if e == 0 else f"s{39+e}"
        if e: a(f"    s_movk_i32 s{39+e}, {2048*e}")
        a(f"    buffer_load_dword v{11+2*e}, v2, s[16:19], {so} offen")
        a(f"    buffer_load_dword v{10+2*e}, v2, s[12:15], {so} offen")
    srd(a, 24, 8, CELL_BYTES)
    a("    s_lshl_b32 s22, s23, 7")
    a("    v_mov_b32 v30, 1")
    a("    s_movk_i32 s33, 452")
    a("    v_cmp_gt_u32 s[30:31], s33, v0")
    a("    s_barrier")
    stamp(a, cfg, 127, 1, 34)
    for e in range(5):
        S, D, B, R, K = 10 + 2 * e, 11 + 2 * e, 32 + e, 40 + e, 48 + e
        a(f"    s_waitcnt vmcnt({8 - 2 * e})")
        a(f"    v_mul_u32_u24 v{B}, 52429, v{D}")
        a(f"    v_lshrrev_b32 v{B}, 21, v{B}")
        a(f"    v_lshlrev_b32 v26, 2, v{B}")
        if e == 4: a("    s_mov_b64 exec, s[30:31]")
        a(f"    ds_add_rtn_u32 v{K}, v26, v30 offset:32768")
        a(f"    v_mul_u32_u24 v24, 40, v{B}")
        a(f"    v_sub_u32 v24, v{D}, v24")
        a(f"    v_lshl_or_b32 v{R}, v24, 14, v{S}")
        a(f"    v_add_u32 v25, {512 * e}, v0")
        a(f"    v_lshl_or_b32 v{R}, v25, 20, v{R}")
    a("    s_mov_b64 exec, -1")
    stamp(a, cfg, 127, 2, 34)
    a("    s_waitcnt lgkmcnt(0)")
    for e in range(5):
        B, R, K = 32 + e, 40 + e, 48 + e
        a(f"    v_cmp_gt_u32 vcc, 32, v{K}")
        a(f"    v_and_b32 v24, 7, v{K}")
        a(f"    v_lshlrev_b32 v24, 4, v24")
        a(f"    v_lshl_add_u32 v24, v{B}, 7, v24")
        a(f"    v_lshrrev_b32 v25, 3, v{K}")
        a(f"    v_lshl_add_u32 v24, v25, 2, v24")
        if e == 4: a("    s_and_b64 vcc, vcc, s[30:31]")
        a("    s_mov_b64 exec, vcc")
        a(f"    ds_write_b32 v24, v{R}")
        a("    s_mov_b64 exec, -1")
    a("    s_waitcnt lgkmcnt(0)")
    a("    s_barrier")
    stamp(a, cfg, 127, 3, 34)
    for r in range(4): a(f"    ds_read_b128 v[{8+4*r}:{11+4*r}], v1 offset:{8192*r}")
    a("    v_lshrrev_b32 v26, 3, v0")
    a("    v_lshlrev_b32 v27, 2, v26")
    for r in range(4): a(f"    ds_read_b32 v{32+r}, v27 offset:{32768 + 256*r}")
    a("    v_and_b32 v28, 7, v0")
    a("    v_lshlrev_b32 v29, 4, v28")
    a("    v_lshl_add_u32 v29, v26, 13, v29")
    a("    v_mov_b32 v31, -2")
    a("    v_cmp_eq_u32 s[30:31], 0, v28")
    a("    s_waitcnt lgkmcnt(0)")
    for r in range(4):
        a(f"    v_cmp_lt_u32 vcc, 32, v{32+r}")
        a("    s_and_b64 vcc, vcc, s[30:31]")
        a(f"    s_mov_b32 s34, {64*8192*r}" if r else "    s_nop 0")
        a(f"    v_add_u32 v{36+r}, {64*8192*r}, v29")
        a(f"    v_cndmask_b32 v{8+4*r}, v{8+4*r}, v31, vcc")
    for r in range(4):
        a(f"    buffer_store_dwordx4 v[{8+4*r}:{11+4*r}], v{36+r}, s[24:27], s22 offen{fl}")
    k1_end()
    a.label("K1_prep")
    a("    s_load_dwordx2 s[4:5], s[0:1], 40")
    a("    s_load_dwordx2 s[6:7], s[0:1], 56")
    a("    s_load_dwordx2 s[8:9], s[0:1], 80")
    a(f"    s_sub_u32 s10, s2, {W_PREP}")
    a("    s_lshr_b32 s10, s10, 3")
    a("    s_lshl_b32 s10, s10, 9")
    a("    s_and_b32 s26, s2, 7")
    a(f"    s_mul_i32 s26, s26, {FRS}")
    a(f"    s_add_u32 s26, s26, {WS_FR}")
    a("    v_lshrrev_b32 v2, 6, v0\n    s_nop 0\n    v_readfirstlane_b32 s27, v2")
    a("    s_lshl_b32 s27, s27, 6\n    s_add_u32 s27, s27, s10")
    a("    v_and_b32 v2, 63, v0")
    a("    s_waitcnt lgkmcnt(0)")
    srd(a, 16, 4, 273 * 256)
    srd(a, 28, 6, 256 * 256)
    srd(a, 20, 8, WS_USED)
    for r in range(4):
        g = 36 + r
        a(f"    s_add_u32 s{g}, s27, {2048*r}")
        a(f"    s_cmp_ge_u32 s{g}, 6400")
        a(f"    s_cbranch_scc1 K1_pr{r}x")
        a(f"    s_cmp_ge_u32 s{g}, 2304")
        a(f"    s_cbranch_scc1 K1_pr{r}h")
        a(f"    s_lshr_b32 s12, s{g}, 8\n    s_lshl_b32 s13, s12, 4\n    s_cmp_eq_u32 s12, 8\n    s_cselect_b32 s13, 257, s13")
        a(f"    s_cselect_b32 s{40+r}, {hex(f32bits(-LOG2E))}, 1.0")
        a(f"    s_cselect_b32 s25, {8*4096}, 0")
        a(f"    s_lshr_b32 s15, s{g}, 6\n    s_and_b32 s15, s15, 3\n    s_lshl_b32 s15, s15, 5")
        a(f"    v_lshrrev_b32 v3, 5, v2\n    v_lshlrev_b32 v3, 3, v3\n    v_add_u32 v3, s13, v3\n    v_and_b32 v4, 31, v2\n    v_add_u32 v4, s15, v4")
        a(f"    v_lshlrev_b32 v3, 8, v3\n    v_lshl_add_u32 v3, v4, 1, v3")
        a(f"    s_add_u32 s{44+r}, s25, s26")
        for j in range(8): a(f"    buffer_load_ushort v{8+8*r+j}, v3, s[16:19], 0 offen offset:{j*256}")
        a(f"    s_branch K1_pr{r}d")
        a.label(f"K1_pr{r}h")
        a(f"    s_sub_u32 s12, s{g}, 2304\n    s_lshr_b32 s13, s12, 6\n    s_and_b32 s13, s13, 7\n    s_lshl_b32 s13, s13, 5")
        a(f"    s_lshr_b32 s15, s12, 9\n    s_lshl_b32 s15, s15, 4\n    s_mov_b32 s{40+r}, 1.0")
        a(f"    v_lshrrev_b32 v3, 4, v2\n    v_lshlrev_b32 v3, 3, v3\n    v_add_u32 v3, s13, v3\n    v_and_b32 v4, 15, v2\n    v_add_u32 v4, s15, v4")
        a(f"    v_lshlrev_b32 v3, 8, v3\n    v_lshl_add_u32 v3, v4, 1, v3")
        a(f"    s_add_u32 s{44+r}, s26, {WEF_BYTES - 2304*16}")
        for j in range(8): a(f"    buffer_load_ushort v{8+8*r+j}, v3, s[28:31], 0 offen offset:{j*256}")
        a(f"    s_branch K1_pr{r}d")
        a.label(f"K1_pr{r}x")
        a(f"    s_mov_b32 s{44+r}, 0x7fffff00")
        a(f"    s_mov_b32 s{40+r}, 1.0")
        a.label(f"K1_pr{r}d")
    a("    s_waitcnt vmcnt(0)")
    for r in range(4):
        b = 8 + 8 * r
        for j in range(8): a(f"    v_lshlrev_b32 v{b+j}, 16, v{b+j}")
        for j in range(8): a(f"    v_mul_f32 v{b+j}, s{40+r}, v{b+j}")
        for j in range(4): a(f"    v_cvt_pk_bf16_f32 v{44+4*r+j}, v{b+2*j}, v{b+2*j+1}")
        a(f"    s_lshl_b32 s12, s{36+r}, 4")
        a(f"    v_lshlrev_b32 v3, 4, v2\n    v_add_u32 v{60+r}, s12, v3")
        a(f"    buffer_store_dwordx4 v[{44+4*r}:{47+4*r}], v{60+r}, s[20:23], s{44+r} offen{fl}")
    k1_end()
    a.label("K1_pref")
    if cfg.pf_h:
        a("    s_load_dwordx2 s[4:5], s[0:1], 0")
        a("    s_and_b32 s10, s2, 7")
        a("    s_waitcnt lgkmcnt(0)")
        srd(a, 16, 4, N * 256)
        for r in range(6):
            a(f"    v_add_u32 v8, {512*r}, v0")
            a(f"    v_mul_u32_u24 v9, 43691, v8\n    v_lshrrev_b32 v9, 22, v9")
            a(f"    v_mul_u32_u24 v10, 96, v9\n    v_sub_u32 v10, v8, v10")
            a(f"    v_lshlrev_b32 v9, 3, v9\n    v_add_u32 v9, s10, v9")
            a(f"    v_mul_u32_u24 v9, {40*256}, v9\n    v_lshl_add_u32 v9, v10, 7, v9")
            a(f"    buffer_load_dword v{12+r}, v9, s[16:19], 0 offen")
    if cfg.pf_code:
        a("    v_lshlrev_b32 v1, 7, v0")
        a("    s_getpc_b64 s[24:25]")
        a.label("K1_pc")
        a("    s_add_u32 s24, s24, k2_kernel-K1_pc")
        a("    s_addc_u32 s25, s25, 0")
        a("    v_cmp_gt_u32 vcc, (K2_end-k2_kernel+127)/128, v0")
        a("    s_and_saveexec_b64 s[28:29], vcc")
        a("    s_cbranch_execz K1_pfend")
        a("    global_load_dword v4, v1, s[24:25]")
    a.label("K1_pfend")
    k1_end()
    a.label("K1_done")
    a("    s_endpgm")

def gen_k2(a, cfg):
    fo = (" " + cfg.st_out) if cfg.st_out else ""
    V = Regs("v", 1, 256)
    W4F = V.alloc("W4F", 4, 4); IDN = V.alloc("IDN", 8, 4); X = V.alloc("X", 12, 4); XC = V.alloc("XC", 4, 4)
    D = [V.alloc("D0", 16, 4), V.alloc("D1", 16, 4)]
    DP = V.alloc("DP", 48, 4); DPC = V.alloc("DPC", 16, 4); HP = V.alloc("HP", 12, 4)
    BF = V.alloc("BF", 8, 4); EFB = [V.alloc(f"EF{k}", 4, 4) for k in range(4)]; AF = V.alloc("AF", 4, 4)
    TR = V.alloc("TR", 8, 4); M = V.alloc("M", 8, 4); T = V.alloc("T", 16, 4)
    WHH = V.alloc("WHH", 16, 4); WX = V.alloc("WX", 8, 4); ZR = V.alloc("ZR", 4, 4); RES = V.alloc("RES", 6, 2)
    iH0 = V.alloc("iH0", 2, 2); iH1 = V.alloc("iH1", 2, 2); iE = V.alloc("iE", 2, 2)
    cBF = V.alloc("cBF"); cHB = V.alloc("cHB")
    aA2 = V.alloc("aA2"); aA3 = V.alloc("aA3"); aRH = V.alloc("aRH"); aRE = V.alloc("aRE")
    vL = V.alloc("vL")
    POSO = aRH; OUTA = aA2
    A0 = V.alloc("A0", 1, 2); A1 = V.alloc("A1"); A2_ = V.alloc("A2"); A3_ = V.alloc("A3"); A4 = V.alloc("A4"); A5 = V.alloc("A5")
    vST = V.alloc("vST") if cfg.dbg else None
    nv = V.hi
    if cfg.dbg and 0: print(V.names)
    sStg = 3
    sB, sEA, sPOS, sWS, sOUT, sMI = 8, 12, 16, 20, 24, 28
    sW, sSet, sC, sB40 = 32, 33, 34, 35
    sCnt = 36
    sTs, sTf, sI = 42, 43, 45
    sBx, sBx2, sKx = 46, 47, 48
    sBd, sBd2, sKd = 49, 50, 51
    sRingR, sRingW, sStgEnd = 52, 53, 54
    sRem, sRem1, sRem2 = 55, 56, 57
    sMode, sWin, sFirst = 58, 59, 60
    t0, t1, t2, t3, t4, t5 = 61, 62, 63, 64, 65, 66
    sPK, sRet, sWoff, sDPI = 67, 69, 71, 74
    sEn, sTL, sFr = 75, 70, 68
    sH = 76
    sB2 = 88
    sD, sEv = 92, 93
    sX = 4
    l = vL
    st = lambda i: stamp(a, cfg, vST, i)
    def mfma(dst, A, B, C):
        c_ = "0" if C is None else f"v[{C}:{C+15}]"
        return f"    v_mfma_f32_32x32x16_bf16 v[{dst}:{dst+15}], v[{A}:{A+3}], v[{B}:{B+3}], {c_}"

    a(".globl k2_kernel\n.p2align 8\n.type k2_kernel,@function\nk2_kernel:")
    a(f"    s_cmp_ge_u32 s2, {NB}")
    a("    s_cbranch_scc1 K2_done")
    st(0)
    a(f"    s_load_dwordx2 s[{sWS}:{sWS+1}], s[0:1], 80")
    a(f"    s_load_dwordx2 s[{sH}:{sH+1}], s[0:1], 0")
    a(f"    s_load_dwordx2 s[{sPOS}:{sPOS+1}], s[0:1], 8")
    a(f"    s_load_dwordx2 s[{sMI}:{sMI+1}], s[0:1], 40")
    a(f"    s_load_dwordx2 s[{sEA}:{sEA+1}], s[0:1], 16")
    a(f"    s_load_dwordx2 s[{sOUT}:{sOUT+1}], s[0:1], 64")
    a(f"    s_load_dwordx2 s[72:73], s[0:1], 48")
    a(f"    v_and_b32 v{l}, 63, v0")
    a(f"    v_lshrrev_b32 v{A0}, 6, v0")
    a(f"    v_lshlrev_b32 v{A1}, 4, v0")
    a(f"    v_readfirstlane_b32 s{sW}, v{A0}")
    a(f"    s_mul_i32 s{sB40}, s2, 40")
    a(f"    s_lshl_b32 s{t0}, s2, 13")
    a(f"    s_mov_b32 s{sWS+2}, {WS_USED}\n    s_mov_b32 s{sWS+3}, 0x00020000")
    a(f"    s_mov_b32 s{sH+2}, {N}\n    s_mov_b32 s{sH+3}, 0x00020000")
    a(f"    s_mov_b32 s{sPOS+2}, {N*6+4}\n    s_mov_b32 s{sPOS+3}, 0x00020000")
    a(f"    s_lshr_b32 s{sSet}, s{sW}, 2")
    a(f"    s_and_b32 s{sC}, s{sW}, 3")
    a(f"    v_lshrrev_b32 v{A0}, 4, v{l}")
    a(f"    v_and_b32 v{A2_}, 15, v{l}")
    a(f"    v_xor_b32 v{A2_}, v{A2_}, v{A0}")
    HP0, HP1 = D[0], D[0] + 2
    a(f"    v_lshlrev_b32 v{HP0+1}, 4, v{A2_}")
    a(f"    v_mov_b32 v{HP1+1}, v{HP0+1}")
    a(f"    s_min_u32 s{t3}, s{sW}, 6")
    a(f"    s_lshl_b32 s{t1}, s{t3}, 3")
    a(f"    s_add_u32 s{t1}, s{t1}, s{sB40}")
    a(f"    v_add_u32 v{HP0}, s{t1}, v{A0}")
    a(f"    v_add_u32 v{HP1}, 4, v{HP0}")
    a(f"    s_mul_i32 s{t2}, s{t3}, {2*QSTR}")
    a(f"    s_add_u32 s{t2}, s{t2}, {HOWN}")
    VL16, VOWN, VWD = D[0] + 4, D[0] + 5, D[0] + 6
    a(f"    v_lshlrev_b32 v{VL16}, 4, v{l}")
    a(f"    v_mul_u32_u24 v{VOWN}, 6, v0")
    a(f"    v_and_b32 v{VWD}, 31, v{l}")
    a(f"    s_lshl_b32 s{t4}, s{sC}, 5")
    a(f"    v_add_u32 v{VWD}, s{t4}, v{VWD}")
    a(f"    v_lshlrev_b32 v{VWD}, 1, v{VWD}")
    a(f"    s_mul_i32 s{t4}, s2, 240")
    a(f"    s_lshl_b32 s{t5}, s{sW}, 12")
    a(f"    s_and_b32 s{sFr}, s2, 7")
    a(f"    s_mul_i32 s{sFr}, s{sFr}, {FRS}")
    a(f"    s_add_u32 s{sFr}, s{sFr}, {WS_FR}")
    a(f"    s_waitcnt lgkmcnt(0)")
    st(1)
    RR = TR; SL = TR + 4; GG = T; PSRC = DPC; OWNP = T + 4; PDST = DPC + 8
    W1F = DP
    WHL = D[1]
    a(f"    buffer_load_dwordx4 v[{RR}:{RR+3}], v{A1}, s[{sWS}:{sWS+3}], s{t0} offen      ; cells")
    Z = ZR
    WD = XC + 3
    def blockV():
        a(f"    s_mov_b32 m0, s{t2}")
        a(f"    s_add_u32 s{t2}, s{t2}, {QSTR}")
        a(f"    buffer_load_dwordx4 v[{HP0}:{HP0+1}], s[{sH}:{sH+3}], 0 idxen offen lds")
        a(f"    s_mov_b32 m0, s{t2}")
        a(f"    s_add_u32 s{sWoff}, s{t5}, s{sFr}")
        a(f"    buffer_load_dwordx4 v[{HP1}:{HP1+1}], s[{sH}:{sH+3}], 0 idxen offen lds")
        for j in range(4):
            a(f"    s_add_u32 m0, s{t5}, {STG + j*1024}")
            if j: a(f"    s_add_u32 s{sWoff}, s{sWoff}, 1024")
            else: a(f"    s_nop 0")
            a(f"    buffer_load_dwordx4 v{VL16}, s[{sWS}:{sWS+3}], s{sWoff} offen lds")
        a(f"    s_lshl_b32 s{sWoff}, s{sC}, 10")
        a(f"    s_add_u32 m0, s{sWoff}, {STG + 32768}")
        a(f"    s_add_u32 s{sWoff}, s{sWoff}, s{sFr}")
        a(f"    s_add_u32 s{sWoff}, s{sWoff}, {16*4096}")
        a(f"    buffer_load_dwordx4 v{VL16}, s[{sWS}:{sWS+3}], s{sWoff} offen lds")
        a(f"    buffer_load_dwordx2 v[{OWNP}:{OWNP+1}], v{VOWN}, s[{sPOS}:{sPOS+3}], s{t4} offen")
        a(f"    s_mov_b32 s{t2}, {256*256}")
        a(f"    buffer_load_ushort v{WD}, v{VWD}, s[{sMI}:{sMI+3}], s{t2} offen")
        a(f"    s_lshl_b32 s{sWoff}, s{sW}, 13\n    s_add_u32 s{sWoff}, s{sWoff}, s{sFr}\n    s_add_u32 s{sWoff}, s{sWoff}, {WEF_BYTES}")
        for s_ in range(4):
            a(f"    buffer_load_dwordx4 v[{WHL+4*s_}:{WHL+4*s_+3}], v{VL16}, s[{sWS}:{sWS+3}], s{sWoff} offen offset:{1024*s_}")
    zf = []
    for r in range(NZ):
        w_ = f"ds_write_b128 v{A1}, v[{Z}:{Z+3}] offset:{(r % 8) * 8192}"
        pre = [f"v_add_u32 v{A1}, 65536, v{A1}"] if r == 8 else []
        if r == NZ - 1:
            zf.append(pre + [f"v_cmp_gt_u32 vcc, {ZLAST}, v0", f"s_and_saveexec_b64 s[4:5], vcc", w_, f"s_mov_b64 exec, s[4:5]"])
        else: zf.append(pre + [w_])
    c = []
    e_, h_ = A0, A2_
    c += [f"v_and_b32 v{e_}, 31, v{l}", f"v_lshrrev_b32 v{h_}, 5, v{l}"]
    c += [f"v_mul_u32_u24 v{A5}, {A2H - A2L}, v{h_}", f"v_lshl_add_u32 v{aA2}, v{e_}, 4, v{A5}", f"v_add_u32 v{aA2}, {A2L}, v{aA2}"]
    c += [f"v_lshlrev_b32 v{aA3}, 8, v{h_}", f"v_bfe_u32 v{A5}, v{l}, 4, 1", f"v_lshl_add_u32 v{aA3}, v{A5}, 5, v{aA3}", f"v_bfe_u32 v{A5}, v{l}, 2, 2",
          f"v_lshl_add_u32 v{aA3}, v{A5}, 6, v{aA3}", f"v_and_b32 v{A5}, 3, v{l}", f"v_lshl_add_u32 v{aA3}, v{A5}, 3, v{aA3}"]
    c += [f"v_lshl_add_u32 v{cBF}, v{h_}, 8, v{aA3}", f"v_add_u32 v{cBF}, s{sStg}, v{cBF}", f"v_add_u32 v{aA3}, {A3T}, v{aA3}"]
    c += [f"v_lshrrev_b32 v{A5}, 2, v{l}", f"v_lshlrev_b32 v{A5}, 3, v{A5}", f"v_add_u32 v{aRH}, {REC}, v{A5}",
          f"v_lshlrev_b32 v{A5}, 3, v{e_}", f"v_add_u32 v{aRE}, {REC}, v{A5}"]
    c += [f"v_and_b32 v{A5}, 3, v{l}", f"v_lshlrev_b32 v{A5}, 4, v{A5}", f"s_lshl_b32 s{t3}, s{sC}, 6", f"v_add_u32 v{iH0+1}, s{t3}, v{A5}", f"v_mov_b32 v{iH1+1}, v{iH0+1}",
          f"v_lshlrev_b32 v{iE+1}, 4, v{h_}"]
    c += [f"v_bfe_u32 v{A5}, v{l}, 2, 2", f"v_mul_u32_u24 v{cHB}, {QSTR}, v{A5}", f"v_and_b32 v{A5}, 3, v{l}", f"v_lshl_add_u32 v{cHB}, v{A5}, 8, v{cHB}",
          f"v_lshrrev_b32 v{A4}, 4, v{l}", f"v_xor_b32 v{A5}, v{A5}, v{A4}", f"v_lshl_add_u32 v{cHB}, v{A5}, 4, v{cHB}", f"v_add_u32 v{cHB}, {HOWN}, v{cHB}"]
    c += [f"v_and_b32 v{A5}, 1, v{e_}", f"v_lshlrev_b32 v{A5}, 4, v{A5}", f"v_mov_b32 v{A4}, 0x3f80", f"v_lshlrev_b32 v{A4}, v{A5}, v{A4}"]
    c += [f"v_bfe_u32 v{A5}, v{e_}, 1, 2", f"v_lshrrev_b32 v{IDN+7}, 4, v{e_}", f"v_lshl_add_u32 v{A5}, v{IDN+7}, 2, v{A5}", f"v_bfe_u32 v{IDN+7}, v{e_}, 3, 1",
          f"v_cmp_eq_u32 vcc, v{IDN+7}, v{h_}", f"s_nop 1", f"v_cndmask_b32 v{A5}, 15, v{A5}, vcc"]
    for q in range(8): c += [f"v_cmp_eq_u32 s[{36+2*q}:{37+2*q}], {q}, v{A5}"]
    for q in range(8): c += [f"v_cndmask_b32 v{IDN+q}, 0, v{A4}, s[{36+2*q}:{37+2*q}]"]
    def blockL():
        a(f"    v_lshlrev_b32 v{A1}, 4, v0")
        a(f"    v_add_u32 v{A1}, {ZSTART}, v{A1}")
        ci = 0
        per = (len(c) + len(zf) - 1) // len(zf)
        for k in range(len(zf)):
            for ins in zf[k]: a("    " + ins)
            for ins in c[ci:ci + per]: a("    " + ins)
            ci += per
        for ins in c[ci:]: a("    " + ins)
    cs_ = [f"s_add_u32 s{sB}, s{sWS}, {WS_B}", f"s_addc_u32 s{sB+1}, s{sWS+1}, 0", f"s_or_b32 s{sB+1}, s{sB+1}, 0x1000000", f"s_mov_b32 s{sB+2}, {N}", f"s_mov_b32 s{sB+3}, 0x00020000",
          f"s_or_b32 s{sEA+1}, s{sEA+1}, 0x200000", f"s_mov_b32 s{sEA+2}, {E}", f"s_mov_b32 s{sEA+3}, 0x00020000",
          f"s_mov_b32 s{sOUT+2}, {N*256+N*6}", f"s_mov_b32 s{sOUT+3}, 0x00020000",
          f"s_mov_b32 s{sMode}, 0", f"s_mov_b32 s{sFirst}, 1", f"s_mov_b32 s{sDPI}, 0", f"s_mov_b32 s{sEn}, {E}", f"s_mov_b32 s{sTL}, 0"]
    for ins in cs_: a("    " + ins)
    a(f"    s_add_u32 s{sB2}, s{sWS}, {WS_B - 1024}\n    s_addc_u32 s{sB2+1}, s{sWS+1}, 0\n    s_or_b32 s{sB2+1}, s{sB2+1}, 0x1000000")
    a(f"    s_mov_b32 s{sB2+2}, {N}\n    s_mov_b32 s{sB2+3}, 0x00020000")
    a(f"    s_or_b32 s{sH+1}, s{sH+1}, 0x1000000")
    a(f"    s_mov_b32 s{sMI+2}, {273*256}\n    s_mov_b32 s{sMI+3}, 0x00020000")
    a(f"    s_lshl_b32 s{sStg}, s{sW}, 11")
    for r in range(4): a(f"    v_mov_b32 v{ZR+r}, 0")
    a(f"    s_cmp_eq_u32 s{sSet}, 0")
    a(f"    s_cbranch_scc0 K2_L")
    blockV()
    a.label("K2_L")
    blockL()
    a(f"    s_cmp_eq_u32 s{sSet}, 0")
    a(f"    s_cbranch_scc1 K2_VLd")
    blockV()
    a.label("K2_VLd")
    n0 = 13
    if cfg.pf_b:
        a(f"    s_lshr_b32 s{t2}, s2, 3")
        a(f"    s_mul_i32 s{t2}, s{t2}, {646*128}")
        a(f"    s_add_u32 s{t2}, s{t2}, {WS_B}")
        a(f"    v_lshlrev_b32 v{A4}, 7, v0")
        a(f"    buffer_load_dword v{T+8}, v{A4}, s[{sWS}:{sWS+3}], s{t2} offen")
        a(f"    v_cmp_gt_u32 vcc, {646-512}, v0")
        a(f"    v_add_u32 v{A4}, 65536, v{A4}")
        a(f"    v_bfrev_b32 v{A5}, -2")
        a(f"    v_cndmask_b32 v{A4}, v{A5}, v{A4}, vcc")
        a(f"    buffer_load_dword v{T+9}, v{A4}, s[{sWS}:{sWS+3}], s{t2} offen")
        n0 += 2
    npf = 2 if cfg.pf_b else 0
    a(f"    s_waitcnt lgkmcnt(0)")
    a(f"    s_barrier")
    st(2)
    a(f"    s_branch K2_fast")
    a.label("K2_zero")
    a(f"    v_lshlrev_b32 v{A1}, 4, v0")
    a(f"    v_add_u32 v{A1}, {ZSTART}, v{A1}")
    for grp in zf:
        for ins in grp: a("    " + ins)
    a(f"    s_waitcnt lgkmcnt(0)")
    a(f"    s_barrier")
    vCB = A5
    a(f"    s_mul_i32 s{t0}, s{sWin}, {WIN}")
    a(f"    s_add_u32 s{sWin}, s{sWin}, 1")
    a(f"    v_add_u32 v{vCB}, s{t0}, v0")
    a(f"    v_lshlrev_b32 v{A0}, 2, v{vCB}")
    a(f"    s_load_dwordx2 s[{sMI}:{sMI+1}], s[0:1], 24")
    a(f"    s_mov_b32 s{sMI+2}, {E*4}")
    a(f"    s_waitcnt lgkmcnt(0)")
    a(f"    buffer_load_dword v{RR+1}, v{A0}, s[{sMI}:{sMI+3}], 0 offen")
    a(f"    s_waitcnt vmcnt(0)")
    a(f"    s_load_dwordx2 s[{sMI}:{sMI+1}], s[0:1], 32")
    a(f"    s_waitcnt lgkmcnt(0)")
    a(f"    buffer_load_dword v{RR+2}, v{A0}, s[{sMI}:{sMI+3}], 0 offen")
    a(f"    s_waitcnt vmcnt(0)")
    a(f"    v_subrev_u32 v{RR+2}, s{sB40}, v{RR+2}")
    a(f"    v_lshl_or_b32 v{RR}, v{RR+2}, 14, v{RR+1}")
    a(f"    v_cmp_gt_u32 vcc, 40, v{RR+2}")
    a(f"    s_movk_i32 s{t0}, {WIN}")
    a(f"    v_cmp_gt_u32 s[{sX}:{sX+1}], s{t0}, v0")
    a(f"    s_and_b64 vcc, vcc, s[{sX}:{sX+1}]")
    a(f"    s_mov_b32 s{t0}, {E}")
    a(f"    v_cmp_gt_u32 s[{sX}:{sX+1}], s{t0}, v{vCB}")
    a(f"    s_and_b64 vcc, vcc, s[{sX}:{sX+1}]")
    a(f"    s_nop 1")
    a(f"    v_cndmask_b32 v{RR}, -1, v{RR}, vcc")
    a(f"    v_mov_b32 v{RR+1}, -1\n    v_mov_b32 v{RR+2}, -1\n    v_mov_b32 v{RR+3}, -1")
    a(f"    s_branch K2_rank")
    a.label("K2_fast")
    a(f"    v_lshrrev_b32 v{vCB}, 3, v0")
    a(f"    v_mul_u32_u24 v{vCB}, {CH}, v{vCB}")
    a(f"    s_waitcnt vmcnt({n0})")
    st(3)
    a(f"    v_cmp_eq_u32 vcc, -2, v{RR}")
    a(f"    s_cbranch_vccnz K2_mark")
    a.label("K2_rank")
    a(f"    v_mov_b32 v{A0}, 1")
    a(f"    v_bfrev_b32 v{A4}, -2")
    for j in range(4):
        r = RR + j
        a(f"    v_cmp_gt_u32 vcc, -2, v{r}")
        a(f"    v_and_b32 v{A1}, 0x3fff, v{r}")
        a(f"    v_mul_u32_u24 v{A1}, 6, v{A1}")
        a(f"    v_bfe_u32 v{GG+j}, v{r}, 17, 3")
        a(f"    v_cndmask_b32 v{A1}, v{A4}, v{A1}, vcc")
        a(f"    s_and_saveexec_b64 s[{sX}:{sX+1}], vcc")
        a(f"    v_lshlrev_b32 v{A2_}, 2, v{GG+j}")
        a(f"    v_add_u32 v{A2_}, {CNT}, v{A2_}")
        a(f"    ds_add_rtn_u32 v{SL+j}, v{A2_}, v{A0}")
        a(f"    s_mov_b64 exec, s[{sX}:{sX+1}]")
        a(f"    buffer_load_dwordx2 v[{PSRC+2*j}:{PSRC+2*j+1}], v{A1}, s[{sPOS}:{sPOS+3}], 0 offen")
    n1 = 4
    a(f"    s_cmp_eq_u32 s{sFirst}, 0")
    a(f"    s_cbranch_scc1 K2_noown")
    a(f"    s_waitcnt vmcnt({n1 + npf})")
    a(f"    v_cmp_gt_u32 vcc, 48, v0")
    a(f"    s_and_saveexec_b64 s[{sX}:{sX+1}], vcc")
    a(f"    v_lshlrev_b32 v{A1}, 3, v0")
    a(f"    v_add_u32 v{A1}, {POSD}, v{A1}")
    a(f"    ds_write_b64 v{A1}, v[{OWNP}:{OWNP+1}]")
    a(f"    s_mov_b64 exec, s[{sX}:{sX+1}]")
    a.label("K2_noown")
    a(f"    s_waitcnt lgkmcnt(0)")
    a(f"    s_barrier")
    st(4)
    a(f"    v_mov_b32 v{A1}, {CNT}")
    a(f"    ds_read_b128 v[{M}:{M+3}], v{A1}")
    a(f"    ds_read_b64 v[{M+4}:{M+5}], v{A1} offset:16")
    for j in range(4):
        a(f"    v_bfe_u32 v{A2_}, v{RR+j}, 14, 6")
        a(f"    v_lshlrev_b32 v{A2_}, 3, v{A2_}")
        a(f"    v_add_u32 v{A2_}, {POSD}, v{A2_}")
        a(f"    ds_read_b64 v[{PDST+2*j}:{PDST+2*j+1}], v{A2_}")
    a(f"    s_waitcnt lgkmcnt(4)")
    for g in range(6): a(f"    v_readfirstlane_b32 s{sCnt+g}, v{M+g}")
    a(f"    s_cmp_eq_u32 s{sFirst}, 0")
    a(f"    s_cbranch_scc1 K2_nowf")
    a(f"    v_lshlrev_b32 v{A2_}, 4, v{l}")
    a(f"    s_lshl_b32 s{t5}, s{sC}, 10")
    a(f"    v_add_u32 v{A2_}, s{t5}, v{A2_}")
    for q in range(8):
        a(f"    ds_read_b128 v[{W1F+4*q}:{W1F+4*q+3}], v{A2_} offset:{STG + q*4096}")
    a(f"    ds_read_b128 v[{W4F}:{W4F+3}], v{A2_} offset:{STG + 32768}")
    a.label("K2_nowf")
    nt = [t0, t1, t2, t3, t4]
    for g in range(5):
        a(f"    s_add_u32 s{nt[g]}, s{sCnt+g}, 31")
        a(f"    s_lshr_b32 s{nt[g]}, s{nt[g]}, 5")
    a(f"    s_add_u32 s4, s{t0}, s{t1}")
    a(f"    s_add_u32 s5, s4, s{t2}")
    a(f"    s_add_u32 s6, s5, s{t3}")
    a(f"    s_add_u32 s7, s6, s{t4}")
    a(f"    s_cmp_gt_u32 s7, {MAXT}")
    a(f"    s_cselect_b32 s{t5}, 1, 0")
    a(f"    s_or_b32 s{t5}, s{t5}, s{sCnt+5}")
    a(f"    s_cmp_lg_u32 s{t5}, 0")
    a(f"    s_cbranch_scc1 K2_toslow")
    a(f"    s_lshl_b32 s{sPK}, s{t0}, 5")
    a(f"    s_lshl_b32 s{t5}, s4, 10\n    s_or_b32 s{sPK}, s{sPK}, s{t5}")
    a(f"    s_lshl_b32 s{t5}, s5, 15\n    s_or_b32 s{sPK}, s{sPK}, s{t5}")
    a(f"    s_lshl_b32 s{t5}, s6, 20\n    s_or_b32 s{sPK}, s{sPK}, s{t5}")
    for j in range(4):
        r = RR + j
        a(f"    v_cmp_gt_u32 vcc, -2, v{r}")
        a(f"    s_and_saveexec_b64 s[84:85], vcc")
        a(f"    s_cbranch_execz K2_rw{j}")
        a(f"    v_mul_u32_u24 v{A0}, 5, v{GG+j}")
        a(f"    v_bfe_u32 v{A0}, s{sPK}, v{A0}, 5")
        a(f"    v_lshl_add_u32 v{SL+j}, v{A0}, 5, v{SL+j}")
        a(f"    v_lshlrev_b32 v{A0}, 3, v{SL+j}")
        a(f"    v_and_b32 v{A2_}, 0x3fff, v{r}")
        a(f"    v_lshrrev_b32 v{A3_}, 20, v{r}")
        a(f"    v_add_u32 v{A3_}, v{A3_}, v{vCB}")
        a(f"    v_add_u32 v{A0}, {REC}, v{A0}")
        a(f"    ds_write_b64 v{A0}, v[{A2_}:{A3_}]")
        a.label(f"K2_rw{j}")
        a(f"    s_mov_b64 exec, s[84:85]")
    a(f"    s_add_u32 s{t5}, s7, 1")
    a(f"    s_lshr_b32 s{t5}, s{t5}, 1")
    a(f"    s_max_u32 s{t5}, s{t5}, s4")
    a(f"    s_min_u32 s{t5}, s{t5}, s5")
    a(f"    s_sub_u32 s{t3}, s7, s{t5}")
    a(f"    s_sub_u32 s{t4}, s{t5}, s4")
    a(f"    s_lshl_b32 s{t4}, s{t4}, 5")
    a(f"    s_min_u32 s{t1}, s{sCnt+2}, s{t4}")
    a(f"    s_sub_u32 s{t2}, s{sCnt+2}, s{t1}")
    a(f"    s_cmp_eq_u32 s{sSet}, 0")
    a(f"    s_cselect_b32 s{sTf}, 0, s{t5}")
    a(f"    s_cselect_b32 s{sTs}, s{t5}, s{t3}")
    a(f"    s_cselect_b32 s{sBx}, s{t0}, s5")
    a(f"    s_cselect_b32 s{sBx2}, s4, s6")
    a(f"    s_cselect_b32 s{sRem}, s{sCnt}, s{t2}")
    a(f"    s_cselect_b32 s{sRem1}, s{sCnt+1}, s{sCnt+3}")
    a(f"    s_cselect_b32 s{sRem2}, s{t1}, s{sCnt+4}")
    a(f"    s_sub_u32 s{sBx}, s{sBx}, s{sTf}")
    a(f"    s_sub_u32 s{sBx2}, s{sBx2}, s{sTf}")
    a(f"    s_mov_b32 s{sBd}, s{sBx}\n    s_mov_b32 s{sBd2}, s{sBx2}")
    a(f"    s_mov_b32 s{sKx}, 0\n    s_mov_b32 s{sKd}, 0")
    a(f"    s_sub_u32 s{sD}, s{sTs}, 1")
    a(f"    s_sub_u32 s{sEv}, s{sD}, s{sBx}")
    a(f"    s_cmp_eq_u32 s{sMode}, 0")
    a(f"    s_cbranch_scc0 K2_readdr")
    a.label("K2_addrok")
    a(f"    s_lshl_b32 s{t0}, s{sTf}, 9")
    a(f"    v_add_u32 v{aA2}, s{t0}, v{aA2}")
    a(f"    s_lshl_b32 s{t0}, s{sTf}, 11")
    a(f"    v_add_u32 v{aA3}, s{t0}, v{aA3}")
    a(f"    s_lshl_b32 s{t0}, s{sTf}, 8")
    a(f"    v_add_u32 v{aRH}, s{t0}, v{aRH}")
    a(f"    v_add_u32 v{aRE}, s{t0}, v{aRE}")
    a(f"    s_waitcnt lgkmcnt(0)")
    a(f"    s_barrier")
    st(5)
    PI = D[0]; PJ = WHH; PK2 = WHH + 6
    for (P_, tix) in ((PI, 0), (PJ, 1), (PK2, 2)):
        a(f"    ds_read_u16 v{P_+0}, v{aRH} offset:{256*tix}")
        a(f"    ds_read_u16 v{P_+2}, v{aRH} offset:{256*tix+128}")
        a(f"    ds_read_b32 v{P_+4}, v{aRE} offset:{256*tix+4}")
    a(f"    ds_read_u16 v{iH0}, v{aRH} offset:768")
    a(f"    ds_read_u16 v{iH1}, v{aRH} offset:{768+128}")
    a(f"    ds_read_b32 v{iE}, v{aRE} offset:{768+4}")
    for P_ in (PI, PJ, PK2):
        a(f"    v_mov_b32 v{P_+1}, v{iH0+1}\n    v_mov_b32 v{P_+3}, v{iH0+1}\n    v_mov_b32 v{P_+5}, v{iE+1}")
    def b_issue(p0, p1, slot, filler=None):
        a(f"    s_add_u32 m0, s{sStg}, {slot*SLOT}")
        if filler: filler()
        else: a(f"    s_nop 0")
        a(f"    buffer_load_dwordx4 v[{p0}:{p0+1}], s[{sB}:{sB+3}], 0 idxen offen lds")
        a(f"    buffer_load_dwordx4 v[{p1}:{p1+1}], s[{sB2}:{sB2+3}], 0 idxen offen offset:1024 lds")
    def e_issue(pair, dst):
        a(f"    buffer_load_dwordx4 v[{dst}:{dst+3}], v[{pair}:{pair+1}], s[{sEA}:{sEA+3}], 0 idxen offen")
    a(f"    s_waitcnt lgkmcnt(9)")
    b_issue(PI + 0, PI + 2, 0)
    e_issue(PI + 4, EFB[0])
    st(6)
    a(f"    s_cmp_eq_u32 s{sFirst}, 0")
    a(f"    s_cbranch_scc1 K2_noX")
    a(f"    s_mov_b32 s{sFirst}, 0")
    a(f"    v_and_b32 v{A0}, 31, v{l}")
    a(f"    s_lshl_b32 s{t0}, s{sSet}, 4")
    a(f"    v_add_u32 v{A0}, s{t0}, v{A0}")
    a(f"    v_lshrrev_b32 v{A1}, 2, v{A0}")
    a(f"    v_mul_u32_u24 v{A1}, {QSTR}, v{A1}")
    a(f"    v_and_b32 v{A4}, 3, v{A0}")
    a(f"    v_lshl_add_u32 v{A1}, v{A4}, 8, v{A1}")
    a(f"    v_add_u32 v{A1}, {HOWN}, v{A1}")
    a(f"    v_lshrrev_b32 v{A5}, 5, v{l}")
    a(f"    v_xor_b32 v{A5}, v{A5}, v{A4}")
    a(f"    v_lshl_add_u32 v{A0}, v{A5}, 4, v{A1}")
    a(f"    v_xor_b32 v{A5}, 2, v{A5}")
    a(f"    v_lshl_add_u32 v{A1}, v{A5}, 4, v{A1}")
    XA = D[0]
    FR = T
    fr = [BF, BF + 4, AF, M]
    a(f"    s_waitcnt lgkmcnt(0)")
    for half in range(2):
        for u in range(4):
            s_ = half * 4 + u
            ad = A0 if s_ % 2 == 0 else A1
            a(f"    ds_read_b128 v[{fr[u]}:{fr[u]+3}], v{ad} offset:{(s_ >> 1) * 64}")
        for u in range(4):
            s_ = half * 4 + u
            a(f"    s_waitcnt lgkmcnt({3-u})")
            a(mfma(XA, fr[u], W1F + 4 * s_, None if s_ == 0 else XA))
    for ntile in range(3):
        for s_ in range(4):
            dst = DP + (ntile * 4 + s_) * 4
            a(f"    ds_read_b128 v[{dst}:{dst+3}], v{cHB} offset:{ntile * 4 * QSTR + 64 * s_}")
    a(f"    v_lshrrev_b32 v{A4}, 4, v{l}")
    a(f"    v_lshrrev_b32 v{A5}, 1, v{A4}")
    a(f"    s_lshl_b32 s{t0}, s{sW}, 1")
    a(f"    v_add_u32 v{A5}, s{t0}, v{A5}")
    a(f"    v_and_b32 v{A0}, 3, v{l}")
    a(f"    v_xor_b32 v{A5}, v{A5}, v{A0}")
    a(f"    v_lshlrev_b32 v{A5}, 4, v{A5}")
    a(f"    v_and_b32 v{A4}, 1, v{A4}")
    a(f"    v_lshl_add_u32 v{A5}, v{A4}, 3, v{A5}")
    a(f"    v_lshl_add_u32 v{A5}, v{A0}, 8, v{A5}")
    a(f"    v_bfe_u32 v{A4}, v{l}, 2, 2")
    a(f"    v_mul_u32_u24 v{A4}, {QSTR}, v{A4}")
    a(f"    v_add3_u32 v{A5}, v{A5}, v{A4}, v{A1}" if False else f"    v_add_u32 v{A5}, v{A5}, v{A4}")
    a(f"    v_add_u32 v{A5}, {HOWN}, v{A5}")
    for ntile in range(3):
        a(f"    ds_read_b64 v[{RES+2*ntile}:{RES+2*ntile+1}], v{A5} offset:{ntile * 4 * QSTR}")
    cs = -LOG2E
    a(f"    s_mov_b32 s{t0}, {hex(f32bits(cs))}")
    a(f"    v_lshlrev_b32 v{WD}, 16, v{WD}")
    a(f"    v_mul_f32 v{WD}, s{t0}, v{WD}")
    a(f"    v_cvt_pk_bf16_f32 v{A4}, v{WD}, v{WD}")
    a(f"    v_and_b32 v{A5}, 0xffff0000, v{A4}")
    a(f"    v_sub_f32 v{A0}, v{WD}, v{A5}")
    a(f"    v_cvt_pk_bf16_f32 v{A4}, v{A5}, v{A0}")
    a(f"    v_cmp_gt_u32 vcc, 32, v{l}")
    a(f"    s_nop 1")
    a(f"    v_cndmask_b32 v{A4}, 0, v{A4}, vcc")
    for ntile in range(3):
        for s_ in range(4):
            src = DP + (ntile * 4 + s_) * 4
            a(f"    s_waitcnt lgkmcnt({11 - (ntile*4+s_) + 3})" )
            c_ = "0" if s_ == 0 else f"v[{HP+4*ntile}:{HP+4*ntile+3}]"
            a(f"    v_mfma_f32_16x16x32_bf16 v[{HP+4*ntile}:{HP+4*ntile+3}], v[{WHL+4*s_}:{WHL+4*s_+3}], v[{src}:{src+3}], {c_}")
    for j in range(3):
        b_ = XA + 4 * j
        a(f"    v_mul_f32 v{b_}, s{t0}, v{b_}\n    v_mul_f32 v{b_+1}, s{t0}, v{b_+1}\n    v_mul_f32 v{b_+2}, s{t0}, v{b_+2}\n    v_mul_f32 v{b_+3}, s{t0}, v{b_+3}")
        x = X + 4 * j
        a(f"    v_cvt_pk_bf16_f32 v{x}, v{b_}, v{b_+1}")
        a(f"    v_cvt_pk_bf16_f32 v{x+1}, v{b_+2}, v{b_+3}")
        a(f"    v_mov_b32 v{x+2}, v{A4}")
        a(f"    v_mov_b32 v{x+3}, 0")
        a(f"    s_nop 1")
        a(f"    v_permlane32_swap_b32 v{x}, v{x+2}")
        a(f"    v_permlane32_swap_b32 v{x+1}, v{x+3}")
    a.label("K2_noX")
    a(f"    s_waitcnt lgkmcnt(0)")
    b_issue(PJ + 0, PJ + 2, 1)
    e_issue(PJ + 4, EFB[1])
    for r in range(4): a(f"    v_mov_b32 v{XC+r}, v{X+r}")
    st(7)
    a(f"    s_waitcnt vmcnt(6) lgkmcnt(0)")
    for j in range(4):
        r = RR + j
        ps, pd = PSRC + 2 * j, PDST + 2 * j
        a(f"    v_cmp_gt_u32 vcc, -2, v{r}")
        a(f"    s_and_saveexec_b64 s[{sX}:{sX+1}], vcc")
        a(f"    s_cbranch_execz K2_bd{j}")
        h0, h1, h2, h3 = BF, BF + 1, BF + 2, BF + 3
        a(f"    v_lshlrev_b32 v{h0}, 16, v{pd}\n    v_lshlrev_b32 v{h1}, 16, v{ps}\n    v_sub_f32 v{h0}, v{h0}, v{h1}")
        a(f"    v_and_b32 v{h1}, 0xffff0000, v{pd}\n    v_and_b32 v{h2}, 0xffff0000, v{ps}\n    v_sub_f32 v{h1}, v{h1}, v{h2}")
        a(f"    v_lshlrev_b32 v{h2}, 16, v{pd+1}\n    v_lshlrev_b32 v{h3}, 16, v{ps+1}\n    v_sub_f32 v{h2}, v{h2}, v{h3}")
        g0, g1, g2, g3 = AF, AF + 1, AF + 2, AF + 3
        a(f"    v_cvt_pk_bf16_f32 v{g0}, v{h0}, v{h1}")
        a(f"    v_cvt_pk_bf16_f32 v{g1}, v{h2}, v{h2}")
        a(f"    v_lshlrev_b32 v{h0}, 16, v{g0}\n    v_and_b32 v{h1}, 0xffff0000, v{g0}\n    v_and_b32 v{h2}, 0xffff0000, v{g1}")
        a(f"    v_mul_f32 v{h0}, v{h0}, v{h0}\n    v_mul_f32 v{h1}, v{h1}, v{h1}\n    v_mul_f32 v{h2}, v{h2}, v{h2}")
        a(f"    v_cvt_pk_bf16_f32 v{g2}, v{h0}, v{h1}\n    v_cvt_pk_bf16_f32 v{g3}, v{h2}, v{h2}")
        a(f"    v_lshlrev_b32 v{h0}, 16, v{g2}\n    v_and_b32 v{h1}, 0xffff0000, v{g2}\n    v_and_b32 v{h2}, 0xffff0000, v{g3}")
        a(f"    v_add_f32 v{h0}, v{h0}, v{h1}\n    v_add_f32 v{h0}, v{h0}, v{h2}")
        a(f"    v_cvt_pk_bf16_f32 v{g2}, v{h0}, v{h0}")
        a(f"    v_mov_b32 v{h0}, 0x3f80")
        a(f"    v_lshl_or_b32 v{h2}, v{g0}, 16, v{h0}")
        a(f"    v_alignbit_b32 v{h3}, v{g1}, v{g0}, 16")
        a(f"    v_bfe_u32 v{A1}, v{r}, 14, 3")
        a(f"    v_lshlrev_b32 v{A4}, 6, v{SL+j}")
        a(f"    v_lshl_add_u32 v{A4}, v{A1}, 3, v{A4}")
        a(f"    v_add_u32 v{A4}, {A3T}, v{A4}")
        a(f"    ds_write_b64 v{A4}, v[{h2}:{h3}]")
        a(f"    v_lshlrev_b32 v{A4}, 4, v{SL+j}")
        a(f"    v_add_u32 v{A5}, {A2H}, v{A4}")
        a(f"    ds_write_b32 v{A5}, v{g2}")
        a(f"    v_lshl_add_u32 v{A4}, v{A1}, 1, v{A4}")
        a(f"    v_add_u32 v{A4}, {A2L}, v{A4}")
        a(f"    ds_write_b16 v{A4}, v{h0}")
        a.label(f"K2_bd{j}")
        a(f"    s_mov_b64 exec, s[{sX}:{sX+1}]")
    b_issue(PK2 + 0, PK2 + 2, 2)
    e_issue(PK2 + 4, EFB[2])
    a(f"    s_cmp_eq_u32 s{sDPI}, 1")
    a(f"    s_cbranch_scc1 K2_nodp")
    a(f"    s_nop 7")
    for k in range(3): a(mfma(DP + 16 * k, ZR, ZR, None))
    a(f"    s_mov_b32 s{sDPI}, 1")
    a.label("K2_nodp")
    a(mfma(DPC, ZR, ZR, None))
    a(f"    s_mov_b32 s{sI}, -1")
    a(f"    v_add_u32 v{aRH}, {4*256}, v{aRH}")
    a(f"    v_add_u32 v{aRE}, {4*256}, v{aRE}")
    a(f"    s_waitcnt lgkmcnt(0)")
    st(8)
    a(f"    s_barrier")
    st(9)
    if cfg.only_set >= 0:
        a(f"    s_cmp_eq_u32 s{sSet}, {cfg.only_set}")
        a(f"    s_cselect_b32 s{sTs}, s{sTs}, 0")
    if cfg.prio >= 0:
        a(f"    s_cmp_eq_u32 s{sSet}, {cfg.prio}")
        a(f"    s_cbranch_scc0 K2_noprio")
        a(f"    s_setprio 1")
        a.label("K2_noprio")
    a(f"    s_cmp_eq_u32 s{sTs}, 0")
    a(f"    s_cbranch_scc1 K2_loopdone")

    def top(m, with_tr, roff, aoff2, aoff3, ret):
        rs = (m + 1) & 3
        a(f"    s_waitcnt vmcnt(6)")
        for u in range(4):
            a(f"    ds_read_b64_tr_b16 v[{BF+2*u}:{BF+2*u+1}], v{cBF} offset:{rs*SLOT + [0, 256, 1024, 1280][u]}")
        a(f"    ds_read_b128 v[{AF}:{AF+3}], v{aA2} offset:{aoff2}")
        if with_tr:
            for u in range(4):
                a(f"    ds_read_b64_tr_b16 v[{TR+2*u}:{TR+2*u+1}], v{aA3} offset:{aoff3 + 512*u}")
        b_issue(iH0, iH1, m & 3, filler=lambda: a(f"    s_cmp_eq_u32 s{sD}, s{sEv}"))
        e_issue(iE, EFB[m & 3])
        a(f"    ds_read_u16 v{iH0}, v{aRH} offset:{roff}")
        a(f"    ds_read_u16 v{iH1}, v{aRH} offset:{roff + 128}")
        a(f"    ds_read_b32 v{iE}, v{aRE} offset:{roff + 4}")
        a(f"    s_cbranch_scc1 K2_ev{ret}")
        a.label(f"K2_evr{ret}")
    def silu_h(Dc, hf, mids, pre_cvt_last=None):
        d = Dc + 8 * hf
        if mids[0]: mids[0]()
        for i in range(4): a(f"    v_exp_f32 v{T+i}, v{d+i}")
        if mids[1]: mids[1]()
        for i in range(4, 8): a(f"    v_exp_f32 v{T+i}, v{d+i}")
        for i in range(0, 8, 2): a(f"    v_pk_add_f32 v[{T+i}:{T+i+1}], v[{T+i}:{T+i+1}], 1.0 op_sel_hi:[1,0]")
        if mids[2]: mids[2]()
        for i in range(4): a(f"    v_rcp_f32 v{T+i}, v{T+i}")
        if mids[3]: mids[3]()
        for i in range(4, 8): a(f"    v_rcp_f32 v{T+i}, v{T+i}")
        for i in range(0, 8, 2): a(f"    v_pk_mul_f32 v[{T+8+i}:{T+8+i+1}], v[{d+i}:{d+i+1}], v[{T+i}:{T+i+1}]")
        for i in range(4): a(f"    v_cvt_pk_bf16_f32 v{M+4*hf+i}, v{T+8+2*i}, v{T+8+2*i+1}")

    top(3, False, 0, 0, 0, 4)
    a(f"    v_add_u32 v{aRH}, 256, v{aRH}\n    v_add_u32 v{aRE}, 256, v{aRE}\n    v_add_u32 v{aA2}, 512, v{aA2}")
    Dn = D[1]
    a(mfma(Dn, EFB[0], W4F, None))
    a(f"    s_waitcnt lgkmcnt(3)")
    a(mfma(Dn, AF, XC, Dn))
    a(mfma(Dn, IDN, BF, Dn))
    a(mfma(Dn, IDN + 4, BF + 4, Dn))
    a(f"    s_waitcnt lgkmcnt(0)")
    a(f"    s_sub_u32 s{sD}, s{sD}, 1")
    a(f"    s_cbranch_scc1 K2_ex3")

    def body(m):
        Dc, Dn = (D[1], D[0]) if m % 2 == 0 else (D[0], D[1])
        a.label(f"K2_it{m}")
        if cfg.tprio == 1: a(f"    s_setprio 1")
        if cfg.tprio == 2: a(f"    s_setprio 0")
        top(m, True, m * 256, m * 512, m * 2048, m)
        f = lambda ins: (lambda: a(ins))
        def m_af():
            a(f"    s_waitcnt lgkmcnt(7)")
            a(mfma(Dn, AF, XC, Dn))
        a(mfma(Dn, EFB[(m + 1) & 3], W4F, None))
        silu_h(Dc, 0, [None, m_af, f(mfma(Dn, IDN, BF, Dn)), f(mfma(Dn, IDN + 4, BF + 4, Dn))])
        a(f"    s_waitcnt lgkmcnt(0)")
        if cfg.tprio == 1: a(f"    s_setprio 0")
        if cfg.tprio == 2: a(f"    s_setprio 1")
        silu_h(Dc, 1, [None, f(mfma(DPC, M, TR, DPC)), None, None])
        a(f"    s_sub_u32 s{sD}, s{sD}, 1")
        if m == 3:
            a(f"    v_add_u32 v{aRH}, 1024, v{aRH}\n    v_add_u32 v{aRE}, 1024, v{aRE}\n    v_add_u32 v{aA2}, 2048, v{aA2}\n    v_add_u32 v{aA3}, 8192, v{aA3}")
        else:
            a(f"    s_nop 0")
        a(mfma(DPC, M + 4, TR + 4, DPC))
        a(f"    s_cbranch_scc1 K2_ex{m}")
    _l0 = len(a.lines)
    for m in range(4): body(m)
    new = []
    for ln in "\n".join(a.lines[_l0:]).split("\n"):
        t = ln.strip()
        if cfg.l_nolds and t.startswith("ds_read") and "u16" not in t and "ds_read_b32" not in t: continue
        if cfg.l_novm and t.startswith("buffer_load") and (cfg.l_novm == 1 or (cfg.l_novm == 2 and " lds" in t) or (cfg.l_novm == 3 and " lds" not in t)): continue
        if cfg.l_nomf and t.startswith("v_mfma"): continue
        if cfg.l_nosi and t.startswith(("v_exp", "v_rcp", "v_pk_", "v_cvt_pk")): continue
        new.append(ln)
    a.lines[_l0:] = new
    a(f"    s_branch K2_it0")
    for m in range(4):
        nm = (m + 1) & 3
        a.label(f"K2_ex{m}")
        if nm: a(f"    v_add_u32 v{aA3}, {nm * 2048}, v{aA3}")
        a(f"    s_branch K2_epi{1 if nm % 2 == 0 else 0}")

    for ret in range(7):
        a.label(f"K2_ev{ret}")
        a(f"    s_mov_b32 s{sRet}, {ret}")
        if ret != 6: a(f"    s_branch K2_ev")
    a(f"    s_branch K2_dsw")
    a.label("K2_ev")
    a(f"    s_sub_u32 s{sI}, s{sTs}, 2")
    a(f"    s_sub_u32 s{sI}, s{sI}, s{sD}")
    a.label("K2_evx")
    a(f"    s_add_u32 s4, s{sI}, 1")
    a(f"    s_cmp_eq_u32 s4, s{sBx}")
    a(f"    s_cbranch_scc0 K2_evd")
    a(f"    s_add_u32 s{sKx}, s{sKx}, 1")
    a(f"    s_mov_b32 s{sBx}, s{sBx2}")
    a(f"    s_mov_b32 s{sBx2}, 0x7fff")
    a(f"    s_cmp_eq_u32 s{sKx}, 1")
    a(f"    s_cbranch_scc0 K2_evx2")
    for r in range(4): a(f"    v_mov_b32 v{XC+r}, v{X+4+r}")
    a(f"    s_branch K2_evx")
    a.label("K2_evx2")
    for r in range(4): a(f"    v_mov_b32 v{XC+r}, v{X+8+r}")
    a(f"    s_branch K2_evx")
    a.label("K2_evd")
    a(f"    s_cmp_eq_u32 s{sI}, s{sBd}")
    a(f"    s_cbranch_scc0 K2_evn")
    a.label("K2_dsw")
    a(f"    s_cmp_eq_u32 s{sKd}, 1\n    s_cbranch_scc1 K2_dsw_1")
    a(f"    s_cmp_eq_u32 s{sKd}, 2\n    s_cbranch_scc1 K2_dsw_2")
    for k in range(3):
        if k: a.label(f"K2_dsw_{k}")
        for r in range(0, 16, 2): a(f"    v_pk_add_f32 v[{DP+16*k+r}:{DP+16*k+r+1}], v[{DP+16*k+r}:{DP+16*k+r+1}], v[{DPC+r}:{DPC+r+1}]")
        if k < 2: a(f"    s_branch K2_dsw_c")
    a.label("K2_dsw_c")
    a(mfma(DPC, ZR, ZR, None))
    a(f"    s_add_u32 s{sKd}, s{sKd}, 1")
    a(f"    s_mov_b32 s{sBd}, s{sBd2}")
    a(f"    s_mov_b32 s{sBd2}, 0x7fff")
    a(f"    s_cmp_eq_u32 s{sRet}, 6\n    s_cbranch_scc1 K2_evr6")
    a(f"    s_branch K2_evd")
    a.label("K2_evn")
    a(f"    s_sub_u32 s4, s{sBx}, 1")
    a(f"    s_min_i32 s4, s4, s{sBd}")
    a(f"    s_sub_u32 s{sEv}, s{sTs}, 2")
    a(f"    s_sub_u32 s{sEv}, s{sEv}, s4")
    for ret in range(5):
        a(f"    s_cmp_eq_u32 s{sRet}, {ret}\n    s_cbranch_scc1 K2_evr{ret}")
    a(f"    s_branch K2_evr5")
    a.label("K2_mark")
    a(f"    v_mov_b32 v{A0}, 1")
    a(f"    v_mov_b32 v{A1}, {CNT + 20}")
    a(f"    ds_write_b32 v{A1}, v{A0}")
    a(f"    s_branch K2_rank")
    a.label("K2_toslow")
    a(f"    s_mov_b32 s{sMode}, 1")
    a(f"    s_mov_b32 s{sWin}, 0")
    a(f"    s_waitcnt vmcnt(0)")
    a(f"    s_barrier")
    a(f"    s_branch K2_zero")
    a.label("K2_readdr")
    a(f"    v_and_b32 v{A0}, 31, v{l}\n    v_lshrrev_b32 v{A2_}, 5, v{l}")
    a(f"    v_mul_u32_u24 v{A4}, {A2H - A2L}, v{A2_}\n    v_lshl_add_u32 v{aA2}, v{A0}, 4, v{A4}\n    v_add_u32 v{aA2}, {A2L}, v{aA2}")
    a(f"    v_lshlrev_b32 v{A4}, 8, v{A2_}\n    v_sub_u32 v{aA3}, v{cBF}, v{A4}\n    v_subrev_u32 v{aA3}, s{sStg}, v{aA3}\n    v_add_u32 v{aA3}, {A3T}, v{aA3}")
    a(f"    v_lshrrev_b32 v{A4}, 2, v{l}\n    v_lshlrev_b32 v{A4}, 3, v{A4}\n    v_add_u32 v{aRH}, {REC}, v{A4}")
    a(f"    v_lshlrev_b32 v{A4}, 3, v{A0}\n    v_add_u32 v{aRE}, {REC}, v{A4}")
    a(f"    s_branch K2_addrok")

    a.label("K2_epi0")
    for r in range(16): a(f"    v_mov_b32 v{D[1]+r}, v{D[0]+r}")
    def tail_loads():
        a(f"    v_lshlrev_b32 v{A0}, 4, v{l}")
        a(f"    s_lshl_b32 s{t1}, s{sW}, 13")
        a(f"    s_add_u32 s{t1}, s{t1}, s{sFr}")
        a(f"    s_add_u32 s{t1}, s{t1}, {WEF_BYTES + 4096}")
        a(f"    s_mov_b32 s84, s72\n    s_mov_b32 s85, s73\n    s_mov_b32 s86, 256\n    s_mov_b32 s87, 0x00020000")
        a(f"    v_lshrrev_b32 v{A1}, 5, v{l}\n    v_lshlrev_b32 v{A1}, 3, v{A1}\n    s_lshl_b32 s{t2}, s{sC}, 6")
        for s_ in range(2):
            for u in range(2):
                a(f"    buffer_load_dwordx2 v[{WX+4*s_+2*u}:{WX+4*s_+2*u+1}], v{A1}, s[84:87], s{t2} offen offset:{32*s_+16*u}")
        for s_ in range(4):
            a(f"    buffer_load_dwordx4 v[{WHH+4*s_}:{WHH+4*s_+3}], v{A0}, s[{sWS}:{sWS+3}], s{t1} offen offset:{1024*s_}")
    a.label("K2_epi1")
    st(18)
    for u in range(4):
        a(f"    ds_read_b64_tr_b16 v[{TR+2*u}:{TR+2*u+1}], v{aA3} offset:{512*u}")
    a(f"    s_cmp_eq_u32 s{sMode}, 0")
    a(f"    s_cbranch_scc0 K2_epib")
    a(f"    s_mov_b32 s{sTL}, 1")
    tail_loads()
    a.label("K2_epib")
    a(f"    s_cmp_eq_u32 s{sD}, s{sEv}")
    a(f"    s_cbranch_scc1 K2_ev5")
    a.label("K2_evr5")
    silu_h(D[1], 0, [None, None, None, None])
    silu_h(D[1], 1, [None, None, None, None])
    a(f"    s_waitcnt lgkmcnt(0)")
    a(mfma(DPC, M, TR, DPC))
    a(mfma(DPC, M + 4, TR + 4, DPC))
    a(f"    s_nop 7\n    s_nop 2")
    a(f"    s_branch K2_ev6")
    a.label("K2_evr6")
    a.label("K2_loopdone")
    st(10)
    a(f"    s_cmp_eq_u32 s{sMode}, 0")
    a(f"    s_cbranch_scc1 K2_tail")
    a(f"    s_waitcnt vmcnt(0)")
    a(f"    s_barrier")
    a(f"    s_mul_i32 s{t0}, s{sWin}, {WIN}")
    a(f"    s_cmp_ge_u32 s{t0}, {E}")
    a(f"    s_cbranch_scc0 K2_zero")
    a.label("K2_tail")
    a(f"    s_cmp_eq_u32 s{sTL}, 1")
    a(f"    s_cbranch_scc1 K2_tail2")
    tail_loads()
    a.label("K2_tail2")
    a(f"    v_bfe_u32 v{A0}, v{l}, 2, 3")
    a(f"    v_lshrrev_b32 v{A1}, 2, v{A0}")
    a(f"    v_mul_u32_u24 v{A1}, {QSTR}, v{A1}")
    a(f"    v_and_b32 v{A3_}, 3, v{A0}")
    a(f"    v_lshl_add_u32 v{A1}, v{A3_}, 8, v{A1}")
    a(f"    v_lshl_add_u32 v{A1}, v{A3_}, 4, v{A1}")
    a(f"    v_lshrrev_b32 v{A3_}, 5, v{l}")
    a(f"    v_lshl_add_u32 v{A1}, v{A3_}, 3, v{A1}")
    a(f"    s_lshl_b32 s{t1}, s{sC}, 6")
    a(f"    s_add_u32 s{t1}, s{t1}, {HOWN}")
    a(f"    v_add_u32 v{A1}, s{t1}, v{A1}")
    a(f"    v_xor_b32 v{A0}, 16, v{A1}\n    v_xor_b32 v{A2_}, 32, v{A1}\n    v_xor_b32 v{A3_}, 48, v{A1}")
    a(f"    v_and_b32 v{A4}, 31, v{l}")
    a(f"    s_mul_i32 s{t2}, s{sSet}, {3*512}")
    a(f"    s_lshl_b32 s{t1}, s{sC}, 7")
    a(f"    s_add_u32 s{t2}, s{t2}, s{t1}")
    a(f"    s_add_u32 s{t2}, s{t2}, {PPO}")
    a(f"    v_lshl_add_u32 v{A5}, v{A4}, 2, s{t2}")
    a(f"    s_mov_b32 s84, 0x11111111\n    s_mov_b32 s85, 0x11111111")
    PK = T
    PKr = [T, T + 8, BF]
    for k in range(3):
        dp = DP + 16 * k
        for u in range(8):
            a(f"    v_cvt_pk_bf16_f32 v{PKr[k]+u}, v{dp+2*u}, v{dp+2*u+1}")
    TD = [D[0], D[1], DPC]
    a(f"    s_waitcnt vmcnt(4)")
    for k in range(3):
        a(mfma(TD[k], WX, PKr[k], None))
        a(mfma(TD[k], WX + 4, PKr[k] + 4, TD[k]))
    a(f"    s_waitcnt vmcnt(4)")
    a(f"    s_barrier")
    a(f"    s_mov_b64 exec, s[84:85]")
    a(f"    s_cmp_eq_u32 s{sSet}, 0")
    a(f"    s_cbranch_scc0 K2_mi1")
    for k in range(3):
        for j, ad in enumerate((A1, A0, A2_, A3_)):
            a(f"    ds_write_b64 v{ad}, v[{PKr[k]+2*j}:{PKr[k]+2*j+1}] offset:{8 * k // 4 * QSTR}")
    a(f"    s_branch K2_mi2")
    a.label("K2_mi1")
    for k in range(3):
        for j, ad in enumerate((A1, A0, A2_, A3_)):
            a(f"    ds_write_b64 v{ad}, v[{PKr[k]+2*j}:{PKr[k]+2*j+1}] offset:{[48, 24, 32][k] // 4 * QSTR}")
    a.label("K2_mi2")
    a(f"    s_mov_b64 exec, 0xffffffff")
    for k in range(3):
        a(f"    ds_write_b32 v{A5}, v{TD[k]} offset:{512*k}")
    a(f"    s_mov_b64 exec, -1")
    XB = T
    a(f"    s_waitcnt lgkmcnt(0)")
    st(16)
    a(f"    s_barrier")
    st(12)
    AC = D[0]
    FB = DP
    a(mfma(XB, ZR, ZR, None))
    for ntile in range(3):
        for s_ in range(4):
            a(f"    ds_read_b128 v[{FB+16*ntile+4*s_}:{FB+16*ntile+4*s_+3}], v{cHB} offset:{ntile * 4 * QSTR + 64 * s_}")
    a(f"    s_mov_b32 s{sX}, 0x00ff00ff\n    s_mov_b32 s{sX+1}, 0x00ff00ff")
    a(f"    s_mov_b64 exec, s[{sX}:{sX+1}]")
    a(f"    s_waitcnt lgkmcnt(8)")
    a(f"    s_nop 1")
    for s_ in range(4):
        a(f"    ds_read_b128 v[{XB+4*s_}:{XB+4*s_+3}], v{cHB} offset:{12 * QSTR + 64 * s_}")
    a(f"    s_mov_b64 exec, -1")
    a(f"    v_and_b32 v{A2_}, 15, v{l}")
    a(f"    v_add_u32 v{A2_}, s{sB40}, v{A2_}")
    a(f"    v_lshlrev_b32 v{A2_}, 8, v{A2_}")
    a(f"    v_lshrrev_b32 v{A3_}, 4, v{l}")
    a(f"    v_lshl_add_u32 v{A2_}, v{A3_}, 3, v{A2_}")
    a(f"    s_lshl_b32 s{t2}, s{sW}, 5")
    a(f"    v_add_u32 v{OUTA}, s{t2}, v{A2_}")
    for ntile in range(3):
        for s_ in range(4):
            a(f"    s_waitcnt lgkmcnt({11 - (ntile*4+s_) + 4 if (ntile*4+s_) > 3 else 15})" + (" vmcnt(0)" if ntile == 0 and s_ == 0 else ""))
            c_ = "0" if s_ == 0 else f"v[{AC+4*ntile}:{AC+4*ntile+3}]"
            a(f"    v_mfma_f32_16x16x32_bf16 v[{AC+4*ntile}:{AC+4*ntile+3}], v[{WHH+4*s_}:{WHH+4*s_+3}], v[{FB+16*ntile+4*s_}:{FB+16*ntile+4*s_+3}], {c_}")
    for s_ in range(4):
        a(f"    s_waitcnt lgkmcnt({3 - s_})")
        a(f"    v_mfma_f32_16x16x32_bf16 v[{AC+4}:{AC+7}], v[{WHH+4*s_}:{WHH+4*s_+3}], v[{XB+4*s_}:{XB+4*s_+3}], v[{AC+4}:{AC+7}]")
    st(17)
    a(f"    s_mov_b32 s6, {hex(f32bits(-LN2))}")
    a(f"    s_mov_b32 s4, {hex(f32bits(-LOG2E))}")
    a(f"    s_movk_i32 s{t2}, 0x1000")
    a(f"    s_movk_i32 s{t3}, 0x2000")
    RS = DP
    for ntile in range(3):
        rs = RES + 2 * ntile
        a(f"    v_lshlrev_b32 v{RS+4*ntile}, 16, v{rs}\n    v_and_b32 v{RS+4*ntile+1}, 0xffff0000, v{rs}")
        a(f"    v_lshlrev_b32 v{RS+4*ntile+2}, 16, v{rs+1}\n    v_and_b32 v{RS+4*ntile+3}, 0xffff0000, v{rs+1}")
    YY = DP + 16
    order = [0, 2, 1]
    for ntile in order:
        for i in (0, 2):
            x = AC + 4 * ntile + i; hp = HP + 4 * ntile + i
            a(f"    v_pk_fma_f32 v[{x}:{x+1}], v[{x}:{x+1}], s[6:7], v[{hp}:{hp+1}] op_sel_hi:[1,0,1]")
    for ntile in order:
        for i in (0, 2):
            x = AC + 4 * ntile + i; y = YY + 4 * ntile + i
            a(f"    v_pk_mul_f32 v[{y}:{y+1}], v[{x}:{x+1}], s[4:5] op_sel_hi:[1,0]")
    for ntile in order:
        for i in range(4): a(f"    v_exp_f32 v{YY+4*ntile+i}, v{YY+4*ntile+i}")
    for ntile in order:
        for i in (0, 2):
            y = YY + 4 * ntile + i
            a(f"    v_pk_add_f32 v[{y}:{y+1}], v[{y}:{y+1}], 1.0 op_sel_hi:[1,0]")
    for ntile in order:
        for i in range(4): a(f"    v_rcp_f32 v{YY+4*ntile+i}, v{YY+4*ntile+i}")
    for ntile in order:
        for i in (0, 2):
            x = AC + 4 * ntile + i; y = YY + 4 * ntile + i; r_ = RS + 4 * ntile + i
            a(f"    v_pk_fma_f32 v[{x}:{x+1}], v[{x}:{x+1}], v[{y}:{y+1}], v[{r_}:{r_+1}]")
        x = AC + 4 * ntile
        a(f"    v_cvt_pk_bf16_f32 v{TR+2*ntile}, v{x}, v{x+1}")
        a(f"    v_cvt_pk_bf16_f32 v{TR+2*ntile+1}, v{x+2}, v{x+3}")
        if ntile == 0: a(f"    buffer_store_dwordx2 v[{TR}:{TR+1}], v{OUTA}, s[{sOUT}:{sOUT+3}], 0 offen{fo}")
        if ntile == 1: a(f"    buffer_store_dwordx2 v[{TR+2}:{TR+3}], v{OUTA}, s[{sOUT}:{sOUT+3}], s{t2} offen{fo}")
        if ntile == 2:
            a(f"    s_mov_b32 s84, 0x00ff00ff\n    s_mov_b32 s85, 0x00ff00ff")
            a(f"    s_mov_b64 exec, s[84:85]")
            a(f"    buffer_store_dwordx2 v[{TR+4}:{TR+5}], v{OUTA}, s[{sOUT}:{sOUT+3}], s{t3} offen{fo}")
            a(f"    s_mov_b64 exec, -1")
    a(f"    s_cmp_ge_u32 s{sW}, 2")
    a(f"    s_cbranch_scc1 K2_nopos")
    a(f"    v_mul_u32_u24 v{A0}, 171, v0")
    a(f"    v_lshrrev_b32 v{A0}, 9, v{A0}")
    a(f"    v_min_u32 v{A0}, 39, v{A0}")
    a(f"    v_mul_u32_u24 v{A1}, 3, v{A0}")
    a(f"    v_sub_u32 v{A1}, v0, v{A1}")
    a(f"    v_and_b32 v{A1}, 3, v{A1}")
    a(f"    v_lshlrev_b32 v{A2_}, 3, v{A0}")
    a(f"    v_lshl_add_u32 v{A2_}, v{A1}, 1, v{A2_}")
    a(f"    v_add_u32 v{A2_}, {POSD}, v{A2_}")
    a(f"    v_and_b32 v{A4}, 7, v{A0}")
    a(f"    v_lshlrev_b32 v{A4}, 4, v{A4}")
    a(f"    v_lshl_add_u32 v{A4}, v{A1}, 2, v{A4}")
    a(f"    v_lshrrev_b32 v{A0}, 3, v{A0}")
    a(f"    v_cmp_lt_u32 vcc, 2, v{A0}")
    a(f"    ds_read_u16 v{POSO}, v{A2_}")
    a(f"    s_nop 0")
    a(f"    v_addc_co_u32 v{A1}, vcc, 0, v{A0}, vcc")
    a(f"    v_lshl_add_u32 v{A4}, v{A1}, 9, v{A4}")
    a(f"    v_add_u32 v{A4}, {PPO + 4}, v{A4}")
    PQ = M
    for cc in range(4): a(f"    ds_read_b32 v{PQ+cc}, v{A4} offset:{128*cc}")
    a(f"    v_cmp_eq_u32 vcc, 2, v{A0}")
    for cc in range(4): a(f"    ds_read_b32 v{PQ+4+cc}, v{A4} offset:{512+128*cc}")
    a(f"    s_mul_i32 s{t2}, s2, 240")
    a(f"    s_add_u32 s{t2}, s{t2}, {N*256}")
    a(f"    v_lshlrev_b32 v{A0}, 1, v0")
    a(f"    s_waitcnt lgkmcnt(0)")
    a(f"    v_add_f32 v{M}, v{M}, v{M+1}\n    v_add_f32 v{M+2}, v{M+2}, v{M+3}\n    v_add_f32 v{M}, v{M}, v{M+2}")
    a(f"    v_add_f32 v{M+4}, v{M+4}, v{M+5}\n    v_add_f32 v{M+6}, v{M+6}, v{M+7}\n    v_add_f32 v{M+4}, v{M+4}, v{M+6}")
    a(f"    v_cndmask_b32 v{M+4}, 0, v{M+4}, vcc")
    a(f"    v_add_f32 v{A1}, v{M}, v{M+4}")
    a(f"    v_lshlrev_b32 v{POSO}, 16, v{POSO}")
    a(f"    v_fma_f32 v{A1}, v{A1}, s6, v{POSO}")
    a(f"    v_cvt_pk_bf16_f32 v{A1}, v{A1}, v{A1}")
    a(f"    v_cmp_gt_u32 vcc, 120, v0")
    a(f"    s_and_saveexec_b64 s[84:85], vcc")
    a(f"    s_cbranch_execz K2_nopos")
    a(f"    buffer_store_short v{A1}, v{A0}, s[{sOUT}:{sOUT+3}], s{t2} offen{fo}")
    a.label("K2_nopos")
    a(f"    s_mov_b64 exec, -1")
    if cfg.dbg:
        st(13)
        a(f"    s_waitcnt vmcnt(0)")
        st(14)
        a(f"    v_writelane_b32 v{vST}, s{sTs}, 15")
        a(f"    s_getreg_b32 s6, hwreg(HW_REG_XCC_ID)\n    s_add_u32 s6, s6, 1\n    v_writelane_b32 v{vST}, s6, 20")
        stamp_store(a, cfg, vST, sWS, 0x140000, sW, A0, sMI)
    a.label("K2_done")
    a("    s_endpgm")
    a.label("K2_end")
    return nv

HEADER = """; EGNN layer, two launches.  Kernarg (88 bytes): h, pos, e_attr, src, dst, w_e, w_x, w_h, out, debug, ws
; @launch kernel=k1_kernel grid=({g1},1,1) block=(512,1,1) lds={lds1}
; @launch kernel=k2_kernel grid=(250,1,1) block=(512,1,1) lds={lds2}
.amdgcn_target "amdgcn-amd-amdhsa--gfx950"
.text
"""
def desc(name, nv, ns):
    acc = (nv + 3) // 4 * 4
    return f""".p2align 6
.amdhsa_kernel {name}
  .amdhsa_next_free_vgpr {nv}
  .amdhsa_next_free_sgpr {ns}
  .amdhsa_accum_offset {acc}
  .amdhsa_group_segment_fixed_size 0
  .amdhsa_kernarg_size 88
  .amdhsa_user_sgpr_count 2
  .amdhsa_user_sgpr_kernarg_segment_ptr 1
  .amdhsa_system_sgpr_workgroup_id_x 1
  .amdhsa_float_denorm_mode_32 3
.end_amdhsa_kernel
"""
def generate(cfg):
    a = Asm()
    a(HEADER.format(g1=cfg.g1, lds1=K1_LDS, lds2=LDS2))
    gen_k1(a, cfg)
    nv = gen_k2(a, cfg)
    a('.section .rodata,"a"')
    a(desc("k1_kernel", 128, 72))
    a(desc("k2_kernel", nv, 102))
    return a.text(), nv

if __name__ == "__main__":
    cfg = Cfg()
    out = sys.argv[1] if len(sys.argv) > 1 else "egnn9.s"
    for kv in sys.argv[2:]:
        k, val = kv.split("=", 1)
        cur = getattr(cfg, k)
        setattr(cfg, k, val if isinstance(cur, str) else type(cur)(eval(val)))
    txt, nv = generate(cfg)
    open(out, "w").write(txt)
    print("vgprs", nv)
    check_hazards(txt)
```

```python
import sys, struct
from asmlib import *

def f32bits(x): return struct.unpack("<I", struct.pack("<f", x))[0]
LOG2E = 1.4426950408889634
LN2 = 0.6931471805599453
N = 10000; E = 160000; NB = 250; CH = 2500
CELL_BYTES = NB * 64 * 128
WS_FR = 0x200000
WEF_BYTES = 17 * 4 * 1024
WHF_OFF = WS_FR + WEF_BYTES
FRS = 0x22000
WS_B = 0x320000
WS_USED = WS_B + N * 256
DBG_OFF = 0x800000
QSTR = 1088
MAXT = 27
STG = 0; SSTR = 2048; NR = 4
SLOT = 8 * SSTR
A3T = NR * SLOT
A2L = A3T + MAXT * 32 * 64
A2H = A2L + MAXT * 32 * 16
REC = A2H + MAXT * 32 * 16
CNT = REC + (MAXT + 7) * 32 * 8
ZSTART = A3T; NZ = 12
POSD = 163840 - 512
ZLAST = (POSD - (ZSTART + 11 * 8192)) // 16
HOWN = 3 * SLOT
LDS2 = 163840
WIN = 192
K1_LDS = 32768 + 16 * QSTR
G_GEMM = 157
W_SORT = 160; W_PREP = 224; W_PREF = 256
PPO = CNT + 64
assert PPO + 3072 <= POSD and ZLAST <= 512

class Cfg:
    g1 = 264
    pf_ea = False
    pf_code = True
    pf_b = False
    dbg = False
    qskip = True
    st_k1 = ""
    gemm_lds = True
    tlb = False
    pf_h = False
    ab_nob = False
    st_out = ""
    tprio = 1
    few = False
    fewset = (0, 9, 12, 14)
    only_set = -1
    prio = -1
    l_nolds = False
    l_novm = 0
    l_nomf = False
    l_nosi = False
    l_nopk = False
    ab_noe = False
    ab_now = False
    ab_noz = False
    ab_noc = False
    ab_notail = False

def srd(a, d, base, nrec, stride=0):
    a(f"    s_mov_b32 s{d}, s{base}")
    a(f"    s_and_b32 s{d+1}, s{base+1}, 0xffff")
    if stride: a(f"    s_or_b32 s{d+1}, s{d+1}, {hex(stride << 16)}")
    a(f"    s_mov_b32 s{d+2}, {nrec}")
    a(f"    s_mov_b32 s{d+3}, 0x00020000")
def stamp(a, cfg, vreg, idx, sp=6):
    if not cfg.dbg: return
    if cfg.few and vreg != 127 and idx not in cfg.fewset: return
    if cfg.few and vreg == 127 and idx not in (0, 5): return
    a(f"    s_memrealtime s[{sp}:{sp+1}]")
    a(f"    s_waitcnt lgkmcnt(0)")
    a(f"    v_writelane_b32 v{vreg}, s{sp}, {idx}")
    a(f"    s_memtime s[{sp}:{sp+1}]")
    a(f"    s_waitcnt lgkmcnt(0)")
    a(f"    v_writelane_b32 v{vreg}, s{sp}, {idx + 32}")
def stamp_store(a, cfg, vreg, pws, region, swave, tmpv, srdb):
    if not cfg.dbg: return
    a(f"    s_mov_b64 exec, -1")
    a(f"    s_mov_b32 s{srdb}, s{pws}\n    s_and_b32 s{srdb+1}, s{pws+1}, 0xffff\n    s_mov_b32 s{srdb+2}, 0x1000000\n    s_mov_b32 s{srdb+3}, 0x00020000")
    a(f"    s_lshl_b32 s6, s2, 4")
    a(f"    s_add_u32 s6, s6, s{swave}")
    a(f"    s_lshl_b32 s6, s6, 8")
    a(f"    s_add_u32 s6, s6, {DBG_OFF + region}")
    a(f"    v_mbcnt_lo_u32_b32 v{tmpv}, -1, 0\n    v_mbcnt_hi_u32_b32 v{tmpv}, -1, v{tmpv}\n    v_lshlrev_b32 v{tmpv}, 2, v{tmpv}")
    a(f"    buffer_store_dword v{vreg}, v{tmpv}, s[{srdb}:{srdb+3}], s6 offen")

def gen_k1(a, cfg):
    fl = (" " + cfg.st_k1) if cfg.st_k1 else ""
    def k1_end():
        if cfg.dbg:
            a("    s_mov_b64 exec, -1")
            stamp(a, cfg, 127, 4, 34)
            a("    s_waitcnt vmcnt(0)")
            stamp(a, cfg, 127, 5, 34)
            a("    s_load_dwordx2 s[8:9], s[0:1], 80\n    s_waitcnt lgkmcnt(0)")
            a("    s_getreg_b32 s34, hwreg(HW_REG_XCC_ID)\n    s_add_u32 s34, s34, 1\n    v_writelane_b32 v127, s34, 20")
            a("    v_lshrrev_b32 v126, 6, v0\n    s_nop 0\n    v_readfirstlane_b32 s33, v126")
            stamp_store(a, cfg, 127, 8, 0, 33, 126, 36)
        a("    s_endpgm")
    a(".globl k1_kernel\n.p2align 8\n.type k1_kernel,@function\nk1_kernel:")
    a(f"    s_cmp_ge_u32 s2, {G_GEMM}")
    a("    s_cbranch_scc1 K1_notgemm")
    stamp(a, cfg, 127, 0, 34)
    a("    s_load_dwordx2 s[4:5], s[0:1], 40")
    a("    s_load_dwordx2 s[8:9], s[0:1], 0")
    a("    s_load_dwordx2 s[16:17], s[0:1], 80")
    a("    v_and_b32 v1, 63, v0")
    a("    v_lshrrev_b32 v2, 6, v0")
    a("    s_lshl_b32 s20, s2, 6")
    a("    v_readfirstlane_b32 s21, v2")
    a("    v_lshlrev_b32 v3, 4, v1")
    a("    s_mov_b32 s6, " + str(273 * 256) + "\n    s_mov_b32 s7, 0x00020000")
    a("    v_lshrrev_b32 v4, 4, v1")
    a("    v_and_b32 v5, 15, v1\n    v_xor_b32 v5, v5, v4\n    v_lshlrev_b32 v7, 4, v5")
    a(f"    s_mov_b32 s10, {N}\n    s_mov_b32 s11, 0x00020000")
    a("    s_lshl_b32 s22, s21, 12")
    a(f"    s_add_u32 s23, s22, {128*256}")
    a("    s_lshl_b32 s24, s21, 3\n    s_add_u32 s24, s24, s20")
    a("    v_add_u32 v6, s24, v4")
    a("    v_add_u32 v8, 4, v6\n    v_mov_b32 v9, v7")
    a(f"    s_mul_i32 s25, s21, {2*QSTR}\n    s_add_u32 s25, s25, 32768")
    a("    s_waitcnt lgkmcnt(0)")
    a("    s_or_b32 s9, s9, 0x1000000")
    for j in range(2):
        a(f"    s_add_u32 m0, s25, {j*QSTR}\n    s_nop 0")
        a(f"    buffer_load_dwordx4 v[{6+2*j}:{7+2*j}], s[8:11], 0 idxen offen lds")
    for j in range(4):
        a(f"    s_add_u32 m0, s22, {j*1024}\n    s_add_u32 s26, s23, {j*1024}")
        a(f"    buffer_load_dwordx4 v3, s[4:7], s26 offen lds")
    a("    s_lshr_b32 s26, s21, 2\n    s_and_b32 s27, s21, 3")
    a("    v_lshrrev_b32 v14, 5, v1\n    v_lshlrev_b32 v14, 3, v14\n    v_bfe_u32 v15, v1, 2, 2\n    v_add_u32 v14, v14, v15\n    v_lshlrev_b32 v14, 8, v14")
    a("    v_bfe_u32 v15, v1, 4, 1\n    v_lshl_add_u32 v14, v15, 5, v14\n    v_and_b32 v15, 3, v1\n    v_lshl_add_u32 v14, v15, 3, v14")
    a("    s_lshl_b32 s28, s27, 6\n    v_add_u32 v14, s28, v14")
    a("    v_and_b32 v15, 31, v1\n    v_lshrrev_b32 v16, 2, v15\n    s_lshl_b32 s28, s26, 3\n    v_add_u32 v16, s28, v16")
    a(f"    v_mul_u32_u24 v16, {QSTR}, v16\n    v_and_b32 v17, 3, v15\n    v_lshl_add_u32 v16, v17, 8, v16\n    v_add_u32 v16, 32768, v16")
    a("    v_lshrrev_b32 v18, 5, v1\n    v_xor_b32 v18, v18, v17\n    v_lshl_add_u32 v19, v18, 4, v16\n    v_xor_b32 v18, 2, v18\n    v_lshl_add_u32 v16, v18, 4, v16")
    a("    s_lshl_b32 s28, s26, 5\n    s_add_u32 s28, s28, s20\n    v_add_u32 v18, s28, v15\n    v_lshlrev_b32 v18, 8, v18")
    a("    v_lshrrev_b32 v17, 5, v1\n    v_lshl_add_u32 v18, v17, 4, v18\n    s_lshl_b32 s28, s27, 6\n    v_add_u32 v18, s28, v18")
    a(f"    s_add_u32 s16, s16, {WS_B}\n    s_addc_u32 s17, s17, 0\n    s_mov_b32 s18, {N*256}\n    s_mov_b32 s19, 0x00020000")
    a(f"    s_mov_b32 s28, {hex(f32bits(-LOG2E))}")
    a("    s_waitcnt vmcnt(0)")
    a("    s_barrier")
    stamp(a, cfg, 127, 1, 34)
    AW, BH, DD = 20, 52, 84
    for s_ in range(4):
        a(f"    ds_read_b64_tr_b16 v[{AW+4*s_}:{AW+4*s_+1}], v14 offset:{s_ * 4096}")
        a(f"    ds_read_b64_tr_b16 v[{AW+4*s_+2}:{AW+4*s_+3}], v14 offset:{s_ * 4096 + 1024}")
    for s_ in range(4):
        a(f"    ds_read_b128 v[{BH+4*s_}:{BH+4*s_+3}], v{19 if s_ % 2 == 0 else 16} offset:{(s_ >> 1) * 64}")
    a("    s_waitcnt lgkmcnt(4)")
    for s_ in range(4, 8):
        a(f"    ds_read_b64_tr_b16 v[{AW+4*s_}:{AW+4*s_+1}], v14 offset:{s_ * 4096}")
        a(f"    ds_read_b64_tr_b16 v[{AW+4*s_+2}:{AW+4*s_+3}], v14 offset:{s_ * 4096 + 1024}")
    def mf(d, A, B, first): return f"    v_mfma_f32_32x32x16_bf16 v[{d}:{d+15}], v[{A}:{A+3}], v[{B}:{B+3}], " + ("0" if first else f"v[{d}:{d+15}]")
    a("    s_waitcnt lgkmcnt(8)")
    for s_ in range(4, 8):
        a(f"    ds_read_b128 v[{BH+4*s_}:{BH+4*s_+3}], v{19 if s_ % 2 == 0 else 16} offset:{(s_ >> 1) * 64}")
    for s_ in range(4): a(mf(DD, AW + 4 * s_, BH + 4 * s_, s_ == 0))
    a("    s_waitcnt lgkmcnt(0)")
    for s_ in range(4, 8): a(mf(DD, AW + 4 * s_, BH + 4 * s_, False))
    a("    s_nop 7\n    s_nop 3")
    for r in range(16): a(f"    v_mul_f32 v{DD+r}, s28, v{DD+r}")
    for j in range(8): a(f"    v_cvt_pk_bf16_f32 v{AW+j}, v{DD+2*j}, v{DD+2*j+1}")
    b = AW
    a("    s_nop 1")
    a(f"    v_permlane32_swap_b32 v{b}, v{b+2}\n    v_permlane32_swap_b32 v{b+1}, v{b+3}\n    v_permlane32_swap_b32 v{b+4}, v{b+6}\n    v_permlane32_swap_b32 v{b+5}, v{b+7}")
    a("    s_nop 1")
    a(f"    buffer_store_dwordx4 v[{b}:{b+3}], v18, s[16:19], 0 offen{fl}")
    a(f"    buffer_store_dwordx4 v[{b+4}:{b+7}], v18, s[16:19], 0 offen offset:32{fl}")
    k1_end()

    a.label("K1_notgemm")
    a(f"    s_cmp_ge_u32 s2, {cfg.g1}")
    a("    s_cbranch_scc1 K1_done")
    a(f"    s_cmp_lt_u32 s2, {W_SORT}")
    a("    s_cbranch_scc1 K1_done")
    stamp(a, cfg, 127, 0, 34)
    a(f"    s_cmp_ge_u32 s2, {W_PREF}")
    a("    s_cbranch_scc1 K1_pref")
    a(f"    s_cmp_ge_u32 s2, {W_PREP}")
    a("    s_cbranch_scc1 K1_prep")
    a("    s_load_dwordx4 s[4:7], s[0:1], 24")
    a("    s_load_dwordx2 s[8:9], s[0:1], 80")
    a("    v_lshlrev_b32 v1, 4, v0")
    a("    v_lshlrev_b32 v2, 2, v0")
    a("    v_mov_b32 v4, -1\n    v_mov_b32 v5, -1\n    v_mov_b32 v6, -1\n    v_mov_b32 v7, -1\n    v_mov_b32 v3, 0")
    for r in range(4): a(f"    ds_write_b128 v1, v[4:7] offset:{8192*r}")
    a("    ds_write_b32 v2, v3 offset:32768")
    a(f"    s_sub_u32 s23, s2, {W_SORT}")
    a("    s_mul_i32 s10, s23, 10000")
    a("    s_waitcnt lgkmcnt(0)")
    a("    s_add_u32 s12, s4, s10\n    s_addc_u32 s13, s5, 0\n    s_mov_b32 s14, 10000\n    s_mov_b32 s15, 0x00020000")
    a("    s_add_u32 s16, s6, s10\n    s_addc_u32 s17, s7, 0\n    s_mov_b32 s18, 10000\n    s_mov_b32 s19, 0x00020000")
    for e in range(5):
        so = "0" if e == 0 else f"s{39+e}"
        if e: a(f"    s_movk_i32 s{39+e}, {2048*e}")
        a(f"    buffer_load_dword v{11+2*e}, v2, s[16:19], {so} offen")
        a(f"    buffer_load_dword v{10+2*e}, v2, s[12:15], {so} offen")
    srd(a, 24, 8, CELL_BYTES)
    a("    s_lshl_b32 s22, s23, 7")
    a("    v_mov_b32 v30, 1")
    a("    s_movk_i32 s33, 452")
    a("    v_cmp_gt_u32 s[30:31], s33, v0")
    a("    s_barrier")
    stamp(a, cfg, 127, 1, 34)
    for e in range(5):
        S, D, B, R, K = 10 + 2 * e, 11 + 2 * e, 32 + e, 40 + e, 48 + e
        a(f"    s_waitcnt vmcnt({8 - 2 * e})")
        a(f"    v_mul_u32_u24 v{B}, 52429, v{D}")
        a(f"    v_lshrrev_b32 v{B}, 21, v{B}")
        a(f"    v_lshlrev_b32 v26, 2, v{B}")
        if e == 4: a("    s_mov_b64 exec, s[30:31]")
        a(f"    ds_add_rtn_u32 v{K}, v26, v30 offset:32768")
        a(f"    v_mul_u32_u24 v24, 40, v{B}")
        a(f"    v_sub_u32 v24, v{D}, v24")
        a(f"    v_lshl_or_b32 v{R}, v24, 14, v{S}")
        a(f"    v_add_u32 v25, {512 * e}, v0")
        a(f"    v_lshl_or_b32 v{R}, v25, 20, v{R}")
    a("    s_mov_b64 exec, -1")
    stamp(a, cfg, 127, 2, 34)
    a("    s_waitcnt lgkmcnt(0)")
    for e in range(5):
        B, R, K = 32 + e, 40 + e, 48 + e
        a(f"    v_cmp_gt_u32 vcc, 32, v{K}")
        a(f"    v_and_b32 v24, 7, v{K}")
        a(f"    v_lshlrev_b32 v24, 4, v24")
        a(f"    v_lshl_add_u32 v24, v{B}, 7, v24")
        a(f"    v_lshrrev_b32 v25, 3, v{K}")
        a(f"    v_lshl_add_u32 v24, v25, 2, v24")
        if e == 4: a("    s_and_b64 vcc, vcc, s[30:31]")
        a("    s_mov_b64 exec, vcc")
        a(f"    ds_write_b32 v24, v{R}")
        a("    s_mov_b64 exec, -1")
    a("    s_waitcnt lgkmcnt(0)")
    a("    s_barrier")
    stamp(a, cfg, 127, 3, 34)
    for r in range(4): a(f"    ds_read_b128 v[{8+4*r}:{11+4*r}], v1 offset:{8192*r}")
    a("    v_lshrrev_b32 v26, 3, v0")
    a("    v_lshlrev_b32 v27, 2, v26")
    for r in range(4): a(f"    ds_read_b32 v{32+r}, v27 offset:{32768 + 256*r}")
    a("    v_and_b32 v28, 7, v0")
    a("    v_lshlrev_b32 v29, 4, v28")
    a("    v_lshl_add_u32 v29, v26, 13, v29")
    a("    v_mov_b32 v31, -2")
    a("    v_cmp_eq_u32 s[30:31], 0, v28")
    a("    s_waitcnt lgkmcnt(0)")
    for r in range(4):
        a(f"    v_cmp_lt_u32 vcc, 32, v{32+r}")
        a("    s_and_b64 vcc, vcc, s[30:31]")
        a(f"    s_mov_b32 s34, {64*8192*r}" if r else "    s_nop 0")
        a(f"    v_add_u32 v{36+r}, {64*8192*r}, v29")
        a(f"    v_cndmask_b32 v{8+4*r}, v{8+4*r}, v31, vcc")
    for r in range(4):
        a(f"    buffer_store_dwordx4 v[{8+4*r}:{11+4*r}], v{36+r}, s[24:27], s22 offen{fl}")
    k1_end()
    a.label("K1_prep")
    a("    s_load_dwordx2 s[4:5], s[0:1], 40")
    a("    s_load_dwordx2 s[6:7], s[0:1], 56")
    a("    s_load_dwordx2 s[8:9], s[0:1], 80")
    a(f"    s_sub_u32 s10, s2, {W_PREP}")
    a("    s_lshr_b32 s10, s10, 3")
    a("    s_lshl_b32 s10, s10, 9")
    a("    s_and_b32 s26, s2, 7")
    a(f"    s_mul_i32 s26, s26, {FRS}")
    a(f"    s_add_u32 s26, s26, {WS_FR}")
    a("    v_lshrrev_b32 v2, 6, v0\n    s_nop 0\n    v_readfirstlane_b32 s27, v2")
    a("    s_lshl_b32 s27, s27, 6\n    s_add_u32 s27, s27, s10")
    a("    v_and_b32 v2, 63, v0")
    a("    s_waitcnt lgkmcnt(0)")
    srd(a, 16, 4, 273 * 256)
    srd(a, 28, 6, 256 * 256)
    srd(a, 20, 8, WS_USED)
    for r in range(4):
        g = 36 + r
        a(f"    s_add_u32 s{g}, s27, {2048*r}")
        a(f"    s_cmp_ge_u32 s{g}, 6400")
        a(f"    s_cbranch_scc1 K1_pr{r}x")
        a(f"    s_cmp_ge_u32 s{g}, 2304")
        a(f"    s_cbranch_scc1 K1_pr{r}h")
        a(f"    s_lshr_b32 s12, s{g}, 8\n    s_lshl_b32 s13, s12, 4\n    s_cmp_eq_u32 s12, 8\n    s_cselect_b32 s13, 257, s13")
        a(f"    s_cselect_b32 s{40+r}, {hex(f32bits(-LOG2E))}, 1.0")
        a(f"    s_cselect_b32 s25, {8*4096}, 0")
        a(f"    s_lshr_b32 s15, s{g}, 6\n    s_and_b32 s15, s15, 3\n    s_lshl_b32 s15, s15, 5")
        a(f"    v_lshrrev_b32 v3, 5, v2\n    v_lshlrev_b32 v3, 3, v3\n    v_add_u32 v3, s13, v3\n    v_and_b32 v4, 31, v2\n    v_add_u32 v4, s15, v4")
        a(f"    v_lshlrev_b32 v3, 8, v3\n    v_lshl_add_u32 v3, v4, 1, v3")
        a(f"    s_add_u32 s{44+r}, s25, s26")
        for j in range(8): a(f"    buffer_load_ushort v{8+8*r+j}, v3, s[16:19], 0 offen offset:{j*256}")
        a(f"    s_branch K1_pr{r}d")
        a.label(f"K1_pr{r}h")
        a(f"    s_sub_u32 s12, s{g}, 2304\n    s_lshr_b32 s13, s12, 6\n    s_and_b32 s13, s13, 7\n    s_lshl_b32 s13, s13, 5")
        a(f"    s_lshr_b32 s15, s12, 9\n    s_lshl_b32 s15, s15, 4\n    s_mov_b32 s{40+r}, 1.0")
        a(f"    v_lshrrev_b32 v3, 4, v2\n    v_lshlrev_b32 v3, 3, v3\n    v_add_u32 v3, s13, v3\n    v_and_b32 v4, 15, v2\n    v_add_u32 v4, s15, v4")
        a(f"    v_lshlrev_b32 v3, 8, v3\n    v_lshl_add_u32 v3, v4, 1, v3")
        a(f"    s_add_u32 s{44+r}, s26, {WEF_BYTES - 2304*16}")
        for j in range(8): a(f"    buffer_load_ushort v{8+8*r+j}, v3, s[28:31], 0 offen offset:{j*256}")
        a(f"    s_branch K1_pr{r}d")
        a.label(f"K1_pr{r}x")
        a(f"    s_mov_b32 s{44+r}, 0x7fffff00")
        a(f"    s_mov_b32 s{40+r}, 1.0")
        a.label(f"K1_pr{r}d")
    a("    s_waitcnt vmcnt(0)")
    for r in range(4):
        b = 8 + 8 * r
        for j in range(8): a(f"    v_lshlrev_b32 v{b+j}, 16, v{b+j}")
        for j in range(8): a(f"    v_mul_f32 v{b+j}, s{40+r}, v{b+j}")
        for j in range(4): a(f"    v_cvt_pk_bf16_f32 v{44+4*r+j}, v{b+2*j}, v{b+2*j+1}")
        a(f"    s_lshl_b32 s12, s{36+r}, 4")
        a(f"    v_lshlrev_b32 v3, 4, v2\n    v_add_u32 v{60+r}, s12, v3")
        a(f"    buffer_store_dwordx4 v[{44+4*r}:{47+4*r}], v{60+r}, s[20:23], s{44+r} offen{fl}")
    k1_end()
    a.label("K1_pref")
    if cfg.pf_h:
        a("    s_load_dwordx2 s[4:5], s[0:1], 0")
        a("    s_and_b32 s10, s2, 7")
        a("    s_waitcnt lgkmcnt(0)")
        srd(a, 16, 4, N * 256)
        for r in range(6):
            a(f"    v_add_u32 v8, {512*r}, v0")
            a(f"    v_mul_u32_u24 v9, 43691, v8\n    v_lshrrev_b32 v9, 22, v9")
            a(f"    v_mul_u32_u24 v10, 96, v9\n    v_sub_u32 v10, v8, v10")
            a(f"    v_lshlrev_b32 v9, 3, v9\n    v_add_u32 v9, s10, v9")
            a(f"    v_mul_u32_u24 v9, {40*256}, v9\n    v_lshl_add_u32 v9, v10, 7, v9")
            a(f"    buffer_load_dword v{12+r}, v9, s[16:19], 0 offen")
    if cfg.pf_code:
        a("    v_lshlrev_b32 v1, 7, v0")
        a("    s_getpc_b64 s[24:25]")
        a.label("K1_pc")
        a("    s_add_u32 s24, s24, k2_kernel-K1_pc")
        a("    s_addc_u32 s25, s25, 0")
        a("    v_cmp_gt_u32 vcc, (K2_end-k2_kernel+127)/128, v0")
        a("    s_and_saveexec_b64 s[28:29], vcc")
        a("    s_cbranch_execz K1_pfend")
        a("    global_load_dword v4, v1, s[24:25]")
    a.label("K1_pfend")
    k1_end()
    a.label("K1_done")
    a("    s_endpgm")

def gen_k2(a, cfg):
    fo = (" " + cfg.st_out) if cfg.st_out else ""
    V = Regs("v", 1, 256)
    W4F = V.alloc("W4F", 4, 4); IDN = V.alloc("IDN", 8, 4); X = V.alloc("X", 12, 4); XC = V.alloc("XC", 4, 4)
    D = [V.alloc("D0", 16, 4), V.alloc("D1", 16, 4)]
    DP = V.alloc("DP", 48, 4); DPC = V.alloc("DPC", 16, 4); HP = V.alloc("HP", 12, 4)
    BF = V.alloc("BF", 8, 4); EFB = [V.alloc(f"EF{k}", 4, 4) for k in range(4)]; AF = V.alloc("AF", 4, 4)
    TR = V.alloc("TR", 8, 4); M = V.alloc("M", 8, 4); T = V.alloc("T", 16, 4)
    WHH = V.alloc("WHH", 16, 4); WX = V.alloc("WX", 8, 4); ZR = V.alloc("ZR", 4, 4); RES = V.alloc("RES", 6, 2)
    iH0 = V.alloc("iH0", 2, 2); iH1 = V.alloc("iH1", 2, 2); iE = V.alloc("iE", 2, 2)
    cBF = V.alloc("cBF"); cHB = V.alloc("cHB")
    aA2 = V.alloc("aA2"); aA3 = V.alloc("aA3"); aRH = V.alloc("aRH"); aRE = V.alloc("aRE")
    vL = V.alloc("vL")
    POSO = aRH; OUTA = aA2
    A0 = V.alloc("A0", 1, 2); A1 = V.alloc("A1"); A2_ = V.alloc("A2"); A3_ = V.alloc("A3"); A4 = V.alloc("A4"); A5 = V.alloc("A5")
    vST = V.alloc("vST") if cfg.dbg else None
    nv = V.hi
    if cfg.dbg and 0: print(V.names)
    sStg = 3
    sB, sEA, sPOS, sWS, sOUT, sMI = 8, 12, 16, 20, 24, 28
    sW, sSet, sC, sB40 = 32, 33, 34, 35
    sCnt = 36
    sTs, sTf, sI = 42, 43, 45
    sBx, sBx2, sKx = 46, 47, 48
    sBd, sBd2, sKd = 49, 50, 51
    sRingR, sRingW, sStgEnd = 52, 53, 54
    sRem, sRem1, sRem2 = 55, 56, 57
    sMode, sWin, sFirst = 58, 59, 60
    t0, t1, t2, t3, t4, t5 = 61, 62, 63, 64, 65, 66
    sPK, sRet, sWoff, sDPI = 67, 69, 71, 74
    sEn, sTL, sFr = 75, 70, 68
    sH = 76
    sB2 = 88
    sD, sEv = 92, 93
    sX = 4
    l = vL
    st = lambda i: stamp(a, cfg, vST, i)
    def mfma(dst, A, B, C):
        c_ = "0" if C is None else f"v[{C}:{C+15}]"
        return f"    v_mfma_f32_32x32x16_bf16 v[{dst}:{dst+15}], v[{A}:{A+3}], v[{B}:{B+3}], {c_}"

    a(".globl k2_kernel\n.p2align 8\n.type k2_kernel,@function\nk2_kernel:")
    a(f"    s_cmp_ge_u32 s2, {NB}")
    a("    s_cbranch_scc1 K2_done")
    st(0)
    a(f"    s_load_dwordx2 s[{sWS}:{sWS+1}], s[0:1], 80")
    a(f"    s_load_dwordx2 s[{sH}:{sH+1}], s[0:1], 0")
    a(f"    s_load_dwordx2 s[{sPOS}:{sPOS+1}], s[0:1], 8")
    a(f"    s_load_dwordx2 s[{sMI}:{sMI+1}], s[0:1], 40")
    a(f"    s_load_dwordx2 s[{sEA}:{sEA+1}], s[0:1], 16")
    a(f"    s_load_dwordx2 s[{sOUT}:{sOUT+1}], s[0:1], 64")
    a(f"    s_load_dwordx2 s[72:73], s[0:1], 48")
    a(f"    v_and_b32 v{l}, 63, v0")
    a(f"    v_lshrrev_b32 v{A0}, 6, v0")
    a(f"    v_lshlrev_b32 v{A1}, 4, v0")
    a(f"    v_readfirstlane_b32 s{sW}, v{A0}")
    a(f"    s_mul_i32 s{sB40}, s2, 40")
    a(f"    s_lshl_b32 s{t0}, s2, 13")
    a(f"    s_mov_b32 s{sWS+2}, {WS_USED}\n    s_mov_b32 s{sWS+3}, 0x00020000")
    a(f"    s_mov_b32 s{sH+2}, {N}\n    s_mov_b32 s{sH+3}, 0x00020000")
    a(f"    s_mov_b32 s{sPOS+2}, {N*6+4}\n    s_mov_b32 s{sPOS+3}, 0x00020000")
    a(f"    s_lshr_b32 s{sSet}, s{sW}, 2")
    a(f"    s_and_b32 s{sC}, s{sW}, 3")
    a(f"    v_lshrrev_b32 v{A0}, 4, v{l}")
    a(f"    v_and_b32 v{A2_}, 15, v{l}")
    a(f"    v_xor_b32 v{A2_}, v{A2_}, v{A0}")
    HP0, HP1 = D[0], D[0] + 2
    a(f"    v_lshlrev_b32 v{HP0+1}, 4, v{A2_}")
    a(f"    v_mov_b32 v{HP1+1}, v{HP0+1}")
    a(f"    s_min_u32 s{t3}, s{sW}, 6")
    a(f"    s_lshl_b32 s{t1}, s{t3}, 3")
    a(f"    s_add_u32 s{t1}, s{t1}, s{sB40}")
    a(f"    v_add_u32 v{HP0}, s{t1}, v{A0}")
    a(f"    v_add_u32 v{HP1}, 4, v{HP0}")
    a(f"    s_mul_i32 s{t2}, s{t3}, {2*QSTR}")
    a(f"    s_add_u32 s{t2}, s{t2}, {HOWN}")
    VL16, VOWN, VWD = D[0] + 4, D[0] + 5, D[0] + 6
    a(f"    v_lshlrev_b32 v{VL16}, 4, v{l}")
    a(f"    v_mul_u32_u24 v{VOWN}, 6, v0")
    a(f"    v_and_b32 v{VWD}, 31, v{l}")
    a(f"    s_lshl_b32 s{t4}, s{sC}, 5")
    a(f"    v_add_u32 v{VWD}, s{t4}, v{VWD}")
    a(f"    v_lshlrev_b32 v{VWD}, 1, v{VWD}")
    a(f"    s_mul_i32 s{t4}, s2, 240")
    a(f"    s_lshl_b32 s{t5}, s{sW}, 12")
    a(f"    s_and_b32 s{sFr}, s2, 7")
    a(f"    s_mul_i32 s{sFr}, s{sFr}, {FRS}")
    a(f"    s_add_u32 s{sFr}, s{sFr}, {WS_FR}")
    a(f"    s_waitcnt lgkmcnt(0)")
    st(1)
    RR = TR; SL = TR + 4; GG = T; PSRC = DPC; OWNP = T + 4; PDST = DPC + 8
    W1F = DP
    WHL = D[1]
    a(f"    buffer_load_dwordx4 v[{RR}:{RR+3}], v{A1}, s[{sWS}:{sWS+3}], s{t0} offen      ; cells")
    Z = ZR
    WD = XC + 3
    def blockV():
        a(f"    s_mov_b32 m0, s{t2}")
        a(f"    s_add_u32 s{t2}, s{t2}, {QSTR}")
        a(f"    buffer_load_dwordx4 v[{HP0}:{HP0+1}], s[{sH}:{sH+3}], 0 idxen offen lds")
        a(f"    s_mov_b32 m0, s{t2}")
        a(f"    s_add_u32 s{sWoff}, s{t5}, s{sFr}")
        a(f"    buffer_load_dwordx4 v[{HP1}:{HP1+1}], s[{sH}:{sH+3}], 0 idxen offen lds")
        for j in range(4):
            a(f"    s_add_u32 m0, s{t5}, {STG + j*1024}")
            if j: a(f"    s_add_u32 s{sWoff}, s{sWoff}, 1024")
            else: a(f"    s_nop 0")
            a(f"    buffer_load_dwordx4 v{VL16}, s[{sWS}:{sWS+3}], s{sWoff} offen lds")
        a(f"    s_lshl_b32 s{sWoff}, s{sC}, 10")
        a(f"    s_add_u32 m0, s{sWoff}, {STG + 32768}")
        a(f"    s_add_u32 s{sWoff}, s{sWoff}, s{sFr}")
        a(f"    s_add_u32 s{sWoff}, s{sWoff}, {16*4096}")
        a(f"    buffer_load_dwordx4 v{VL16}, s[{sWS}:{sWS+3}], s{sWoff} offen lds")
        a(f"    buffer_load_dwordx2 v[{OWNP}:{OWNP+1}], v{VOWN}, s[{sPOS}:{sPOS+3}], s{t4} offen")
        a(f"    s_mov_b32 s{t2}, {256*256}")
        a(f"    buffer_load_ushort v{WD}, v{VWD}, s[{sMI}:{sMI+3}], s{t2} offen")
        a(f"    s_lshl_b32 s{sWoff}, s{sW}, 13\n    s_add_u32 s{sWoff}, s{sWoff}, s{sFr}\n    s_add_u32 s{sWoff}, s{sWoff}, {WEF_BYTES}")
        for s_ in range(4):
            a(f"    buffer_load_dwordx4 v[{WHL+4*s_}:{WHL+4*s_+3}], v{VL16}, s[{sWS}:{sWS+3}], s{sWoff} offen offset:{1024*s_}")
    zf = []
    for r in range(NZ):
        w_ = f"ds_write_b128 v{A1}, v[{Z}:{Z+3}] offset:{(r % 8) * 8192}"
        pre = [f"v_add_u32 v{A1}, 65536, v{A1}"] if r == 8 else []
        if r == NZ - 1:
            zf.append(pre + [f"v_cmp_gt_u32 vcc, {ZLAST}, v0", f"s_and_saveexec_b64 s[4:5], vcc", w_, f"s_mov_b64 exec, s[4:5]"])
        else: zf.append(pre + [w_])
    c = []
    e_, h_ = A0, A2_
    c += [f"v_and_b32 v{e_}, 31, v{l}", f"v_lshrrev_b32 v{h_}, 5, v{l}"]
    c += [f"v_mul_u32_u24 v{A5}, {A2H - A2L}, v{h_}", f"v_lshl_add_u32 v{aA2}, v{e_}, 4, v{A5}", f"v_add_u32 v{aA2}, {A2L}, v{aA2}"]
    c += [f"v_lshlrev_b32 v{aA3}, 8, v{h_}", f"v_bfe_u32 v{A5}, v{l}, 4, 1", f"v_lshl_add_u32 v{aA3}, v{A5}, 5, v{aA3}", f"v_bfe_u32 v{A5}, v{l}, 2, 2",
          f"v_lshl_add_u32 v{aA3}, v{A5}, 6, v{aA3}", f"v_and_b32 v{A5}, 3, v{l}", f"v_lshl_add_u32 v{aA3}, v{A5}, 3, v{aA3}"]
    c += [f"v_lshl_add_u32 v{cBF}, v{h_}, 8, v{aA3}", f"v_add_u32 v{cBF}, s{sStg}, v{cBF}", f"v_add_u32 v{aA3}, {A3T}, v{aA3}"]
    c += [f"v_lshrrev_b32 v{A5}, 2, v{l}", f"v_lshlrev_b32 v{A5}, 3, v{A5}", f"v_add_u32 v{aRH}, {REC}, v{A5}",
          f"v_lshlrev_b32 v{A5}, 3, v{e_}", f"v_add_u32 v{aRE}, {REC}, v{A5}"]
    c += [f"v_and_b32 v{A5}, 3, v{l}", f"v_lshlrev_b32 v{A5}, 4, v{A5}", f"s_lshl_b32 s{t3}, s{sC}, 6", f"v_add_u32 v{iH0+1}, s{t3}, v{A5}", f"v_mov_b32 v{iH1+1}, v{iH0+1}",
          f"v_lshlrev_b32 v{iE+1}, 4, v{h_}"]
    c += [f"v_bfe_u32 v{A5}, v{l}, 2, 2", f"v_mul_u32_u24 v{cHB}, {QSTR}, v{A5}", f"v_and_b32 v{A5}, 3, v{l}", f"v_lshl_add_u32 v{cHB}, v{A5}, 8, v{cHB}",
          f"v_lshrrev_b32 v{A4}, 4, v{l}", f"v_xor_b32 v{A5}, v{A5}, v{A4}", f"v_lshl_add_u32 v{cHB}, v{A5}, 4, v{cHB}", f"v_add_u32 v{cHB}, {HOWN}, v{cHB}"]
    c += [f"v_and_b32 v{A5}, 1, v{e_}", f"v_lshlrev_b32 v{A5}, 4, v{A5}", f"v_mov_b32 v{A4}, 0x3f80", f"v_lshlrev_b32 v{A4}, v{A5}, v{A4}"]
    c += [f"v_bfe_u32 v{A5}, v{e_}, 1, 2", f"v_lshrrev_b32 v{IDN+7}, 4, v{e_}", f"v_lshl_add_u32 v{A5}, v{IDN+7}, 2, v{A5}", f"v_bfe_u32 v{IDN+7}, v{e_}, 3, 1",
          f"v_cmp_eq_u32 vcc, v{IDN+7}, v{h_}", f"s_nop 1", f"v_cndmask_b32 v{A5}, 15, v{A5}, vcc"]
    for q in range(8): c += [f"v_cmp_eq_u32 s[{36+2*q}:{37+2*q}], {q}, v{A5}"]
    for q in range(8): c += [f"v_cndmask_b32 v{IDN+q}, 0, v{A4}, s[{36+2*q}:{37+2*q}]"]
    def blockL():
        a(f"    v_lshlrev_b32 v{A1}, 4, v0")
        a(f"    v_add_u32 v{A1}, {ZSTART}, v{A1}")
        ci = 0
        per = (len(c) + len(zf) - 1) // len(zf)
        for k in range(len(zf)):
            for ins in zf[k]: a("    " + ins)
            for ins in c[ci:ci + per]: a("    " + ins)
            ci += per
        for ins in c[ci:]: a("    " + ins)
    cs_ = [f"s_add_u32 s{sB}, s{sWS}, {WS_B}", f"s_addc_u32 s{sB+1}, s{sWS+1}, 0", f"s_or_b32 s{sB+1}, s{sB+1}, 0x1000000", f"s_mov_b32 s{sB+2}, {N}", f"s_mov_b32 s{sB+3}, 0x00020000",
          f"s_or_b32 s{sEA+1}, s{sEA+1}, 0x200000", f"s_mov_b32 s{sEA+2}, {E}", f"s_mov_b32 s{sEA+3}, 0x00020000",
          f"s_mov_b32 s{sOUT+2}, {N*256+N*6}", f"s_mov_b32 s{sOUT+3}, 0x00020000",
          f"s_mov_b32 s{sMode}, 0", f"s_mov_b32 s{sFirst}, 1", f"s_mov_b32 s{sDPI}, 0", f"s_mov_b32 s{sEn}, {E}", f"s_mov_b32 s{sTL}, 0"]
    for ins in cs_: a("    " + ins)
    a(f"    s_add_u32 s{sB2}, s{sWS}, {WS_B - 1024}\n    s_addc_u32 s{sB2+1}, s{sWS+1}, 0\n    s_or_b32 s{sB2+1}, s{sB2+1}, 0x1000000")
    a(f"    s_mov_b32 s{sB2+2}, {N}\n    s_mov_b32 s{sB2+3}, 0x00020000")
    a(f"    s_or_b32 s{sH+1}, s{sH+1}, 0x1000000")
    a(f"    s_mov_b32 s{sMI+2}, {273*256}\n    s_mov_b32 s{sMI+3}, 0x00020000")
    a(f"    s_lshl_b32 s{sStg}, s{sW}, 11")
    for r in range(4): a(f"    v_mov_b32 v{ZR+r}, 0")
    a(f"    s_cmp_eq_u32 s{sSet}, 0")
    a(f"    s_cbranch_scc0 K2_L")
    blockV()
    a.label("K2_L")
    blockL()
    a(f"    s_cmp_eq_u32 s{sSet}, 0")
    a(f"    s_cbranch_scc1 K2_VLd")
    blockV()
    a.label("K2_VLd")
    n0 = 13
    if cfg.pf_b:
        a(f"    s_lshr_b32 s{t2}, s2, 3")
        a(f"    s_mul_i32 s{t2}, s{t2}, {646*128}")
        a(f"    s_add_u32 s{t2}, s{t2}, {WS_B}")
        a(f"    v_lshlrev_b32 v{A4}, 7, v0")
        a(f"    buffer_load_dword v{T+8}, v{A4}, s[{sWS}:{sWS+3}], s{t2} offen")
        a(f"    v_cmp_gt_u32 vcc, {646-512}, v0")
        a(f"    v_add_u32 v{A4}, 65536, v{A4}")
        a(f"    v_bfrev_b32 v{A5}, -2")
        a(f"    v_cndmask_b32 v{A4}, v{A5}, v{A4}, vcc")
        a(f"    buffer_load_dword v{T+9}, v{A4}, s[{sWS}:{sWS+3}], s{t2} offen")
        n0 += 2
    npf = 2 if cfg.pf_b else 0
    a(f"    s_waitcnt lgkmcnt(0)")
    a(f"    s_barrier")
    st(2)
    a(f"    s_branch K2_fast")
    a.label("K2_zero")
    a(f"    v_lshlrev_b32 v{A1}, 4, v0")
    a(f"    v_add_u32 v{A1}, {ZSTART}, v{A1}")
    for grp in zf:
        for ins in grp: a("    " + ins)
    a(f"    s_waitcnt lgkmcnt(0)")
    a(f"    s_barrier")
    vCB = A5
    a(f"    s_mul_i32 s{t0}, s{sWin}, {WIN}")
    a(f"    s_add_u32 s{sWin}, s{sWin}, 1")
    a(f"    v_add_u32 v{vCB}, s{t0}, v0")
    a(f"    v_lshlrev_b32 v{A0}, 2, v{vCB}")
    a(f"    s_load_dwordx2 s[{sMI}:{sMI+1}], s[0:1], 24")
    a(f"    s_mov_b32 s{sMI+2}, {E*4}")
    a(f"    s_waitcnt lgkmcnt(0)")
    a(f"    buffer_load_dword v{RR+1}, v{A0}, s[{sMI}:{sMI+3}], 0 offen")
    a(f"    s_waitcnt vmcnt(0)")
    a(f"    s_load_dwordx2 s[{sMI}:{sMI+1}], s[0:1], 32")
    a(f"    s_waitcnt lgkmcnt(0)")
    a(f"    buffer_load_dword v{RR+2}, v{A0}, s[{sMI}:{sMI+3}], 0 offen")
    a(f"    s_waitcnt vmcnt(0)")
    a(f"    v_subrev_u32 v{RR+2}, s{sB40}, v{RR+2}")
    a(f"    v_lshl_or_b32 v{RR}, v{RR+2}, 14, v{RR+1}")
    a(f"    v_cmp_gt_u32 vcc, 40, v{RR+2}")
    a(f"    s_movk_i32 s{t0}, {WIN}")
    a(f"    v_cmp_gt_u32 s[{sX}:{sX+1}], s{t0}, v0")
    a(f"    s_and_b64 vcc, vcc, s[{sX}:{sX+1}]")
    a(f"    s_mov_b32 s{t0}, {E}")
    a(f"    v_cmp_gt_u32 s[{sX}:{sX+1}], s{t0}, v{vCB}")
    a(f"    s_and_b64 vcc, vcc, s[{sX}:{sX+1}]")
    a(f"    s_nop 1")
    a(f"    v_cndmask_b32 v{RR}, -1, v{RR}, vcc")
    a(f"    v_mov_b32 v{RR+1}, -1\n    v_mov_b32 v{RR+2}, -1\n    v_mov_b32 v{RR+3}, -1")
    a(f"    s_branch K2_rank")
    a.label("K2_fast")
    a(f"    v_lshrrev_b32 v{vCB}, 3, v0")
    a(f"    v_mul_u32_u24 v{vCB}, {CH}, v{vCB}")
    a(f"    s_waitcnt vmcnt({n0})")
    st(3)
    a(f"    v_cmp_eq_u32 vcc, -2, v{RR}")
    a(f"    s_cbranch_vccnz K2_mark")
    a.label("K2_rank")
    a(f"    v_mov_b32 v{A0}, 1")
    a(f"    v_bfrev_b32 v{A4}, -2")
    for j in range(4):
        r = RR + j
        a(f"    v_cmp_gt_u32 vcc, -2, v{r}")
        a(f"    v_and_b32 v{A1}, 0x3fff, v{r}")
        a(f"    v_mul_u32_u24 v{A1}, 6, v{A1}")
        a(f"    v_bfe_u32 v{GG+j}, v{r}, 17, 3")
        a(f"    v_cndmask_b32 v{A1}, v{A4}, v{A1}, vcc")
        a(f"    s_and_saveexec_b64 s[{sX}:{sX+1}], vcc")
        a(f"    v_lshlrev_b32 v{A2_}, 2, v{GG+j}")
        a(f"    v_add_u32 v{A2_}, {CNT}, v{A2_}")
        a(f"    ds_add_rtn_u32 v{SL+j}, v{A2_}, v{A0}")
        a(f"    s_mov_b64 exec, s[{sX}:{sX+1}]")
        a(f"    buffer_load_dwordx2 v[{PSRC+2*j}:{PSRC+2*j+1}], v{A1}, s[{sPOS}:{sPOS+3}], 0 offen")
    n1 = 4
    a(f"    s_cmp_eq_u32 s{sFirst}, 0")
    a(f"    s_cbranch_scc1 K2_noown")
    a(f"    s_waitcnt vmcnt({n1 + npf})")
    a(f"    v_cmp_gt_u32 vcc, 48, v0")
    a(f"    s_and_saveexec_b64 s[{sX}:{sX+1}], vcc")
    a(f"    v_lshlrev_b32 v{A1}, 3, v0")
    a(f"    v_add_u32 v{A1}, {POSD}, v{A1}")
    a(f"    ds_write_b64 v{A1}, v[{OWNP}:{OWNP+1}]")
    a(f"    s_mov_b64 exec, s[{sX}:{sX+1}]")
    a.label("K2_noown")
    a(f"    s_waitcnt lgkmcnt(0)")
    a(f"    s_barrier")
    st(4)
    a(f"    v_mov_b32 v{A1}, {CNT}")
    a(f"    ds_read_b128 v[{M}:{M+3}], v{A1}")
    a(f"    ds_read_b64 v[{M+4}:{M+5}], v{A1} offset:16")
    for j in range(4):
        a(f"    v_bfe_u32 v{A2_}, v{RR+j}, 14, 6")
        a(f"    v_lshlrev_b32 v{A2_}, 3, v{A2_}")
        a(f"    v_add_u32 v{A2_}, {POSD}, v{A2_}")
        a(f"    ds_read_b64 v[{PDST+2*j}:{PDST+2*j+1}], v{A2_}")
    a(f"    s_waitcnt lgkmcnt(4)")
    for g in range(6): a(f"    v_readfirstlane_b32 s{sCnt+g}, v{M+g}")
    a(f"    s_cmp_eq_u32 s{sFirst}, 0")
    a(f"    s_cbranch_scc1 K2_nowf")
    a(f"    v_lshlrev_b32 v{A2_}, 4, v{l}")
    a(f"    s_lshl_b32 s{t5}, s{sC}, 10")
    a(f"    v_add_u32 v{A2_}, s{t5}, v{A2_}")
    for q in range(8):
        a(f"    ds_read_b128 v[{W1F+4*q}:{W1F+4*q+3}], v{A2_} offset:{STG + q*4096}")
    a(f"    ds_read_b128 v[{W4F}:{W4F+3}], v{A2_} offset:{STG + 32768}")
    a.label("K2_nowf")
    nt = [t0, t1, t2, t3, t4]
    for g in range(5):
        a(f"    s_add_u32 s{nt[g]}, s{sCnt+g}, 31")
        a(f"    s_lshr_b32 s{nt[g]}, s{nt[g]}, 5")
    a(f"    s_add_u32 s4, s{t0}, s{t1}")
    a(f"    s_add_u32 s5, s4, s{t2}")
    a(f"    s_add_u32 s6, s5, s{t3}")
    a(f"    s_add_u32 s7, s6, s{t4}")
    a(f"    s_cmp_gt_u32 s7, {MAXT}")
    a(f"    s_cselect_b32 s{t5}, 1, 0")
    a(f"    s_or_b32 s{t5}, s{t5}, s{sCnt+5}")
    a(f"    s_cmp_lg_u32 s{t5}, 0")
    a(f"    s_cbranch_scc1 K2_toslow")
    a(f"    s_lshl_b32 s{sPK}, s{t0}, 5")
    a(f"    s_lshl_b32 s{t5}, s4, 10\n    s_or_b32 s{sPK}, s{sPK}, s{t5}")
    a(f"    s_lshl_b32 s{t5}, s5, 15\n    s_or_b32 s{sPK}, s{sPK}, s{t5}")
    a(f"    s_lshl_b32 s{t5}, s6, 20\n    s_or_b32 s{sPK}, s{sPK}, s{t5}")
    for j in range(4):
        r = RR + j
        a(f"    v_cmp_gt_u32 vcc, -2, v{r}")
        a(f"    s_and_saveexec_b64 s[84:85], vcc")
        a(f"    s_cbranch_execz K2_rw{j}")
        a(f"    v_mul_u32_u24 v{A0}, 5, v{GG+j}")
        a(f"    v_bfe_u32 v{A0}, s{sPK}, v{A0}, 5")
        a(f"    v_lshl_add_u32 v{SL+j}, v{A0}, 5, v{SL+j}")
        a(f"    v_lshlrev_b32 v{A0}, 3, v{SL+j}")
        a(f"    v_and_b32 v{A2_}, 0x3fff, v{r}")
        a(f"    v_lshrrev_b32 v{A3_}, 20, v{r}")
        a(f"    v_add_u32 v{A3_}, v{A3_}, v{vCB}")
        a(f"    v_add_u32 v{A0}, {REC}, v{A0}")
        a(f"    ds_write_b64 v{A0}, v[{A2_}:{A3_}]")
        a.label(f"K2_rw{j}")
        a(f"    s_mov_b64 exec, s[84:85]")
    a(f"    s_add_u32 s{t5}, s7, 1")
    a(f"    s_lshr_b32 s{t5}, s{t5}, 1")
    a(f"    s_max_u32 s{t5}, s{t5}, s4")
    a(f"    s_min_u32 s{t5}, s{t5}, s5")
    a(f"    s_sub_u32 s{t3}, s7, s{t5}")
    a(f"    s_sub_u32 s{t4}, s{t5}, s4")
    a(f"    s_lshl_b32 s{t4}, s{t4}, 5")
    a(f"    s_min_u32 s{t1}, s{sCnt+2}, s{t4}")
    a(f"    s_sub_u32 s{t2}, s{sCnt+2}, s{t1}")
    a(f"    s_cmp_eq_u32 s{sSet}, 0")
    a(f"    s_cselect_b32 s{sTf}, 0, s{t5}")
    a(f"    s_cselect_b32 s{sTs}, s{t5}, s{t3}")
    a(f"    s_cselect_b32 s{sBx}, s{t0}, s5")
    a(f"    s_cselect_b32 s{sBx2}, s4, s6")
    a(f"    s_cselect_b32 s{sRem}, s{sCnt}, s{t2}")
    a(f"    s_cselect_b32 s{sRem1}, s{sCnt+1}, s{sCnt+3}")
    a(f"    s_cselect_b32 s{sRem2}, s{t1}, s{sCnt+4}")
    a(f"    s_sub_u32 s{sBx}, s{sBx}, s{sTf}")
    a(f"    s_sub_u32 s{sBx2}, s{sBx2}, s{sTf}")
    a(f"    s_mov_b32 s{sBd}, s{sBx}\n    s_mov_b32 s{sBd2}, s{sBx2}")
    a(f"    s_mov_b32 s{sKx}, 0\n    s_mov_b32 s{sKd}, 0")
    a(f"    s_sub_u32 s{sD}, s{sTs}, 1")
    a(f"    s_sub_u32 s{sEv}, s{sD}, s{sBx}")
    a(f"    s_cmp_eq_u32 s{sMode}, 0")
    a(f"    s_cbranch_scc0 K2_readdr")
    a.label("K2_addrok")
    a(f"    s_lshl_b32 s{t0}, s{sTf}, 9")
    a(f"    v_add_u32 v{aA2}, s{t0}, v{aA2}")
    a(f"    s_lshl_b32 s{t0}, s{sTf}, 11")
    a(f"    v_add_u32 v{aA3}, s{t0}, v{aA3}")
    a(f"    s_lshl_b32 s{t0}, s{sTf}, 8")
    a(f"    v_add_u32 v{aRH}, s{t0}, v{aRH}")
    a(f"    v_add_u32 v{aRE}, s{t0}, v{aRE}")
    a(f"    s_waitcnt lgkmcnt(0)")
    a(f"    s_barrier")
    st(5)
    PI = D[0]; PJ = WHH; PK2 = WHH + 6
    for (P_, tix) in ((PI, 0), (PJ, 1), (PK2, 2)):
        a(f"    ds_read_u16 v{P_+0}, v{aRH} offset:{256*tix}")
        a(f"    ds_read_u16 v{P_+2}, v{aRH} offset:{256*tix+128}")
        a(f"    ds_read_b32 v{P_+4}, v{aRE} offset:{256*tix+4}")
    a(f"    ds_read_u16 v{iH0}, v{aRH} offset:768")
    a(f"    ds_read_u16 v{iH1}, v{aRH} offset:{768+128}")
    a(f"    ds_read_b32 v{iE}, v{aRE} offset:{768+4}")
    for P_ in (PI, PJ, PK2):
        a(f"    v_mov_b32 v{P_+1}, v{iH0+1}\n    v_mov_b32 v{P_+3}, v{iH0+1}\n    v_mov_b32 v{P_+5}, v{iE+1}")
    def b_issue(p0, p1, slot, filler=None):
        a(f"    s_add_u32 m0, s{sStg}, {slot*SLOT}")
        if filler: filler()
        else: a(f"    s_nop 0")
        a(f"    buffer_load_dwordx4 v[{p0}:{p0+1}], s[{sB}:{sB+3}], 0 idxen offen lds")
        a(f"    buffer_load_dwordx4 v[{p1}:{p1+1}], s[{sB2}:{sB2+3}], 0 idxen offen offset:1024 lds")
    def e_issue(pair, dst):
        a(f"    buffer_load_dwordx4 v[{dst}:{dst+3}], v[{pair}:{pair+1}], s[{sEA}:{sEA+3}], 0 idxen offen")
    a(f"    s_waitcnt lgkmcnt(9)")
    b_issue(PI + 0, PI + 2, 0)
    e_issue(PI + 4, EFB[0])
    st(6)
    a(f"    s_cmp_eq_u32 s{sFirst}, 0")
    a(f"    s_cbranch_scc1 K2_noX")
    a(f"    s_mov_b32 s{sFirst}, 0")
    a(f"    v_and_b32 v{A0}, 31, v{l}")
    a(f"    s_lshl_b32 s{t0}, s{sSet}, 4")
    a(f"    v_add_u32 v{A0}, s{t0}, v{A0}")
    a(f"    v_lshrrev_b32 v{A1}, 2, v{A0}")
    a(f"    v_mul_u32_u24 v{A1}, {QSTR}, v{A1}")
    a(f"    v_and_b32 v{A4}, 3, v{A0}")
    a(f"    v_lshl_add_u32 v{A1}, v{A4}, 8, v{A1}")
    a(f"    v_add_u32 v{A1}, {HOWN}, v{A1}")
    a(f"    v_lshrrev_b32 v{A5}, 5, v{l}")
    a(f"    v_xor_b32 v{A5}, v{A5}, v{A4}")
    a(f"    v_lshl_add_u32 v{A0}, v{A5}, 4, v{A1}")
    a(f"    v_xor_b32 v{A5}, 2, v{A5}")
    a(f"    v_lshl_add_u32 v{A1}, v{A5}, 4, v{A1}")
    XA = D[0]
    FR = T
    fr = [BF, BF + 4, AF, M]
    a(f"    s_waitcnt lgkmcnt(0)")
    for half in range(2):
        for u in range(4):
            s_ = half * 4 + u
            ad = A0 if s_ % 2 == 0 else A1
            a(f"    ds_read_b128 v[{fr[u]}:{fr[u]+3}], v{ad} offset:{(s_ >> 1) * 64}")
        for u in range(4):
            s_ = half * 4 + u
            a(f"    s_waitcnt lgkmcnt({3-u})")
            a(mfma(XA, fr[u], W1F + 4 * s_, None if s_ == 0 else XA))
    for ntile in range(3):
        for s_ in range(4):
            dst = DP + (ntile * 4 + s_) * 4
            a(f"    ds_read_b128 v[{dst}:{dst+3}], v{cHB} offset:{ntile * 4 * QSTR + 64 * s_}")
    a(f"    v_lshrrev_b32 v{A4}, 4, v{l}")
    a(f"    v_lshrrev_b32 v{A5}, 1, v{A4}")
    a(f"    s_lshl_b32 s{t0}, s{sW}, 1")
    a(f"    v_add_u32 v{A5}, s{t0}, v{A5}")
    a(f"    v_and_b32 v{A0}, 3, v{l}")
    a(f"    v_xor_b32 v{A5}, v{A5}, v{A0}")
    a(f"    v_lshlrev_b32 v{A5}, 4, v{A5}")
    a(f"    v_and_b32 v{A4}, 1, v{A4}")
    a(f"    v_lshl_add_u32 v{A5}, v{A4}, 3, v{A5}")
    a(f"    v_lshl_add_u32 v{A5}, v{A0}, 8, v{A5}")
    a(f"    v_bfe_u32 v{A4}, v{l}, 2, 2")
    a(f"    v_mul_u32_u24 v{A4}, {QSTR}, v{A4}")
    a(f"    v_add3_u32 v{A5}, v{A5}, v{A4}, v{A1}" if False else f"    v_add_u32 v{A5}, v{A5}, v{A4}")
    a(f"    v_add_u32 v{A5}, {HOWN}, v{A5}")
    for ntile in range(3):
        a(f"    ds_read_b64 v[{RES+2*ntile}:{RES+2*ntile+1}], v{A5} offset:{ntile * 4 * QSTR}")
    cs = -LOG2E
    a(f"    s_mov_b32 s{t0}, {hex(f32bits(cs))}")
    a(f"    v_lshlrev_b32 v{WD}, 16, v{WD}")
    a(f"    v_mul_f32 v{WD}, s{t0}, v{WD}")
    a(f"    v_cvt_pk_bf16_f32 v{A4}, v{WD}, v{WD}")
    a(f"    v_and_b32 v{A5}, 0xffff0000, v{A4}")
    a(f"    v_sub_f32 v{A0}, v{WD}, v{A5}")
    a(f"    v_cvt_pk_bf16_f32 v{A4}, v{A5}, v{A0}")
    a(f"    v_cmp_gt_u32 vcc, 32, v{l}")
    a(f"    s_nop 1")
    a(f"    v_cndmask_b32 v{A4}, 0, v{A4}, vcc")
    for ntile in range(3):
        for s_ in range(4):
            src = DP + (ntile * 4 + s_) * 4
            a(f"    s_waitcnt lgkmcnt({11 - (ntile*4+s_) + 3})" )
            c_ = "0" if s_ == 0 else f"v[{HP+4*ntile}:{HP+4*ntile+3}]"
            a(f"    v_mfma_f32_16x16x32_bf16 v[{HP+4*ntile}:{HP+4*ntile+3}], v[{WHL+4*s_}:{WHL+4*s_+3}], v[{src}:{src+3}], {c_}")
    for j in range(3):
        b_ = XA + 4 * j
        a(f"    v_mul_f32 v{b_}, s{t0}, v{b_}\n    v_mul_f32 v{b_+1}, s{t0}, v{b_+1}\n    v_mul_f32 v{b_+2}, s{t0}, v{b_+2}\n    v_mul_f32 v{b_+3}, s{t0}, v{b_+3}")
        x = X + 4 * j
        a(f"    v_cvt_pk_bf16_f32 v{x}, v{b_}, v{b_+1}")
        a(f"    v_cvt_pk_bf16_f32 v{x+1}, v{b_+2}, v{b_+3}")
        a(f"    v_mov_b32 v{x+2}, v{A4}")
        a(f"    v_mov_b32 v{x+3}, 0")
        a(f"    s_nop 1")
        a(f"    v_permlane32_swap_b32 v{x}, v{x+2}")
        a(f"    v_permlane32_swap_b32 v{x+1}, v{x+3}")
    a.label("K2_noX")
    a(f"    s_waitcnt lgkmcnt(0)")
    b_issue(PJ + 0, PJ + 2, 1)
    e_issue(PJ + 4, EFB[1])
    for r in range(4): a(f"    v_mov_b32 v{XC+r}, v{X+r}")
    st(7)
    a(f"    s_waitcnt vmcnt(6) lgkmcnt(0)")
    for j in range(4):
        r = RR + j
        ps, pd = PSRC + 2 * j, PDST + 2 * j
        a(f"    v_cmp_gt_u32 vcc, -2, v{r}")
        a(f"    s_and_saveexec_b64 s[{sX}:{sX+1}], vcc")
        a(f"    s_cbranch_execz K2_bd{j}")
        h0, h1, h2, h3 = BF, BF + 1, BF + 2, BF + 3
        a(f"    v_lshlrev_b32 v{h0}, 16, v{pd}\n    v_lshlrev_b32 v{h1}, 16, v{ps}\n    v_sub_f32 v{h0}, v{h0}, v{h1}")
        a(f"    v_and_b32 v{h1}, 0xffff0000, v{pd}\n    v_and_b32 v{h2}, 0xffff0000, v{ps}\n    v_sub_f32 v{h1}, v{h1}, v{h2}")
        a(f"    v_lshlrev_b32 v{h2}, 16, v{pd+1}\n    v_lshlrev_b32 v{h3}, 16, v{ps+1}\n    v_sub_f32 v{h2}, v{h2}, v{h3}")
        g0, g1, g2, g3 = AF, AF + 1, AF + 2, AF + 3
        a(f"    v_cvt_pk_bf16_f32 v{g0}, v{h0}, v{h1}")
        a(f"    v_cvt_pk_bf16_f32 v{g1}, v{h2}, v{h2}")
        a(f"    v_lshlrev_b32 v{h0}, 16, v{g0}\n    v_and_b32 v{h1}, 0xffff0000, v{g0}\n    v_and_b32 v{h2}, 0xffff0000, v{g1}")
        a(f"    v_mul_f32 v{h0}, v{h0}, v{h0}\n    v_mul_f32 v{h1}, v{h1}, v{h1}\n    v_mul_f32 v{h2}, v{h2}, v{h2}")
        a(f"    v_cvt_pk_bf16_f32 v{g2}, v{h0}, v{h1}\n    v_cvt_pk_bf16_f32 v{g3}, v{h2}, v{h2}")
        a(f"    v_lshlrev_b32 v{h0}, 16, v{g2}\n    v_and_b32 v{h1}, 0xffff0000, v{g2}\n    v_and_b32 v{h2}, 0xffff0000, v{g3}")
        a(f"    v_add_f32 v{h0}, v{h0}, v{h1}\n    v_add_f32 v{h0}, v{h0}, v{h2}")
        a(f"    v_cvt_pk_bf16_f32 v{g2}, v{h0}, v{h0}")
        a(f"    v_mov_b32 v{h0}, 0x3f80")
        a(f"    v_lshl_or_b32 v{h2}, v{g0}, 16, v{h0}")
        a(f"    v_alignbit_b32 v{h3}, v{g1}, v{g0}, 16")
        a(f"    v_bfe_u32 v{A1}, v{r}, 14, 3")
        a(f"    v_lshlrev_b32 v{A4}, 6, v{SL+j}")
        a(f"    v_lshl_add_u32 v{A4}, v{A1}, 3, v{A4}")
        a(f"    v_add_u32 v{A4}, {A3T}, v{A4}")
        a(f"    ds_write_b64 v{A4}, v[{h2}:{h3}]")
        a(f"    v_lshlrev_b32 v{A4}, 4, v{SL+j}")
        a(f"    v_add_u32 v{A5}, {A2H}, v{A4}")
        a(f"    ds_write_b32 v{A5}, v{g2}")
        a(f"    v_lshl_add_u32 v{A4}, v{A1}, 1, v{A4}")
        a(f"    v_add_u32 v{A4}, {A2L}, v{A4}")
        a(f"    ds_write_b16 v{A4}, v{h0}")
        a.label(f"K2_bd{j}")
        a(f"    s_mov_b64 exec, s[{sX}:{sX+1}]")
    b_issue(PK2 + 0, PK2 + 2, 2)
    e_issue(PK2 + 4, EFB[2])
    a(f"    s_cmp_eq_u32 s{sDPI}, 1")
    a(f"    s_cbranch_scc1 K2_nodp")
    a(f"    s_nop 7")
    for k in range(3): a(mfma(DP + 16 * k, ZR, ZR, None))
    a(f"    s_mov_b32 s{sDPI}, 1")
    a.label("K2_nodp")
    a(mfma(DPC, ZR, ZR, None))
    a(f"    s_mov_b32 s{sI}, -1")
    a(f"    v_add_u32 v{aRH}, {4*256}, v{aRH}")
    a(f"    v_add_u32 v{aRE}, {4*256}, v{aRE}")
    a(f"    s_waitcnt lgkmcnt(0)")
    st(8)
    a(f"    s_barrier")
    st(9)
    if cfg.only_set >= 0:
        a(f"    s_cmp_eq_u32 s{sSet}, {cfg.only_set}")
        a(f"    s_cselect_b32 s{sTs}, s{sTs}, 0")
    if cfg.prio >= 0:
        a(f"    s_cmp_eq_u32 s{sSet}, {cfg.prio}")
        a(f"    s_cbranch_scc0 K2_noprio")
        a(f"    s_setprio 1")
        a.label("K2_noprio")
    a(f"    s_cmp_eq_u32 s{sTs}, 0")
    a(f"    s_cbranch_scc1 K2_loopdone")

    def top(m, with_tr, roff, aoff2, aoff3, ret):
        rs = (m + 1) & 3
        a(f"    s_waitcnt vmcnt(6)")
        for u in range(4):
            a(f"    ds_read_b64_tr_b16 v[{BF+2*u}:{BF+2*u+1}], v{cBF} offset:{rs*SLOT + [0, 256, 1024, 1280][u]}")
        a(f"    ds_read_b128 v[{AF}:{AF+3}], v{aA2} offset:{aoff2}")
        if with_tr:
            for u in range(4):
                a(f"    ds_read_b64_tr_b16 v[{TR+2*u}:{TR+2*u+1}], v{aA3} offset:{aoff3 + 512*u}")
        b_issue(iH0, iH1, m & 3, filler=lambda: a(f"    s_cmp_eq_u32 s{sD}, s{sEv}"))
        e_issue(iE, EFB[m & 3])
        a(f"    ds_read_u16 v{iH0}, v{aRH} offset:{roff}")
        a(f"    ds_read_u16 v{iH1}, v{aRH} offset:{roff + 128}")
        a(f"    ds_read_b32 v{iE}, v{aRE} offset:{roff + 4}")
        a(f"    s_cbranch_scc1 K2_ev{ret}")
        a.label(f"K2_evr{ret}")
    def silu_h(Dc, hf, mids, pre_cvt_last=None):
        d = Dc + 8 * hf
        if mids[0]: mids[0]()
        for i in range(4): a(f"    v_exp_f32 v{T+i}, v{d+i}")
        if mids[1]: mids[1]()
        for i in range(4, 8): a(f"    v_exp_f32 v{T+i}, v{d+i}")
        for i in range(0, 8, 2): a(f"    v_pk_add_f32 v[{T+i}:{T+i+1}], v[{T+i}:{T+i+1}], 1.0 op_sel_hi:[1,0]")
        if mids[2]: mids[2]()
        for i in range(4): a(f"    v_rcp_f32 v{T+i}, v{T+i}")
        if mids[3]: mids[3]()
        for i in range(4, 8): a(f"    v_rcp_f32 v{T+i}, v{T+i}")
        for i in range(0, 8, 2): a(f"    v_pk_mul_f32 v[{T+8+i}:{T+8+i+1}], v[{d+i}:{d+i+1}], v[{T+i}:{T+i+1}]")
        for i in range(4): a(f"    v_cvt_pk_bf16_f32 v{M+4*hf+i}, v{T+8+2*i}, v{T+8+2*i+1}")

    top(3, False, 0, 0, 0, 4)
    a(f"    v_add_u32 v{aRH}, 256, v{aRH}\n    v_add_u32 v{aRE}, 256, v{aRE}\n    v_add_u32 v{aA2}, 512, v{aA2}")
    Dn = D[1]
    a(mfma(Dn, EFB[0], W4F, None))
    a(f"    s_waitcnt lgkmcnt(3)")
    a(mfma(Dn, AF, XC, Dn))
    a(mfma(Dn, IDN, BF, Dn))
    a(mfma(Dn, IDN + 4, BF + 4, Dn))
    a(f"    s_waitcnt lgkmcnt(0)")
    a(f"    s_nop 7")
    st(19)
    a(f"    s_sub_u32 s{sD}, s{sD}, 1")
    a(f"    s_cbranch_scc1 K2_ex3")

    def body(m):
        Dc, Dn = (D[1], D[0]) if m % 2 == 0 else (D[0], D[1])
        rs = (m + 1) & 3
        roff, aoff2, aoff3 = m * 256, m * 512, m * 2048
        a.label(f"K2_it{m}")
        BFr = [f"    ds_read_b64_tr_b16 v[{BF+2*u}:{BF+2*u+1}], v{cBF} offset:{rs*SLOT + [0, 256, 1024, 1280][u]}" for u in range(4)]
        AFr = f"    ds_read_b128 v[{AF}:{AF+3}], v{aA2} offset:{aoff2}"
        TRr = [f"    ds_read_b64_tr_b16 v[{TR+2*u}:{TR+2*u+1}], v{aA3} offset:{aoff3 + 512*u}" for u in range(4)]
        ex = lambda hf, i: f"    v_exp_f32 v{T+i}, v{Dc+8*hf+i}"
        rc = lambda i: f"    v_rcp_f32 v{T+i}, v{T+i}"
        def pkadd():
            for i in range(0, 8, 2): a(f"    v_pk_add_f32 v[{T+i}:{T+i+1}], v[{T+i}:{T+i+1}], 1.0 op_sel_hi:[1,0]")
        def fin(hf):
            d = Dc + 8 * hf
            for i in range(0, 8, 2): a(f"    v_pk_mul_f32 v[{T+8+i}:{T+8+i+1}], v[{d+i}:{d+i+1}], v[{T+i}:{T+i+1}]")
            for i in range(4): a(f"    v_cvt_pk_bf16_f32 v{M+4*hf+i}, v{T+8+2*i}, v{T+8+2*i+1}")
        def il(vs, fs):
            for k, v_ in enumerate(vs):
                a(v_)
                if k < len(fs) and fs[k]: a(fs[k])
        if cfg.tprio == 1: a(f"    s_setprio 1")
        a(f"    s_waitcnt vmcnt(6)")
        a(mfma(Dn, EFB[(m + 1) & 3], W4F, None))
        il([ex(0, 0), ex(0, 1)], [f"    s_cmp_eq_u32 s{sD}, s{sEv}", f"    s_cbranch_scc1 K2_ev{m}"])
        a.label(f"K2_evr{m}")
        il([ex(0, 2), ex(0, 3)], [BFr[0], BFr[1]])
        il([ex(0, i) for i in range(4, 8)], [BFr[2], BFr[3], AFr, TRr[0]])
        pkadd()
        il([rc(i) for i in range(4)], [TRr[1], TRr[2], TRr[3], f"    s_add_u32 m0, s{sStg}, {(m & 3)*SLOT}"])
        a(f"    s_waitcnt lgkmcnt(4)")
        a(mfma(Dn, AF, XC, Dn))
        il([rc(i) for i in range(4, 8)], [f"    buffer_load_dwordx4 v[{iH0}:{iH0+1}], s[{sB}:{sB+3}], 0 idxen offen lds",
                                          f"    buffer_load_dwordx4 v[{iH1}:{iH1+1}], s[{sB2}:{sB2+3}], 0 idxen offen offset:1024 lds",
                                          f"    buffer_load_dwordx4 v[{EFB[m & 3]}:{EFB[m & 3]+3}], v[{iE}:{iE+1}], s[{sEA}:{sEA+3}], 0 idxen offen",
                                          f"    ds_read_u16 v{iH0}, v{aRH} offset:{roff}"])
        fin(0)
        a(mfma(Dn, IDN, BF, Dn))
        il([ex(1, i) for i in range(4)], [f"    ds_read_u16 v{iH1}, v{aRH} offset:{roff + 128}", f"    ds_read_b32 v{iE}, v{aRE} offset:{roff + 4}",
                                          (f"    s_setprio 0" if cfg.tprio == 1 else None), None])
        a(mfma(Dn, IDN + 4, BF + 4, Dn))
        il([ex(1, i) for i in range(4, 8)], [f"    s_sub_u32 s{sD}, s{sD}, 1", None, None, None])
        pkadd()
        a(f"    s_waitcnt lgkmcnt(3)")
        a(mfma(DPC, M, TR, DPC))
        if m == 3:
            il([rc(i) for i in range(8)], [None] * 8)
            a(f"    v_add_u32 v{aRH}, 1024, v{aRH}\n    v_add_u32 v{aRE}, 1024, v{aRE}\n    v_add_u32 v{aA2}, 2048, v{aA2}\n    v_add_u32 v{aA3}, 8192, v{aA3}")
        else:
            il([rc(i) for i in range(8)], [None] * 8)
        fin(1)
        a(f"    s_nop 1")
        a(mfma(DPC, M + 4, TR + 4, DPC))
        a(f"    s_cbranch_scc1 K2_ex{m}")
    _l0 = len(a.lines)
    for m in range(4): body(m)
    new = []
    for ln in "\n".join(a.lines[_l0:]).split("\n"):
        t = ln.strip()
        if cfg.l_nolds and t.startswith("ds_read") and "u16" not in t and "ds_read_b32" not in t: continue
        if cfg.l_novm and t.startswith("buffer_load") and (cfg.l_novm == 1 or (cfg.l_novm == 2 and " lds" in t) or (cfg.l_novm == 3 and " lds" not in t)): continue
        if cfg.l_nomf and t.startswith("v_mfma"): continue
        if cfg.l_nosi and t.startswith(("v_exp", "v_rcp", "v_pk_", "v_cvt_pk")): continue
        new.append(ln)
    a.lines[_l0:] = new
    a(f"    s_branch K2_it0")
    for m in range(4):
        nm = (m + 1) & 3
        a.label(f"K2_ex{m}")
        if nm: a(f"    v_add_u32 v{aA3}, {nm * 2048}, v{aA3}")
        a(f"    s_branch K2_epi{1 if nm % 2 == 0 else 0}")

    for ret in range(7):
        a.label(f"K2_ev{ret}")
        a(f"    s_mov_b32 s{sRet}, {ret}")
        if ret != 6: a(f"    s_branch K2_ev")
    a(f"    s_branch K2_dsw")
    a.label("K2_ev")
    a(f"    s_sub_u32 s{sI}, s{sTs}, 2")
    a(f"    s_sub_u32 s{sI}, s{sI}, s{sD}")
    a.label("K2_evx")
    a(f"    s_add_u32 s4, s{sI}, 1")
    a(f"    s_cmp_eq_u32 s4, s{sBx}")
    a(f"    s_cbranch_scc0 K2_evd")
    a(f"    s_add_u32 s{sKx}, s{sKx}, 1")
    a(f"    s_mov_b32 s{sBx}, s{sBx2}")
    a(f"    s_mov_b32 s{sBx2}, 0x7fff")
    a(f"    s_cmp_eq_u32 s{sKx}, 1")
    a(f"    s_cbranch_scc0 K2_evx2")
    for r in range(4): a(f"    v_mov_b32 v{XC+r}, v{X+4+r}")
    a(f"    s_branch K2_evx")
    a.label("K2_evx2")
    for r in range(4): a(f"    v_mov_b32 v{XC+r}, v{X+8+r}")
    a(f"    s_branch K2_evx")
    a.label("K2_evd")
    a(f"    s_cmp_eq_u32 s{sI}, s{sBd}")
    a(f"    s_cbranch_scc0 K2_evn")
    a.label("K2_dsw")
    a(f"    s_cmp_eq_u32 s{sKd}, 1\n    s_cbranch_scc1 K2_dsw_1")
    a(f"    s_cmp_eq_u32 s{sKd}, 2\n    s_cbranch_scc1 K2_dsw_2")
    for k in range(3):
        if k: a.label(f"K2_dsw_{k}")
        for r in range(0, 16, 2): a(f"    v_pk_add_f32 v[{DP+16*k+r}:{DP+16*k+r+1}], v[{DP+16*k+r}:{DP+16*k+r+1}], v[{DPC+r}:{DPC+r+1}]")
        if k < 2: a(f"    s_branch K2_dsw_c")
    a.label("K2_dsw_c")
    a(mfma(DPC, ZR, ZR, None))
    a(f"    s_add_u32 s{sKd}, s{sKd}, 1")
    a(f"    s_mov_b32 s{sBd}, s{sBd2}")
    a(f"    s_mov_b32 s{sBd2}, 0x7fff")
    a(f"    s_cmp_eq_u32 s{sRet}, 6\n    s_cbranch_scc1 K2_evr6")
    a(f"    s_branch K2_evd")
    a.label("K2_evn")
    a(f"    s_sub_u32 s4, s{sBx}, 1")
    a(f"    s_min_i32 s4, s4, s{sBd}")
    a(f"    s_sub_u32 s{sEv}, s{sTs}, 2")
    a(f"    s_sub_u32 s{sEv}, s{sEv}, s4")
    for ret in range(5):
        a(f"    s_cmp_eq_u32 s{sRet}, {ret}\n    s_cbranch_scc1 K2_evr{ret}")
    a(f"    s_branch K2_evr5")
    a.label("K2_mark")
    a(f"    v_mov_b32 v{A0}, 1")
    a(f"    v_mov_b32 v{A1}, {CNT + 20}")
    a(f"    ds_write_b32 v{A1}, v{A0}")
    a(f"    s_branch K2_rank")
    a.label("K2_toslow")
    a(f"    s_mov_b32 s{sMode}, 1")
    a(f"    s_mov_b32 s{sWin}, 0")
    a(f"    s_waitcnt vmcnt(0)")
    a(f"    s_barrier")
    a(f"    s_branch K2_zero")
    a.label("K2_readdr")
    a(f"    v_and_b32 v{A0}, 31, v{l}\n    v_lshrrev_b32 v{A2_}, 5, v{l}")
    a(f"    v_mul_u32_u24 v{A4}, {A2H - A2L}, v{A2_}\n    v_lshl_add_u32 v{aA2}, v{A0}, 4, v{A4}\n    v_add_u32 v{aA2}, {A2L}, v{aA2}")
    a(f"    v_lshlrev_b32 v{A4}, 8, v{A2_}\n    v_sub_u32 v{aA3}, v{cBF}, v{A4}\n    v_subrev_u32 v{aA3}, s{sStg}, v{aA3}\n    v_add_u32 v{aA3}, {A3T}, v{aA3}")
    a(f"    v_lshrrev_b32 v{A4}, 2, v{l}\n    v_lshlrev_b32 v{A4}, 3, v{A4}\n    v_add_u32 v{aRH}, {REC}, v{A4}")
    a(f"    v_lshlrev_b32 v{A4}, 3, v{A0}\n    v_add_u32 v{aRE}, {REC}, v{A4}")
    a(f"    s_branch K2_addrok")

    a.label("K2_epi0")
    for r in range(16): a(f"    v_mov_b32 v{D[1]+r}, v{D[0]+r}")
    def tail_loads():
        a(f"    v_lshlrev_b32 v{A0}, 4, v{l}")
        a(f"    s_lshl_b32 s{t1}, s{sW}, 13")
        a(f"    s_add_u32 s{t1}, s{t1}, s{sFr}")
        a(f"    s_add_u32 s{t1}, s{t1}, {WEF_BYTES + 4096}")
        a(f"    s_mov_b32 s84, s72\n    s_mov_b32 s85, s73\n    s_mov_b32 s86, 256\n    s_mov_b32 s87, 0x00020000")
        a(f"    v_lshrrev_b32 v{A1}, 5, v{l}\n    v_lshlrev_b32 v{A1}, 3, v{A1}\n    s_lshl_b32 s{t2}, s{sC}, 6")
        for s_ in range(2):
            for u in range(2):
                a(f"    buffer_load_dwordx2 v[{WX+4*s_+2*u}:{WX+4*s_+2*u+1}], v{A1}, s[84:87], s{t2} offen offset:{32*s_+16*u}")
        for s_ in range(4):
            a(f"    buffer_load_dwordx4 v[{WHH+4*s_}:{WHH+4*s_+3}], v{A0}, s[{sWS}:{sWS+3}], s{t1} offen offset:{1024*s_}")
    a.label("K2_epi1")
    st(18)
    for u in range(4):
        a(f"    ds_read_b64_tr_b16 v[{TR+2*u}:{TR+2*u+1}], v{aA3} offset:{512*u}")
    a(f"    s_cmp_eq_u32 s{sMode}, 0")
    a(f"    s_cbranch_scc0 K2_epib")
    a(f"    s_mov_b32 s{sTL}, 1")
    tail_loads()
    a.label("K2_epib")
    a(f"    s_cmp_eq_u32 s{sD}, s{sEv}")
    a(f"    s_cbranch_scc1 K2_ev5")
    a.label("K2_evr5")
    silu_h(D[1], 0, [None, None, None, None])
    silu_h(D[1], 1, [None, None, None, None])
    a(f"    s_waitcnt lgkmcnt(0)")
    a(mfma(DPC, M, TR, DPC))
    a(mfma(DPC, M + 4, TR + 4, DPC))
    a(f"    s_nop 7\n    s_nop 2")
    a(f"    s_branch K2_ev6")
    a.label("K2_evr6")
    a.label("K2_loopdone")
    st(10)
    a(f"    s_cmp_eq_u32 s{sMode}, 0")
    a(f"    s_cbranch_scc1 K2_tail")
    a(f"    s_waitcnt vmcnt(0)")
    a(f"    s_barrier")
    a(f"    s_mul_i32 s{t0}, s{sWin}, {WIN}")
    a(f"    s_cmp_ge_u32 s{t0}, {E}")
    a(f"    s_cbranch_scc0 K2_zero")
    a.label("K2_tail")
    a(f"    s_cmp_eq_u32 s{sTL}, 1")
    a(f"    s_cbranch_scc1 K2_tail2")
    tail_loads()
    a.label("K2_tail2")
    a(f"    v_bfe_u32 v{A0}, v{l}, 2, 3")
    a(f"    v_lshrrev_b32 v{A3_}, 5, v{l}")
    a(f"    v_lshlrev_b32 v{A1}, 6, v{A0}")
    a(f"    v_lshl_add_u32 v{A1}, v{A3_}, 3, v{A1}")
    a(f"    v_add_u32 v{A1}, s{sStg}, v{A1}")
    a(f"    v_lshrrev_b32 v{A0}, 2, v{A0}")
    a(f"    v_lshlrev_b32 v{A0}, 5, v{A0}")
    a(f"    v_sub_u32 v{A2_}, v{A1}, v{A0}")
    a(f"    v_add_u32 v{A1}, v{A1}, v{A0}")
    a(f"    v_and_b32 v{A4}, 31, v{l}")
    a(f"    s_mul_i32 s{t2}, s{sSet}, {3*512}")
    a(f"    s_lshl_b32 s{t1}, s{sC}, 7")
    a(f"    s_add_u32 s{t2}, s{t2}, s{t1}")
    a(f"    s_add_u32 s{t2}, s{t2}, {PPO}")
    a(f"    v_lshl_add_u32 v{A5}, v{A4}, 2, s{t2}")
    a(f"    s_mov_b32 s84, 0x11111111\n    s_mov_b32 s85, 0x11111111")
    PK = T
    PKr = [T, T + 8, BF]
    for k in range(3):
        dp = DP + 16 * k
        for u in range(8):
            a(f"    v_cvt_pk_bf16_f32 v{PKr[k]+u}, v{dp+2*u}, v{dp+2*u+1}")
    TD = [D[0], D[1], DPC]
    a(f"    s_waitcnt vmcnt(4)")
    for k in range(3):
        a(mfma(TD[k], WX, PKr[k], None))
        a(mfma(TD[k], WX + 4, PKr[k] + 4, TD[k]))
    st(20)
    a(f"    s_mov_b64 exec, s[84:85]")
    for k in range(3):
        for j in range(4):
            a(f"    ds_write_b64 v{A1 if j < 2 else A2_}, v[{PKr[k]+2*j}:{PKr[k]+2*j+1}] offset:{k*512 + j*16}")
    a(f"    s_mov_b64 exec, 0xffffffff")
    for k in range(3):
        a(f"    ds_write_b32 v{A5}, v{TD[k]} offset:{512*k}")
    a(f"    s_mov_b64 exec, -1")
    XB = T
    a(f"    s_waitcnt lgkmcnt(0)")
    st(16)
    a(f"    s_barrier")
    st(12)
    AC = D[0]
    FB = DP
    a(mfma(XB, ZR, ZR, None))
    a(f"    v_and_b32 v{A0}, 7, v{l}")
    a(f"    v_lshrrev_b32 v{A1}, 4, v{l}")
    a(f"    v_bfe_u32 v{A4}, v{l}, 2, 1")
    a(f"    v_lshlrev_b32 v{A4}, 1, v{A4}")
    a(f"    v_xor_b32 v{A1}, v{A1}, v{A4}")
    a(f"    v_lshlrev_b32 v{A1}, 4, v{A1}")
    a(f"    v_lshl_add_u32 v{A0}, v{A0}, 6, v{A1}")
    a(f"    v_bfe_u32 v{A1}, v{l}, 3, 1")
    a(f"    v_lshl_add_u32 v{A4}, v{A1}, 9, v{A0}")
    a(f"    v_mul_u32_u24 v{A1}, 7680, v{A1}")
    a(f"    v_add_u32 v{A5}, v{A1}, v{A0}")
    for s_ in range(4): a(f"    ds_read_b128 v[{FB+4*s_}:{FB+4*s_+3}], v{A4} offset:{2048*s_}")
    for s_ in range(4): a(f"    ds_read_b128 v[{FB+16+4*s_}:{FB+16+4*s_+3}], v{A5} offset:{1024 + 2048*s_}")
    for s_ in range(4): a(f"    ds_read_b128 v[{FB+32+4*s_}:{FB+32+4*s_+3}], v{A0} offset:{9216 + 2048*s_}")
    a(f"    s_mov_b32 s{sX}, 0x00ff00ff\n    s_mov_b32 s{sX+1}, 0x00ff00ff")
    a(f"    s_mov_b64 exec, s[{sX}:{sX+1}]")
    a(f"    s_waitcnt lgkmcnt(8)")
    for s_ in range(4):
        a(f"    ds_read_b128 v[{XB+4*s_}:{XB+4*s_+3}], v{A0} offset:{8192 + 2048*s_}")
    a(f"    s_mov_b64 exec, -1")
    a(f"    v_and_b32 v{A2_}, 15, v{l}")
    a(f"    v_add_u32 v{A2_}, s{sB40}, v{A2_}")
    a(f"    v_lshlrev_b32 v{A2_}, 8, v{A2_}")
    a(f"    v_lshrrev_b32 v{A3_}, 4, v{l}")
    a(f"    v_lshl_add_u32 v{A2_}, v{A3_}, 3, v{A2_}")
    a(f"    s_lshl_b32 s{t2}, s{sW}, 5")
    a(f"    v_add_u32 v{OUTA}, s{t2}, v{A2_}")
    for ntile in range(3):
        for s_ in range(4):
            a(f"    s_waitcnt lgkmcnt({11 - (ntile*4+s_) + 4 if (ntile*4+s_) > 3 else 15})" + (" vmcnt(0)" if ntile == 0 and s_ == 0 else ""))
            c_ = "0" if s_ == 0 else f"v[{AC+4*ntile}:{AC+4*ntile+3}]"
            a(f"    v_mfma_f32_16x16x32_bf16 v[{AC+4*ntile}:{AC+4*ntile+3}], v[{WHH+4*s_}:{WHH+4*s_+3}], v[{FB+16*ntile+4*s_}:{FB+16*ntile+4*s_+3}], {c_}")
    for s_ in range(4):
        a(f"    s_waitcnt lgkmcnt({3 - s_})")
        a(f"    v_mfma_f32_16x16x32_bf16 v[{AC+4}:{AC+7}], v[{WHH+4*s_}:{WHH+4*s_+3}], v[{XB+4*s_}:{XB+4*s_+3}], v[{AC+4}:{AC+7}]")
    st(17)
    a(f"    s_mov_b32 s6, {hex(f32bits(-LN2))}")
    a(f"    s_mov_b32 s4, {hex(f32bits(-LOG2E))}")
    a(f"    s_movk_i32 s{t2}, 0x1000")
    a(f"    s_movk_i32 s{t3}, 0x2000")
    RS = DP
    for ntile in range(3):
        rs = RES + 2 * ntile
        a(f"    v_lshlrev_b32 v{RS+4*ntile}, 16, v{rs}\n    v_and_b32 v{RS+4*ntile+1}, 0xffff0000, v{rs}")
        a(f"    v_lshlrev_b32 v{RS+4*ntile+2}, 16, v{rs+1}\n    v_and_b32 v{RS+4*ntile+3}, 0xffff0000, v{rs+1}")
    YY = DP + 16
    order = [0, 2, 1]
    for ntile in order:
        for i in (0, 2):
            x = AC + 4 * ntile + i; hp = HP + 4 * ntile + i
            a(f"    v_pk_fma_f32 v[{x}:{x+1}], v[{x}:{x+1}], s[6:7], v[{hp}:{hp+1}] op_sel_hi:[1,0,1]")
    for ntile in order:
        for i in (0, 2):
            x = AC + 4 * ntile + i; y = YY + 4 * ntile + i
            a(f"    v_pk_mul_f32 v[{y}:{y+1}], v[{x}:{x+1}], s[4:5] op_sel_hi:[1,0]")
    for ntile in order:
        for i in range(4): a(f"    v_exp_f32 v{YY+4*ntile+i}, v{YY+4*ntile+i}")
    for ntile in order:
        for i in (0, 2):
            y = YY + 4 * ntile + i
            a(f"    v_pk_add_f32 v[{y}:{y+1}], v[{y}:{y+1}], 1.0 op_sel_hi:[1,0]")
    for ntile in order:
        for i in range(4): a(f"    v_rcp_f32 v{YY+4*ntile+i}, v{YY+4*ntile+i}")
    for ntile in order:
        for i in (0, 2):
            x = AC + 4 * ntile + i; y = YY + 4 * ntile + i; r_ = RS + 4 * ntile + i
            a(f"    v_pk_fma_f32 v[{x}:{x+1}], v[{x}:{x+1}], v[{y}:{y+1}], v[{r_}:{r_+1}]")
        x = AC + 4 * ntile
        a(f"    v_cvt_pk_bf16_f32 v{TR+2*ntile}, v{x}, v{x+1}")
        a(f"    v_cvt_pk_bf16_f32 v{TR+2*ntile+1}, v{x+2}, v{x+3}")
        if ntile == 0: a(f"    buffer_store_dwordx2 v[{TR}:{TR+1}], v{OUTA}, s[{sOUT}:{sOUT+3}], 0 offen{fo}")
        if ntile == 1: a(f"    buffer_store_dwordx2 v[{TR+2}:{TR+3}], v{OUTA}, s[{sOUT}:{sOUT+3}], s{t2} offen{fo}")
        if ntile == 2:
            a(f"    s_mov_b32 s84, 0x00ff00ff\n    s_mov_b32 s85, 0x00ff00ff")
            a(f"    s_mov_b64 exec, s[84:85]")
            a(f"    buffer_store_dwordx2 v[{TR+4}:{TR+5}], v{OUTA}, s[{sOUT}:{sOUT+3}], s{t3} offen{fo}")
            a(f"    s_mov_b64 exec, -1")
    a(f"    s_cmp_ge_u32 s{sW}, 2")
    a(f"    s_cbranch_scc1 K2_nopos")
    a(f"    v_mul_u32_u24 v{A0}, 171, v0")
    a(f"    v_lshrrev_b32 v{A0}, 9, v{A0}")
    a(f"    v_min_u32 v{A0}, 39, v{A0}")
    a(f"    v_mul_u32_u24 v{A1}, 3, v{A0}")
    a(f"    v_sub_u32 v{A1}, v0, v{A1}")
    a(f"    v_and_b32 v{A1}, 3, v{A1}")
    a(f"    v_lshlrev_b32 v{A2_}, 3, v{A0}")
    a(f"    v_lshl_add_u32 v{A2_}, v{A1}, 1, v{A2_}")
    a(f"    v_add_u32 v{A2_}, {POSD}, v{A2_}")
    a(f"    v_and_b32 v{A4}, 7, v{A0}")
    a(f"    v_lshlrev_b32 v{A4}, 4, v{A4}")
    a(f"    v_lshl_add_u32 v{A4}, v{A1}, 2, v{A4}")
    a(f"    v_lshrrev_b32 v{A0}, 3, v{A0}")
    a(f"    v_cmp_lt_u32 vcc, 2, v{A0}")
    a(f"    ds_read_u16 v{POSO}, v{A2_}")
    a(f"    s_nop 0")
    a(f"    v_addc_co_u32 v{A1}, vcc, 0, v{A0}, vcc")
    a(f"    v_lshl_add_u32 v{A4}, v{A1}, 9, v{A4}")
    a(f"    v_add_u32 v{A4}, {PPO + 4}, v{A4}")
    PQ = M
    for cc in range(4): a(f"    ds_read_b32 v{PQ+cc}, v{A4} offset:{128*cc}")
    a(f"    v_cmp_eq_u32 vcc, 2, v{A0}")
    for cc in range(4): a(f"    ds_read_b32 v{PQ+4+cc}, v{A4} offset:{512+128*cc}")
    a(f"    s_mul_i32 s{t2}, s2, 240")
    a(f"    s_add_u32 s{t2}, s{t2}, {N*256}")
    a(f"    v_lshlrev_b32 v{A0}, 1, v0")
    a(f"    s_waitcnt lgkmcnt(0)")
    a(f"    v_add_f32 v{M}, v{M}, v{M+1}\n    v_add_f32 v{M+2}, v{M+2}, v{M+3}\n    v_add_f32 v{M}, v{M}, v{M+2}")
    a(f"    v_add_f32 v{M+4}, v{M+4}, v{M+5}\n    v_add_f32 v{M+6}, v{M+6}, v{M+7}\n    v_add_f32 v{M+4}, v{M+4}, v{M+6}")
    a(f"    v_cndmask_b32 v{M+4}, 0, v{M+4}, vcc")
    a(f"    v_add_f32 v{A1}, v{M}, v{M+4}")
    a(f"    v_lshlrev_b32 v{POSO}, 16, v{POSO}")
    a(f"    v_fma_f32 v{A1}, v{A1}, s6, v{POSO}")
    a(f"    v_cvt_pk_bf16_f32 v{A1}, v{A1}, v{A1}")
    a(f"    v_cmp_gt_u32 vcc, 120, v0")
    a(f"    s_and_saveexec_b64 s[84:85], vcc")
    a(f"    s_cbranch_execz K2_nopos")
    a(f"    buffer_store_short v{A1}, v{A0}, s[{sOUT}:{sOUT+3}], s{t2} offen{fo}")
    a.label("K2_nopos")
    a(f"    s_mov_b64 exec, -1")
    if cfg.dbg:
        st(13)
        a(f"    s_waitcnt vmcnt(0)")
        st(14)
        a(f"    v_writelane_b32 v{vST}, s{sTs}, 15")
        a(f"    s_getreg_b32 s6, hwreg(HW_REG_XCC_ID)\n    s_add_u32 s6, s6, 1\n    v_writelane_b32 v{vST}, s6, 20")
        stamp_store(a, cfg, vST, sWS, 0x140000, sW, A0, sMI)
    a.label("K2_done")
    a("    s_endpgm")
    a.label("K2_end")
    return nv

HEADER = """; EGNN layer, two launches.  Kernarg (88 bytes): h, pos, e_attr, src, dst, w_e, w_x, w_h, out, debug, ws
; @launch kernel=k1_kernel grid=({g1},1,1) block=(512,1,1) lds={lds1}
; @launch kernel=k2_kernel grid=(250,1,1) block=(512,1,1) lds={lds2}
.amdgcn_target "amdgcn-amd-amdhsa--gfx950"
.text
"""
def desc(name, nv, ns):
    acc = (nv + 3) // 4 * 4
    return f""".p2align 6
.amdhsa_kernel {name}
  .amdhsa_next_free_vgpr {nv}
  .amdhsa_next_free_sgpr {ns}
  .amdhsa_accum_offset {acc}
  .amdhsa_group_segment_fixed_size 0
  .amdhsa_kernarg_size 88
  .amdhsa_user_sgpr_count 2
  .amdhsa_user_sgpr_kernarg_segment_ptr 1
  .amdhsa_system_sgpr_workgroup_id_x 1
  .amdhsa_float_denorm_mode_32 3
.end_amdhsa_kernel
"""
def generate(cfg):
    a = Asm()
    a(HEADER.format(g1=cfg.g1, lds1=K1_LDS, lds2=LDS2))
    gen_k1(a, cfg)
    nv = gen_k2(a, cfg)
    a('.section .rodata,"a"')
    a(desc("k1_kernel", 128, 72))
    a(desc("k2_kernel", nv, 102))
    return a.text(), nv

if __name__ == "__main__":
    cfg = Cfg()
    out = sys.argv[1] if len(sys.argv) > 1 else "egnn12.s"
    for kv in sys.argv[2:]:
        k, val = kv.split("=", 1)
        cur = getattr(cfg, k)
        setattr(cfg, k, val if isinstance(cur, str) else (eval(val) if isinstance(cur, tuple) else type(cur)(eval(val))))
    txt, nv = generate(cfg)
    open(out, "w").write(txt)
    print("vgprs", nv)
    check_hazards(txt)
```

```python
import sys, struct
from asmlib import *

def f32bits(x): return struct.unpack("<I", struct.pack("<f", x))[0]
LOG2E = 1.4426950408889634
LN2 = 0.6931471805599453
N = 10000; E = 160000; NB = 250; CH = 2500
CELL_BYTES = NB * 64 * 128
WS_FR = 0x200000
WEF_BYTES = 17 * 4 * 1024
WHF_OFF = WS_FR + WEF_BYTES
FRS = 0x22000
WS_B = 0x320000
WS_USED = WS_B + N * 256
DBG_OFF = 0x800000
QSTR = 1088
MAXT = 27
STG = 0; SSTR = 2048; NR = 4
SLOT = 8 * SSTR
A3T = NR * SLOT
A2L = A3T + MAXT * 32 * 64
A2H = A2L + MAXT * 32 * 16
REC = A2H + MAXT * 32 * 16
CNT = REC + (MAXT + 7) * 32 * 8
ZSTART = A3T; NZ = 12
POSD = 163840 - 512
ZLAST = (POSD - (ZSTART + 11 * 8192)) // 16
HOWN = 3 * SLOT
LDS2 = 163840
WIN = 192
K1_LDS = 32768 + 16 * QSTR
G_GEMM = 157
W_SORT = 160; W_PREP = 224; W_PREF = 256
PPO = CNT + 64
assert PPO + 3072 <= POSD and ZLAST <= 512

class Cfg:
    g1 = 264
    pf_ea = False
    pf_code = True
    pf_b = False
    dbg = False
    qskip = True
    st_k1 = ""
    gemm_lds = True
    tlb = False
    pf_h = False
    ab_nob = False
    st_out = ""
    tprio = 1
    few = False
    pre3 = 0
    st_b = "nt"
    st_c = ""
    b2late = False
    fewset = (0, 9, 12, 14)
    only_set = -1
    prio = -1
    l_nolds = False
    l_novm = 0
    l_nomf = False
    l_nosi = False
    l_nopk = False
    ab_noe = False
    ab_now = False
    ab_noz = False
    ab_noc = False
    ab_notail = False

def srd(a, d, base, nrec, stride=0):
    a(f"    s_mov_b32 s{d}, s{base}")
    a(f"    s_and_b32 s{d+1}, s{base+1}, 0xffff")
    if stride: a(f"    s_or_b32 s{d+1}, s{d+1}, {hex(stride << 16)}")
    a(f"    s_mov_b32 s{d+2}, {nrec}")
    a(f"    s_mov_b32 s{d+3}, 0x00020000")
def stamp(a, cfg, vreg, idx, sp=6):
    if not cfg.dbg: return
    if cfg.few and vreg != 127 and idx not in cfg.fewset: return
    if cfg.few and vreg == 127 and idx not in (0, 5): return
    a(f"    s_memrealtime s[{sp}:{sp+1}]")
    a(f"    s_waitcnt lgkmcnt(0)")
    a(f"    v_writelane_b32 v{vreg}, s{sp}, {idx}")
    a(f"    s_memtime s[{sp}:{sp+1}]")
    a(f"    s_waitcnt lgkmcnt(0)")
    a(f"    v_writelane_b32 v{vreg}, s{sp}, {idx + 32}")
def stamp_store(a, cfg, vreg, pws, region, swave, tmpv, srdb):
    if not cfg.dbg: return
    a(f"    s_mov_b64 exec, -1")
    a(f"    s_mov_b32 s{srdb}, s{pws}\n    s_and_b32 s{srdb+1}, s{pws+1}, 0xffff\n    s_mov_b32 s{srdb+2}, 0x1000000\n    s_mov_b32 s{srdb+3}, 0x00020000")
    a(f"    s_lshl_b32 s6, s2, 4")
    a(f"    s_add_u32 s6, s6, s{swave}")
    a(f"    s_lshl_b32 s6, s6, 8")
    a(f"    s_add_u32 s6, s6, {DBG_OFF + region}")
    a(f"    v_mbcnt_lo_u32_b32 v{tmpv}, -1, 0\n    v_mbcnt_hi_u32_b32 v{tmpv}, -1, v{tmpv}\n    v_lshlrev_b32 v{tmpv}, 2, v{tmpv}")
    a(f"    buffer_store_dword v{vreg}, v{tmpv}, s[{srdb}:{srdb+3}], s6 offen")

def gen_k1(a, cfg):
    fl = (" " + cfg.st_k1) if cfg.st_k1 else ""
    flB = (" " + cfg.st_b) if cfg.st_b else fl
    flC = "" if cfg.st_c == "-" else ((" " + cfg.st_c) if cfg.st_c else fl)
    def k1_end():
        if cfg.dbg:
            a("    s_mov_b64 exec, -1")
            stamp(a, cfg, 127, 4, 34)
            a("    s_waitcnt vmcnt(0)")
            stamp(a, cfg, 127, 5, 34)
            a("    s_load_dwordx2 s[8:9], s[0:1], 80\n    s_waitcnt lgkmcnt(0)")
            a("    s_getreg_b32 s34, hwreg(HW_REG_XCC_ID)\n    s_add_u32 s34, s34, 1\n    v_writelane_b32 v127, s34, 20")
            a("    v_lshrrev_b32 v126, 6, v0\n    s_nop 0\n    v_readfirstlane_b32 s33, v126")
            stamp_store(a, cfg, 127, 8, 0, 33, 126, 36)
        a("    s_endpgm")
    a(".globl k1_kernel\n.p2align 8\n.type k1_kernel,@function\nk1_kernel:")
    a(f"    s_cmp_ge_u32 s2, {G_GEMM}")
    a("    s_cbranch_scc1 K1_notgemm")
    stamp(a, cfg, 127, 0, 34)
    a("    s_load_dwordx2 s[4:5], s[0:1], 40")
    a("    s_load_dwordx2 s[8:9], s[0:1], 0")
    a("    s_load_dwordx2 s[16:17], s[0:1], 80")
    a("    v_and_b32 v1, 63, v0")
    a("    v_lshrrev_b32 v2, 6, v0")
    a("    s_lshl_b32 s20, s2, 6")
    a("    v_readfirstlane_b32 s21, v2")
    a("    s_mov_b32 s6, " + str(273 * 256) + "\n    s_mov_b32 s7, 0x00020000")
    a("    v_lshrrev_b32 v4, 4, v1")
    a("    v_and_b32 v3, 15, v1\n    v_lshlrev_b32 v5, 2, v4\n    v_xor_b32 v3, v3, v5\n    v_lshlrev_b32 v3, 4, v3\n    v_lshl_add_u32 v3, v4, 8, v3")
    a("    v_and_b32 v5, 15, v1\n    v_xor_b32 v5, v5, v4\n    v_lshlrev_b32 v7, 4, v5")
    a(f"    s_mov_b32 s10, {N}\n    s_mov_b32 s11, 0x00020000")
    a("    s_lshl_b32 s22, s21, 12")
    a(f"    s_add_u32 s23, s22, {128*256}")
    a("    s_lshl_b32 s24, s21, 3\n    s_add_u32 s24, s24, s20")
    a("    v_add_u32 v6, s24, v4")
    a("    v_add_u32 v8, 4, v6\n    v_mov_b32 v9, v7")
    a(f"    s_mul_i32 s25, s21, {2*QSTR}\n    s_add_u32 s25, s25, 32768")
    a("    s_waitcnt lgkmcnt(0)")
    a("    s_or_b32 s9, s9, 0x1000000")
    for j in range(2):
        a(f"    s_add_u32 m0, s25, {j*QSTR}\n    s_nop 0")
        a(f"    buffer_load_dwordx4 v[{6+2*j}:{7+2*j}], s[8:11], 0 idxen offen lds")
    for j in range(4):
        a(f"    s_add_u32 m0, s22, {j*1024}\n    s_add_u32 s26, s23, {j*1024}")
        a(f"    buffer_load_dwordx4 v3, s[4:7], s26 offen lds")
    a("    s_lshr_b32 s26, s21, 2\n    s_and_b32 s27, s21, 3")
    a("    v_lshrrev_b32 v14, 5, v1\n    v_lshlrev_b32 v14, 3, v14\n    v_bfe_u32 v15, v1, 2, 2\n    v_add_u32 v14, v14, v15\n    v_lshlrev_b32 v14, 8, v14")
    a("    v_bfe_u32 v15, v1, 4, 1\n    v_lshl_add_u32 v14, v15, 5, v14\n    v_and_b32 v15, 3, v1\n    v_lshl_add_u32 v14, v15, 3, v14")
    a("    v_bfe_u32 v15, v1, 2, 2\n    v_xor_b32 v15, s27, v15\n    v_lshl_add_u32 v14, v15, 6, v14")
    a("    v_and_b32 v15, 31, v1\n    v_lshrrev_b32 v16, 2, v15\n    s_lshl_b32 s28, s26, 3\n    v_add_u32 v16, s28, v16")
    a(f"    v_mul_u32_u24 v16, {QSTR}, v16\n    v_and_b32 v17, 3, v15\n    v_lshl_add_u32 v16, v17, 8, v16\n    v_add_u32 v16, 32768, v16")
    a("    v_lshrrev_b32 v18, 5, v1\n    v_xor_b32 v18, v18, v17\n    v_lshl_add_u32 v19, v18, 4, v16\n    v_xor_b32 v18, 2, v18\n    v_lshl_add_u32 v16, v18, 4, v16")
    a("    s_lshl_b32 s28, s26, 5\n    s_add_u32 s28, s28, s20\n    v_add_u32 v18, s28, v15\n    v_lshlrev_b32 v18, 8, v18")
    a("    v_lshrrev_b32 v17, 5, v1\n    v_lshl_add_u32 v18, v17, 4, v18\n    s_lshl_b32 s28, s27, 6\n    v_add_u32 v18, s28, v18")
    a(f"    s_add_u32 s16, s16, {WS_B}\n    s_addc_u32 s17, s17, 0\n    s_mov_b32 s18, {N*256}\n    s_mov_b32 s19, 0x00020000")
    a(f"    s_mov_b32 s28, {hex(f32bits(-LOG2E))}")
    a("    s_waitcnt vmcnt(0)")
    a("    s_barrier")
    stamp(a, cfg, 127, 1, 34)
    AW, BH, DD = 20, 52, 84
    for s_ in range(4):
        a(f"    ds_read_b64_tr_b16 v[{AW+4*s_}:{AW+4*s_+1}], v14 offset:{s_ * 4096}")
        a(f"    ds_read_b64_tr_b16 v[{AW+4*s_+2}:{AW+4*s_+3}], v14 offset:{s_ * 4096 + 1024}")
    for s_ in range(4):
        a(f"    ds_read_b128 v[{BH+4*s_}:{BH+4*s_+3}], v{19 if s_ % 2 == 0 else 16} offset:{(s_ >> 1) * 64}")
    a("    s_waitcnt lgkmcnt(4)")
    for s_ in range(4, 8):
        a(f"    ds_read_b64_tr_b16 v[{AW+4*s_}:{AW+4*s_+1}], v14 offset:{s_ * 4096}")
        a(f"    ds_read_b64_tr_b16 v[{AW+4*s_+2}:{AW+4*s_+3}], v14 offset:{s_ * 4096 + 1024}")
    def mf(d, A, B, first): return f"    v_mfma_f32_32x32x16_bf16 v[{d}:{d+15}], v[{A}:{A+3}], v[{B}:{B+3}], " + ("0" if first else f"v[{d}:{d+15}]")
    a("    s_waitcnt lgkmcnt(8)")
    for s_ in range(4, 8):
        a(f"    ds_read_b128 v[{BH+4*s_}:{BH+4*s_+3}], v{19 if s_ % 2 == 0 else 16} offset:{(s_ >> 1) * 64}")
    for s_ in range(4): a(mf(DD, AW + 4 * s_, BH + 4 * s_, s_ == 0))
    a("    s_waitcnt lgkmcnt(0)")
    for s_ in range(4, 8): a(mf(DD, AW + 4 * s_, BH + 4 * s_, False))
    a("    s_nop 7\n    s_nop 3")
    for r in range(16): a(f"    v_mul_f32 v{DD+r}, s28, v{DD+r}")
    for j in range(8): a(f"    v_cvt_pk_bf16_f32 v{AW+j}, v{DD+2*j}, v{DD+2*j+1}")
    b = AW
    a("    s_nop 1")
    a(f"    v_permlane32_swap_b32 v{b}, v{b+2}\n    v_permlane32_swap_b32 v{b+1}, v{b+3}\n    v_permlane32_swap_b32 v{b+4}, v{b+6}\n    v_permlane32_swap_b32 v{b+5}, v{b+7}")
    a("    s_nop 1")
    a(f"    buffer_store_dwordx4 v[{b}:{b+3}], v18, s[16:19], 0 offen{flB}")
    a(f"    buffer_store_dwordx4 v[{b+4}:{b+7}], v18, s[16:19], 0 offen offset:32{flB}")
    k1_end()

    a.label("K1_notgemm")
    a(f"    s_cmp_ge_u32 s2, {cfg.g1}")
    a("    s_cbranch_scc1 K1_done")
    a(f"    s_cmp_lt_u32 s2, {W_SORT}")
    a("    s_cbranch_scc1 K1_done")
    stamp(a, cfg, 127, 0, 34)
    a(f"    s_cmp_ge_u32 s2, {W_PREF}")
    a("    s_cbranch_scc1 K1_pref")
    a(f"    s_cmp_ge_u32 s2, {W_PREP}")
    a("    s_cbranch_scc1 K1_prep")
    a("    s_load_dwordx4 s[4:7], s[0:1], 24")
    a("    s_load_dwordx2 s[8:9], s[0:1], 80")
    a("    v_lshlrev_b32 v1, 4, v0")
    a("    v_lshlrev_b32 v2, 2, v0")
    a("    v_mov_b32 v4, -1\n    v_mov_b32 v5, -1\n    v_mov_b32 v6, -1\n    v_mov_b32 v7, -1\n    v_mov_b32 v3, 0")
    for r in range(4): a(f"    ds_write_b128 v1, v[4:7] offset:{8192*r}")
    a("    ds_write_b32 v2, v3 offset:32768")
    a(f"    s_sub_u32 s23, s2, {W_SORT}")
    a("    s_mul_i32 s10, s23, 10000")
    a("    s_waitcnt lgkmcnt(0)")
    a("    s_add_u32 s12, s4, s10\n    s_addc_u32 s13, s5, 0\n    s_mov_b32 s14, 10000\n    s_mov_b32 s15, 0x00020000")
    a("    s_add_u32 s16, s6, s10\n    s_addc_u32 s17, s7, 0\n    s_mov_b32 s18, 10000\n    s_mov_b32 s19, 0x00020000")
    for e in range(5):
        so = "0" if e == 0 else f"s{39+e}"
        if e: a(f"    s_movk_i32 s{39+e}, {2048*e}")
        a(f"    buffer_load_dword v{11+2*e}, v2, s[16:19], {so} offen")
        a(f"    buffer_load_dword v{10+2*e}, v2, s[12:15], {so} offen")
    srd(a, 24, 8, CELL_BYTES)
    a("    s_lshl_b32 s22, s23, 7")
    a("    v_mov_b32 v30, 1")
    a("    s_movk_i32 s33, 452")
    a("    v_cmp_gt_u32 s[30:31], s33, v0")
    a("    s_barrier")
    stamp(a, cfg, 127, 1, 34)
    for e in range(5):
        S, D, B, R, K = 10 + 2 * e, 11 + 2 * e, 32 + e, 40 + e, 48 + e
        a(f"    s_waitcnt vmcnt({8 - 2 * e})")
        a(f"    v_mul_u32_u24 v{B}, 52429, v{D}")
        a(f"    v_lshrrev_b32 v{B}, 21, v{B}")
        a(f"    v_lshlrev_b32 v26, 2, v{B}")
        if e == 4: a("    s_mov_b64 exec, s[30:31]")
        a(f"    ds_add_rtn_u32 v{K}, v26, v30 offset:32768")
        a(f"    v_mul_u32_u24 v24, 40, v{B}")
        a(f"    v_sub_u32 v24, v{D}, v24")
        a(f"    v_lshl_or_b32 v{R}, v24, 14, v{S}")
        a(f"    v_add_u32 v25, {512 * e}, v0")
        a(f"    v_lshl_or_b32 v{R}, v25, 20, v{R}")
    a("    s_mov_b64 exec, -1")
    stamp(a, cfg, 127, 2, 34)
    a("    s_waitcnt lgkmcnt(0)")
    for e in range(5):
        B, R, K = 32 + e, 40 + e, 48 + e
        a(f"    v_cmp_gt_u32 vcc, 32, v{K}")
        a(f"    v_and_b32 v24, 7, v{K}")
        a(f"    v_lshlrev_b32 v24, 4, v24")
        a(f"    v_lshl_add_u32 v24, v{B}, 7, v24")
        a(f"    v_lshrrev_b32 v25, 3, v{K}")
        a(f"    v_lshl_add_u32 v24, v25, 2, v24")
        if e == 4: a("    s_and_b64 vcc, vcc, s[30:31]")
        a("    s_mov_b64 exec, vcc")
        a(f"    ds_write_b32 v24, v{R}")
        a("    s_mov_b64 exec, -1")
    a("    s_waitcnt lgkmcnt(0)")
    a("    s_barrier")
    stamp(a, cfg, 127, 3, 34)
    for r in range(4): a(f"    ds_read_b128 v[{8+4*r}:{11+4*r}], v1 offset:{8192*r}")
    a("    v_lshrrev_b32 v26, 3, v0")
    a("    v_lshlrev_b32 v27, 2, v26")
    for r in range(4): a(f"    ds_read_b32 v{32+r}, v27 offset:{32768 + 256*r}")
    a("    v_and_b32 v28, 7, v0")
    a("    v_lshlrev_b32 v29, 4, v28")
    a("    v_lshl_add_u32 v29, v26, 13, v29")
    a("    v_mov_b32 v31, -2")
    a("    v_cmp_eq_u32 s[30:31], 0, v28")
    a("    s_waitcnt lgkmcnt(0)")
    for r in range(4):
        a(f"    v_cmp_lt_u32 vcc, 32, v{32+r}")
        a("    s_and_b64 vcc, vcc, s[30:31]")
        a(f"    s_mov_b32 s34, {64*8192*r}" if r else "    s_nop 0")
        a(f"    v_add_u32 v{36+r}, {64*8192*r}, v29")
        a(f"    v_cndmask_b32 v{8+4*r}, v{8+4*r}, v31, vcc")
    for r in range(4):
        a(f"    buffer_store_dwordx4 v[{8+4*r}:{11+4*r}], v{36+r}, s[24:27], s22 offen{flC}")
    k1_end()
    a.label("K1_prep")
    a("    s_load_dwordx2 s[4:5], s[0:1], 40")
    a("    s_load_dwordx2 s[6:7], s[0:1], 56")
    a("    s_load_dwordx2 s[8:9], s[0:1], 80")
    a(f"    s_sub_u32 s10, s2, {W_PREP}")
    a("    s_lshr_b32 s10, s10, 3")
    a("    s_lshl_b32 s10, s10, 9")
    a("    s_and_b32 s26, s2, 7")
    a(f"    s_mul_i32 s26, s26, {FRS}")
    a(f"    s_add_u32 s26, s26, {WS_FR}")
    a("    v_lshrrev_b32 v2, 6, v0\n    s_nop 0\n    v_readfirstlane_b32 s27, v2")
    a("    s_lshl_b32 s27, s27, 6\n    s_add_u32 s27, s27, s10")
    a("    v_and_b32 v2, 63, v0")
    a("    s_waitcnt lgkmcnt(0)")
    srd(a, 16, 4, 273 * 256)
    srd(a, 28, 6, 256 * 256)
    srd(a, 20, 8, WS_USED)
    for r in range(4):
        g = 36 + r
        a(f"    s_add_u32 s{g}, s27, {2048*r}")
        a(f"    s_cmp_ge_u32 s{g}, 6400")
        a(f"    s_cbranch_scc1 K1_pr{r}x")
        a(f"    s_cmp_ge_u32 s{g}, 2304")
        a(f"    s_cbranch_scc1 K1_pr{r}h")
        a(f"    s_lshr_b32 s12, s{g}, 8\n    s_lshl_b32 s13, s12, 4\n    s_cmp_eq_u32 s12, 8\n    s_cselect_b32 s13, 257, s13")
        a(f"    s_cselect_b32 s{40+r}, {hex(f32bits(-LOG2E))}, 1.0")
        a(f"    s_cselect_b32 s25, {8*4096}, 0")
        a(f"    s_lshr_b32 s15, s{g}, 6\n    s_and_b32 s15, s15, 3\n    s_lshl_b32 s15, s15, 5")
        a(f"    v_lshrrev_b32 v3, 5, v2\n    v_lshlrev_b32 v3, 3, v3\n    v_add_u32 v3, s13, v3\n    v_and_b32 v4, 31, v2\n    v_add_u32 v4, s15, v4")
        a(f"    v_lshlrev_b32 v3, 8, v3\n    v_lshl_add_u32 v3, v4, 1, v3")
        a(f"    s_add_u32 s{44+r}, s25, s26")
        for j in range(8): a(f"    buffer_load_ushort v{8+8*r+j}, v3, s[16:19], 0 offen offset:{j*256}")
        a(f"    s_branch K1_pr{r}d")
        a.label(f"K1_pr{r}h")
        a(f"    s_sub_u32 s12, s{g}, 2304\n    s_lshr_b32 s13, s12, 6\n    s_and_b32 s13, s13, 7\n    s_lshl_b32 s13, s13, 5")
        a(f"    s_lshr_b32 s15, s12, 9\n    s_lshl_b32 s15, s15, 4\n    s_mov_b32 s{40+r}, 1.0")
        a(f"    v_lshrrev_b32 v3, 4, v2\n    v_lshlrev_b32 v3, 3, v3\n    v_add_u32 v3, s13, v3\n    v_and_b32 v4, 15, v2\n    v_add_u32 v4, s15, v4")
        a(f"    v_lshlrev_b32 v3, 8, v3\n    v_lshl_add_u32 v3, v4, 1, v3")
        a(f"    s_add_u32 s{44+r}, s26, {WEF_BYTES - 2304*16}")
        for j in range(8): a(f"    buffer_load_ushort v{8+8*r+j}, v3, s[28:31], 0 offen offset:{j*256}")
        a(f"    s_branch K1_pr{r}d")
        a.label(f"K1_pr{r}x")
        a(f"    s_mov_b32 s{44+r}, 0x7fffff00")
        a(f"    s_mov_b32 s{40+r}, 1.0")
        a.label(f"K1_pr{r}d")
    a("    s_waitcnt vmcnt(0)")
    for r in range(4):
        b = 8 + 8 * r
        for j in range(8): a(f"    v_lshlrev_b32 v{b+j}, 16, v{b+j}")
        for j in range(8): a(f"    v_mul_f32 v{b+j}, s{40+r}, v{b+j}")
        for j in range(4): a(f"    v_cvt_pk_bf16_f32 v{44+4*r+j}, v{b+2*j}, v{b+2*j+1}")
        a(f"    s_lshl_b32 s12, s{36+r}, 4")
        a(f"    v_lshlrev_b32 v3, 4, v2\n    v_add_u32 v{60+r}, s12, v3")
        a(f"    buffer_store_dwordx4 v[{44+4*r}:{47+4*r}], v{60+r}, s[20:23], s{44+r} offen{fl}")
    k1_end()
    a.label("K1_pref")
    if cfg.tlb:
        a("    s_load_dwordx2 s[4:5], s[0:1], 16")
        a("    s_load_dwordx2 s[8:9], s[0:1], 64")
        a("    s_load_dwordx2 s[12:13], s[0:1], 0")
        a("    s_load_dwordx2 s[16:17], s[0:1], 80")
        a("    s_load_dwordx2 s[20:21], s[0:1], 8")
        a("    v_lshlrev_b32 v2, 16, v0")
        a("    s_waitcnt lgkmcnt(0)")
        for (d, n) in ((4, E * 32), (8, N * 256 + N * 6), (12, N * 256), (16, WS_USED), (20, N * 6)):
            a(f"    s_mov_b32 s{d+2}, {n}\n    s_mov_b32 s{d+3}, 0x00020000")
        for k, d in enumerate((4, 8, 12, 16, 20)):
            a(f"    buffer_load_dword v{10+k}, v2, s[{d}:{d+3}], 0 offen")
    if cfg.pf_h:
        a("    s_load_dwordx2 s[4:5], s[0:1], 0")
        a("    s_and_b32 s10, s2, 7")
        a("    s_waitcnt lgkmcnt(0)")
        srd(a, 16, 4, N * 256)
        for r in range(6):
            a(f"    v_add_u32 v8, {512*r}, v0")
            a(f"    v_mul_u32_u24 v9, 43691, v8\n    v_lshrrev_b32 v9, 22, v9")
            a(f"    v_mul_u32_u24 v10, 96, v9\n    v_sub_u32 v10, v8, v10")
            a(f"    v_lshlrev_b32 v9, 3, v9\n    v_add_u32 v9, s10, v9")
            a(f"    v_mul_u32_u24 v9, {40*256}, v9\n    v_lshl_add_u32 v9, v10, 7, v9")
            a(f"    buffer_load_dword v{12+r}, v9, s[16:19], 0 offen")
    if cfg.pf_code:
        a("    v_lshlrev_b32 v1, 7, v0")
        a("    s_getpc_b64 s[24:25]")
        a.label("K1_pc")
        a("    s_add_u32 s24, s24, k2_kernel-K1_pc")
        a("    s_addc_u32 s25, s25, 0")
        a("    v_cmp_gt_u32 vcc, (K2_end-k2_kernel+127)/128, v0")
        a("    s_and_saveexec_b64 s[28:29], vcc")
        a("    s_cbranch_execz K1_pfend")
        a("    global_load_dword v4, v1, s[24:25]")
    a.label("K1_pfend")
    k1_end()
    a.label("K1_done")
    a("    s_endpgm")

def gen_k2(a, cfg):
    fo = (" " + cfg.st_out) if cfg.st_out else ""
    V = Regs("v", 1, 256)
    W4F = V.alloc("W4F", 4, 4); IDN = V.alloc("IDN", 8, 4); X = V.alloc("X", 12, 4); XC = V.alloc("XC", 4, 4)
    D = [V.alloc("D0", 16, 4), V.alloc("D1", 16, 4)]
    DP = V.alloc("DP", 48, 4); DPC = V.alloc("DPC", 16, 4); HP = V.alloc("HP", 12, 4)
    BF = V.alloc("BF", 8, 4); EFB = [V.alloc(f"EF{k}", 4, 4) for k in range(4)]; AF = V.alloc("AF", 4, 4)
    TR = V.alloc("TR", 8, 4); M = V.alloc("M", 8, 4); T = V.alloc("T", 16, 4)
    WHH = V.alloc("WHH", 16, 4); WX = V.alloc("WX", 8, 4); ZR = V.alloc("ZR", 4, 4); RES = V.alloc("RES", 6, 2)
    iH0 = V.alloc("iH0", 2, 2); iH1 = V.alloc("iH1", 2, 2); iE = V.alloc("iE", 2, 2)
    cBF = V.alloc("cBF"); cHB = V.alloc("cHB")
    aA2 = V.alloc("aA2"); aA3 = V.alloc("aA3"); aRH = V.alloc("aRH"); aRE = V.alloc("aRE")
    vL = V.alloc("vL")
    POSO = aRH; OUTA = aA2
    A0 = V.alloc("A0", 1, 2); A1 = V.alloc("A1"); A2_ = V.alloc("A2"); A3_ = V.alloc("A3"); A4 = V.alloc("A4"); A5 = V.alloc("A5")
    vST = V.alloc("vST") if cfg.dbg else None
    nv = V.hi
    if cfg.dbg and 0: print(V.names)
    sStg = 3
    sB, sEA, sPOS, sWS, sOUT, sMI = 8, 12, 16, 20, 24, 28
    sW, sSet, sC, sB40 = 32, 33, 34, 35
    sCnt = 36
    sTs, sTf, sI = 42, 43, 45
    sBx, sBx2, sKx = 46, 47, 48
    sBd, sBd2, sKd = 49, 50, 51
    sRingR, sRingW, sStgEnd = 52, 53, 54
    sRem, sRem1, sRem2 = 55, 56, 57
    sMode, sWin, sFirst = 58, 59, 60
    t0, t1, t2, t3, t4, t5 = 61, 62, 63, 64, 65, 66
    sPK, sRet, sWoff, sDPI = 67, 69, 71, 74
    sEn, sTL, sFr = 75, 70, 68
    sH = 76
    sB2 = 88
    sD, sEv = 92, 93
    sX = 4
    l = vL
    st = lambda i: stamp(a, cfg, vST, i)
    def mfma(dst, A, B, C):
        c_ = "0" if C is None else f"v[{C}:{C+15}]"
        return f"    v_mfma_f32_32x32x16_bf16 v[{dst}:{dst+15}], v[{A}:{A+3}], v[{B}:{B+3}], {c_}"

    a(".globl k2_kernel\n.p2align 8\n.type k2_kernel,@function\nk2_kernel:")
    a(f"    s_cmp_ge_u32 s2, {NB}")
    a("    s_cbranch_scc1 K2_done")
    st(0)
    a(f"    s_load_dwordx2 s[{sWS}:{sWS+1}], s[0:1], 80")
    a(f"    s_load_dwordx2 s[{sH}:{sH+1}], s[0:1], 0")
    a(f"    s_load_dwordx2 s[{sPOS}:{sPOS+1}], s[0:1], 8")
    a(f"    s_load_dwordx2 s[{sMI}:{sMI+1}], s[0:1], 40")
    a(f"    s_load_dwordx2 s[{sEA}:{sEA+1}], s[0:1], 16")
    a(f"    s_load_dwordx2 s[{sOUT}:{sOUT+1}], s[0:1], 64")
    a(f"    s_load_dwordx2 s[72:73], s[0:1], 48")
    a(f"    v_and_b32 v{l}, 63, v0")
    a(f"    v_lshrrev_b32 v{A0}, 6, v0")
    a(f"    v_lshlrev_b32 v{A1}, 4, v0")
    a(f"    v_readfirstlane_b32 s{sW}, v{A0}")
    a(f"    s_mul_i32 s{sB40}, s2, 40")
    a(f"    s_lshl_b32 s{t0}, s2, 13")
    a(f"    s_mov_b32 s{sWS+2}, {WS_USED}\n    s_mov_b32 s{sWS+3}, 0x00020000")
    a(f"    s_mov_b32 s{sH+2}, {N}\n    s_mov_b32 s{sH+3}, 0x00020000")
    a(f"    s_mov_b32 s{sPOS+2}, {N*6+4}\n    s_mov_b32 s{sPOS+3}, 0x00020000")
    a(f"    s_lshr_b32 s{sSet}, s{sW}, 2")
    a(f"    s_and_b32 s{sC}, s{sW}, 3")
    a(f"    v_lshrrev_b32 v{A0}, 4, v{l}")
    a(f"    v_and_b32 v{A2_}, 15, v{l}")
    a(f"    v_xor_b32 v{A2_}, v{A2_}, v{A0}")
    HP0, HP1 = D[0], D[0] + 2
    a(f"    v_lshlrev_b32 v{HP0+1}, 4, v{A2_}")
    a(f"    v_mov_b32 v{HP1+1}, v{HP0+1}")
    a(f"    s_min_u32 s{t3}, s{sW}, 6")
    a(f"    s_lshl_b32 s{t1}, s{t3}, 3")
    a(f"    s_add_u32 s{t1}, s{t1}, s{sB40}")
    a(f"    v_add_u32 v{HP0}, s{t1}, v{A0}")
    a(f"    v_add_u32 v{HP1}, 4, v{HP0}")
    a(f"    s_mul_i32 s{t2}, s{t3}, {2*QSTR}")
    a(f"    s_add_u32 s{t2}, s{t2}, {HOWN}")
    VL16, VOWN, VWD = D[0] + 4, D[0] + 5, D[0] + 6
    a(f"    v_lshlrev_b32 v{VL16}, 4, v{l}")
    a(f"    v_mul_u32_u24 v{VOWN}, 6, v0")
    a(f"    v_and_b32 v{VWD}, 31, v{l}")
    a(f"    s_lshl_b32 s{t4}, s{sC}, 5")
    a(f"    v_add_u32 v{VWD}, s{t4}, v{VWD}")
    a(f"    v_lshlrev_b32 v{VWD}, 1, v{VWD}")
    a(f"    s_mul_i32 s{t4}, s2, 240")
    a(f"    s_lshl_b32 s{t5}, s{sW}, 12")
    a(f"    s_and_b32 s{sFr}, s2, 7")
    a(f"    s_mul_i32 s{sFr}, s{sFr}, {FRS}")
    a(f"    s_add_u32 s{sFr}, s{sFr}, {WS_FR}")
    a(f"    s_waitcnt lgkmcnt(0)")
    st(1)
    RR = TR; SL = TR + 4; GG = T; PSRC = DPC; OWNP = T + 4; PDST = DPC + 8
    W1F = DP
    WHL = D[1]
    a(f"    buffer_load_dwordx4 v[{RR}:{RR+3}], v{A1}, s[{sWS}:{sWS+3}], s{t0} offen      ; cells")
    Z = ZR
    WD = XC + 3
    def blockV():
        a(f"    s_mov_b32 m0, s{t2}")
        a(f"    s_add_u32 s{t2}, s{t2}, {QSTR}")
        a(f"    buffer_load_dwordx4 v[{HP0}:{HP0+1}], s[{sH}:{sH+3}], 0 idxen offen lds")
        a(f"    s_mov_b32 m0, s{t2}")
        a(f"    s_add_u32 s{sWoff}, s{t5}, s{sFr}")
        a(f"    buffer_load_dwordx4 v[{HP1}:{HP1+1}], s[{sH}:{sH+3}], 0 idxen offen lds")
        for j in range(4):
            a(f"    s_add_u32 m0, s{t5}, {STG + j*1024}")
            if j: a(f"    s_add_u32 s{sWoff}, s{sWoff}, 1024")
            else: a(f"    s_nop 0")
            a(f"    buffer_load_dwordx4 v{VL16}, s[{sWS}:{sWS+3}], s{sWoff} offen lds")
        a(f"    s_lshl_b32 s{sWoff}, s{sC}, 10")
        a(f"    s_add_u32 m0, s{sWoff}, {STG + 32768}")
        a(f"    s_add_u32 s{sWoff}, s{sWoff}, s{sFr}")
        a(f"    s_add_u32 s{sWoff}, s{sWoff}, {16*4096}")
        a(f"    buffer_load_dwordx4 v{VL16}, s[{sWS}:{sWS+3}], s{sWoff} offen lds")
        a(f"    buffer_load_dwordx2 v[{OWNP}:{OWNP+1}], v{VOWN}, s[{sPOS}:{sPOS+3}], s{t4} offen")
        a(f"    s_mov_b32 s{t2}, {256*256}")
        a(f"    buffer_load_ushort v{WD}, v{VWD}, s[{sMI}:{sMI+3}], s{t2} offen")
        a(f"    s_lshl_b32 s{sWoff}, s{sW}, 13\n    s_add_u32 s{sWoff}, s{sWoff}, s{sFr}\n    s_add_u32 s{sWoff}, s{sWoff}, {WEF_BYTES}")
        for s_ in range(4):
            a(f"    buffer_load_dwordx4 v[{WHL+4*s_}:{WHL+4*s_+3}], v{VL16}, s[{sWS}:{sWS+3}], s{sWoff} offen offset:{1024*s_}")
    zf = []
    for r in range(NZ):
        w_ = f"ds_write_b128 v{A1}, v[{Z}:{Z+3}] offset:{(r % 8) * 8192}"
        pre = [f"v_add_u32 v{A1}, 65536, v{A1}"] if r == 8 else []
        if r == NZ - 1:
            zf.append(pre + [f"v_cmp_gt_u32 vcc, {ZLAST}, v0", f"s_and_saveexec_b64 s[4:5], vcc", w_, f"s_mov_b64 exec, s[4:5]"])
        else: zf.append(pre + [w_])
    c = []
    e_, h_ = A0, A2_
    c += [f"v_and_b32 v{e_}, 31, v{l}", f"v_lshrrev_b32 v{h_}, 5, v{l}"]
    c += [f"v_mul_u32_u24 v{A5}, {A2H - A2L}, v{h_}", f"v_lshl_add_u32 v{aA2}, v{e_}, 4, v{A5}", f"v_add_u32 v{aA2}, {A2L}, v{aA2}"]
    c += [f"v_lshlrev_b32 v{aA3}, 8, v{h_}", f"v_bfe_u32 v{A5}, v{l}, 4, 1", f"v_lshl_add_u32 v{aA3}, v{A5}, 5, v{aA3}", f"v_bfe_u32 v{A5}, v{l}, 2, 2",
          f"v_lshl_add_u32 v{aA3}, v{A5}, 6, v{aA3}", f"v_and_b32 v{A5}, 3, v{l}", f"v_lshl_add_u32 v{aA3}, v{A5}, 3, v{aA3}"]
    c += [f"v_lshl_add_u32 v{cBF}, v{h_}, 8, v{aA3}", f"v_add_u32 v{cBF}, s{sStg}, v{cBF}", f"v_add_u32 v{aA3}, {A3T}, v{aA3}"]
    c += [f"v_lshrrev_b32 v{A5}, 2, v{l}", f"v_lshlrev_b32 v{A5}, 3, v{A5}", f"v_add_u32 v{aRH}, {REC}, v{A5}",
          f"v_lshlrev_b32 v{A5}, 3, v{e_}", f"v_add_u32 v{aRE}, {REC}, v{A5}"]
    c += [f"v_and_b32 v{A5}, 3, v{l}", f"v_lshlrev_b32 v{A5}, 4, v{A5}", f"s_lshl_b32 s{t3}, s{sC}, 6", f"v_add_u32 v{iH0+1}, s{t3}, v{A5}", f"v_mov_b32 v{iH1+1}, v{iH0+1}",
          f"v_lshlrev_b32 v{iE+1}, 4, v{h_}"]
    c += [f"v_bfe_u32 v{A5}, v{l}, 2, 2", f"v_mul_u32_u24 v{cHB}, {QSTR}, v{A5}", f"v_and_b32 v{A5}, 3, v{l}", f"v_lshl_add_u32 v{cHB}, v{A5}, 8, v{cHB}",
          f"v_lshrrev_b32 v{A4}, 4, v{l}", f"v_xor_b32 v{A5}, v{A5}, v{A4}", f"v_lshl_add_u32 v{cHB}, v{A5}, 4, v{cHB}", f"v_add_u32 v{cHB}, {HOWN}, v{cHB}"]
    c += [f"v_and_b32 v{A5}, 1, v{e_}", f"v_lshlrev_b32 v{A5}, 4, v{A5}", f"v_mov_b32 v{A4}, 0x3f80", f"v_lshlrev_b32 v{A4}, v{A5}, v{A4}"]
    c += [f"v_bfe_u32 v{A5}, v{e_}, 1, 2", f"v_lshrrev_b32 v{IDN+7}, 4, v{e_}", f"v_lshl_add_u32 v{A5}, v{IDN+7}, 2, v{A5}", f"v_bfe_u32 v{IDN+7}, v{e_}, 3, 1",
          f"v_cmp_eq_u32 vcc, v{IDN+7}, v{h_}", f"s_nop 1", f"v_cndmask_b32 v{A5}, 15, v{A5}, vcc"]
    for q in range(8): c += [f"v_cmp_eq_u32 s[{36+2*q}:{37+2*q}], {q}, v{A5}"]
    for q in range(8): c += [f"v_cndmask_b32 v{IDN+q}, 0, v{A4}, s[{36+2*q}:{37+2*q}]"]
    def blockL():
        a(f"    v_lshlrev_b32 v{A1}, 4, v0")
        a(f"    v_add_u32 v{A1}, {ZSTART}, v{A1}")
        ci = 0
        per = (len(c) + len(zf) - 1) // len(zf)
        for k in range(len(zf)):
            for ins in zf[k]: a("    " + ins)
            for ins in c[ci:ci + per]: a("    " + ins)
            ci += per
        for ins in c[ci:]: a("    " + ins)
    cs_ = [f"s_add_u32 s{sB}, s{sWS}, {WS_B}", f"s_addc_u32 s{sB+1}, s{sWS+1}, 0", f"s_or_b32 s{sB+1}, s{sB+1}, 0x1000000", f"s_mov_b32 s{sB+2}, {N}", f"s_mov_b32 s{sB+3}, 0x00020000",
          f"s_or_b32 s{sEA+1}, s{sEA+1}, 0x200000", f"s_mov_b32 s{sEA+2}, {E}", f"s_mov_b32 s{sEA+3}, 0x00020000",
          f"s_mov_b32 s{sOUT+2}, {N*256+N*6}", f"s_mov_b32 s{sOUT+3}, 0x00020000",
          f"s_mov_b32 s{sMode}, 0", f"s_mov_b32 s{sFirst}, 1", f"s_mov_b32 s{sDPI}, 0", f"s_mov_b32 s{sEn}, {E}", f"s_mov_b32 s{sTL}, 0"]
    for ins in cs_: a("    " + ins)
    a(f"    s_add_u32 s{sB2}, s{sWS}, {WS_B - 1024}\n    s_addc_u32 s{sB2+1}, s{sWS+1}, 0\n    s_or_b32 s{sB2+1}, s{sB2+1}, 0x1000000")
    a(f"    s_mov_b32 s{sB2+2}, {N}\n    s_mov_b32 s{sB2+3}, 0x00020000")
    a(f"    s_or_b32 s{sH+1}, s{sH+1}, 0x1000000")
    a(f"    s_mov_b32 s{sMI+2}, {273*256}\n    s_mov_b32 s{sMI+3}, 0x00020000")
    a(f"    s_lshl_b32 s{sStg}, s{sW}, 11")
    for r in range(4): a(f"    v_mov_b32 v{ZR+r}, 0")
    a(f"    s_cmp_eq_u32 s{sSet}, 0")
    a(f"    s_cbranch_scc0 K2_L")
    blockV()
    a.label("K2_L")
    blockL()
    a(f"    s_cmp_eq_u32 s{sSet}, 0")
    a(f"    s_cbranch_scc1 K2_VLd")
    blockV()
    a.label("K2_VLd")
    n0 = 13
    if cfg.pf_b:
        a(f"    s_lshr_b32 s{t2}, s2, 3")
        a(f"    s_mul_i32 s{t2}, s{t2}, {646*128}")
        a(f"    s_add_u32 s{t2}, s{t2}, {WS_B}")
        a(f"    v_lshlrev_b32 v{A4}, 7, v0")
        a(f"    buffer_load_dword v{T+8}, v{A4}, s[{sWS}:{sWS+3}], s{t2} offen")
        a(f"    v_cmp_gt_u32 vcc, {646-512}, v0")
        a(f"    v_add_u32 v{A4}, 65536, v{A4}")
        a(f"    v_bfrev_b32 v{A5}, -2")
        a(f"    v_cndmask_b32 v{A4}, v{A5}, v{A4}, vcc")
        a(f"    buffer_load_dword v{T+9}, v{A4}, s[{sWS}:{sWS+3}], s{t2} offen")
        n0 += 2
    npf = 2 if cfg.pf_b else 0
    a(f"    s_waitcnt lgkmcnt(0)")
    a(f"    s_barrier")
    st(2)
    a(f"    s_branch K2_fast")
    a.label("K2_zero")
    a(f"    v_lshlrev_b32 v{A1}, 4, v0")
    a(f"    v_add_u32 v{A1}, {ZSTART}, v{A1}")
    for grp in zf:
        for ins in grp: a("    " + ins)
    a(f"    s_waitcnt lgkmcnt(0)")
    a(f"    s_barrier")
    vCB = A5
    a(f"    s_mul_i32 s{t0}, s{sWin}, {WIN}")
    a(f"    s_add_u32 s{sWin}, s{sWin}, 1")
    a(f"    v_add_u32 v{vCB}, s{t0}, v0")
    a(f"    v_lshlrev_b32 v{A0}, 2, v{vCB}")
    a(f"    s_load_dwordx2 s[{sMI}:{sMI+1}], s[0:1], 24")
    a(f"    s_mov_b32 s{sMI+2}, {E*4}")
    a(f"    s_waitcnt lgkmcnt(0)")
    a(f"    buffer_load_dword v{RR+1}, v{A0}, s[{sMI}:{sMI+3}], 0 offen")
    a(f"    s_waitcnt vmcnt(0)")
    a(f"    s_load_dwordx2 s[{sMI}:{sMI+1}], s[0:1], 32")
    a(f"    s_waitcnt lgkmcnt(0)")
    a(f"    buffer_load_dword v{RR+2}, v{A0}, s[{sMI}:{sMI+3}], 0 offen")
    a(f"    s_waitcnt vmcnt(0)")
    a(f"    v_subrev_u32 v{RR+2}, s{sB40}, v{RR+2}")
    a(f"    v_lshl_or_b32 v{RR}, v{RR+2}, 14, v{RR+1}")
    a(f"    v_cmp_gt_u32 vcc, 40, v{RR+2}")
    a(f"    s_movk_i32 s{t0}, {WIN}")
    a(f"    v_cmp_gt_u32 s[{sX}:{sX+1}], s{t0}, v0")
    a(f"    s_and_b64 vcc, vcc, s[{sX}:{sX+1}]")
    a(f"    s_mov_b32 s{t0}, {E}")
    a(f"    v_cmp_gt_u32 s[{sX}:{sX+1}], s{t0}, v{vCB}")
    a(f"    s_and_b64 vcc, vcc, s[{sX}:{sX+1}]")
    a(f"    s_nop 1")
    a(f"    v_cndmask_b32 v{RR}, -1, v{RR}, vcc")
    a(f"    v_mov_b32 v{RR+1}, -1\n    v_mov_b32 v{RR+2}, -1\n    v_mov_b32 v{RR+3}, -1")
    a(f"    s_branch K2_rank")
    a.label("K2_fast")
    a(f"    v_lshrrev_b32 v{vCB}, 3, v0")
    a(f"    v_mul_u32_u24 v{vCB}, {CH}, v{vCB}")
    a(f"    s_waitcnt vmcnt(0)")
    st(3)
    a(f"    v_cmp_gt_u32 vcc, 48, v0")
    a(f"    s_and_saveexec_b64 s[{sX}:{sX+1}], vcc")
    a(f"    v_lshlrev_b32 v{A1}, 3, v0")
    a(f"    v_add_u32 v{A1}, {POSD}, v{A1}")
    a(f"    ds_write_b64 v{A1}, v[{OWNP}:{OWNP+1}]")
    a(f"    s_mov_b64 exec, s[{sX}:{sX+1}]")
    a(f"    v_cmp_eq_u32 vcc, -2, v{RR}")
    a(f"    s_cbranch_vccnz K2_mark")
    a.label("K2_rank")
    a(f"    v_mov_b32 v{A0}, 1")
    for j in range(4):
        r = RR + j
        a(f"    v_cmp_gt_u32 vcc, -2, v{r}")
        a(f"    s_and_saveexec_b64 s[{sX}:{sX+1}], vcc")
        a(f"    s_cbranch_execz K2_rk{j}")
        a(f"    v_bfe_u32 v{GG+j}, v{r}, 17, 3")
        a(f"    v_and_b32 v{A1}, 0x3fff, v{r}")
        a(f"    v_lshlrev_b32 v{A2_}, 2, v{GG+j}")
        a(f"    v_mul_u32_u24 v{A1}, 6, v{A1}")
        a(f"    v_add_u32 v{A2_}, {CNT}, v{A2_}")
        a(f"    ds_add_rtn_u32 v{SL+j}, v{A2_}, v{A0}")
        a(f"    buffer_load_dwordx2 v[{PSRC+2*j}:{PSRC+2*j+1}], v{A1}, s[{sPOS}:{sPOS+3}], 0 offen")
        a.label(f"K2_rk{j}")
        a(f"    s_mov_b64 exec, s[{sX}:{sX+1}]")
    a(f"    s_waitcnt lgkmcnt(0)")
    a(f"    s_barrier")
    st(4)
    a(f"    v_mov_b32 v{A1}, {CNT}")
    a(f"    ds_read_b128 v[{M}:{M+3}], v{A1}")
    a(f"    ds_read_b64 v[{M+4}:{M+5}], v{A1} offset:16")
    for j in range(4):
        a(f"    v_bfe_u32 v{A2_}, v{RR+j}, 14, 6")
        a(f"    v_lshlrev_b32 v{A2_}, 3, v{A2_}")
        a(f"    v_add_u32 v{A2_}, {POSD}, v{A2_}")
        a(f"    ds_read_b64 v[{PDST+2*j}:{PDST+2*j+1}], v{A2_}")
    a(f"    s_waitcnt lgkmcnt(4)")
    for g in range(6): a(f"    v_readfirstlane_b32 s{sCnt+g}, v{M+g}")
    a(f"    s_cmp_eq_u32 s{sFirst}, 0")
    a(f"    s_cbranch_scc1 K2_nowf")
    a(f"    v_lshlrev_b32 v{A2_}, 4, v{l}")
    a(f"    s_lshl_b32 s{t5}, s{sC}, 10")
    a(f"    v_add_u32 v{A2_}, s{t5}, v{A2_}")
    for q in range(8):
        a(f"    ds_read_b128 v[{W1F+4*q}:{W1F+4*q+3}], v{A2_} offset:{STG + q*4096}")
    a(f"    ds_read_b128 v[{W4F}:{W4F+3}], v{A2_} offset:{STG + 32768}")
    a.label("K2_nowf")
    nt = [t0, t1, t2, t3, t4]
    for g in range(5):
        a(f"    s_add_u32 s{nt[g]}, s{sCnt+g}, 31")
        a(f"    s_lshr_b32 s{nt[g]}, s{nt[g]}, 5")
    a(f"    s_add_u32 s4, s{t0}, s{t1}")
    a(f"    s_add_u32 s5, s4, s{t2}")
    a(f"    s_add_u32 s6, s5, s{t3}")
    a(f"    s_add_u32 s7, s6, s{t4}")
    a(f"    s_cmp_gt_u32 s7, {MAXT}")
    a(f"    s_cselect_b32 s{t5}, 1, 0")
    a(f"    s_or_b32 s{t5}, s{t5}, s{sCnt+5}")
    a(f"    s_cmp_lg_u32 s{t5}, 0")
    a(f"    s_cbranch_scc1 K2_toslow")
    a(f"    s_lshl_b32 s{sPK}, s{t0}, 5")
    a(f"    s_lshl_b32 s{t5}, s4, 10\n    s_or_b32 s{sPK}, s{sPK}, s{t5}")
    a(f"    s_lshl_b32 s{t5}, s5, 15\n    s_or_b32 s{sPK}, s{sPK}, s{t5}")
    a(f"    s_lshl_b32 s{t5}, s6, 20\n    s_or_b32 s{sPK}, s{sPK}, s{t5}")
    for j in range(4):
        r = RR + j
        a(f"    v_cmp_gt_u32 vcc, -2, v{r}")
        a(f"    s_and_saveexec_b64 s[84:85], vcc")
        a(f"    s_cbranch_execz K2_rw{j}")
        a(f"    v_mul_u32_u24 v{A0}, 5, v{GG+j}")
        a(f"    v_bfe_u32 v{A0}, s{sPK}, v{A0}, 5")
        a(f"    v_lshl_add_u32 v{SL+j}, v{A0}, 5, v{SL+j}")
        a(f"    v_lshlrev_b32 v{A0}, 3, v{SL+j}")
        a(f"    v_and_b32 v{A2_}, 0x3fff, v{r}")
        a(f"    v_lshrrev_b32 v{A3_}, 20, v{r}")
        a(f"    v_add_u32 v{A3_}, v{A3_}, v{vCB}")
        a(f"    v_add_u32 v{A0}, {REC}, v{A0}")
        a(f"    ds_write_b64 v{A0}, v[{A2_}:{A3_}]")
        a.label(f"K2_rw{j}")
        a(f"    s_mov_b64 exec, s[84:85]")
    a(f"    s_add_u32 s{t5}, s7, 1")
    a(f"    s_lshr_b32 s{t5}, s{t5}, 1")
    a(f"    s_max_u32 s{t5}, s{t5}, s4")
    a(f"    s_min_u32 s{t5}, s{t5}, s5")
    a(f"    s_sub_u32 s{t3}, s7, s{t5}")
    a(f"    s_cmp_eq_u32 s{sSet}, 0")
    a(f"    s_cselect_b32 s{sTf}, 0, s{t5}")
    a(f"    s_cselect_b32 s{sTs}, s{t5}, s{t3}")
    a(f"    s_cselect_b32 s{sBx}, s{t0}, s5")
    a(f"    s_cselect_b32 s{sBx2}, s4, s6")
    a(f"    s_sub_u32 s{sBx}, s{sBx}, s{sTf}")
    a(f"    s_sub_u32 s{sBx2}, s{sBx2}, s{sTf}")
    a(f"    s_mov_b32 s{sBd}, s{sBx}\n    s_mov_b32 s{sBd2}, s{sBx2}")
    a(f"    s_mov_b32 s{sKx}, 0\n    s_mov_b32 s{sKd}, 0")
    a(f"    s_sub_u32 s{sD}, s{sTs}, 1")
    a(f"    s_sub_u32 s{sEv}, s{sD}, s{sBx}")
    a(f"    s_cmp_eq_u32 s{sMode}, 0")
    a(f"    s_cbranch_scc0 K2_readdr")
    a.label("K2_addrok")
    a(f"    s_lshl_b32 s{t0}, s{sTf}, 9")
    a(f"    v_add_u32 v{aA2}, s{t0}, v{aA2}")
    a(f"    s_lshl_b32 s{t0}, s{sTf}, 11")
    a(f"    v_add_u32 v{aA3}, s{t0}, v{aA3}")
    a(f"    s_lshl_b32 s{t0}, s{sTf}, 8")
    a(f"    v_add_u32 v{aRH}, s{t0}, v{aRH}")
    a(f"    v_add_u32 v{aRE}, s{t0}, v{aRE}")
    a(f"    s_waitcnt lgkmcnt(0)")
    a(f"    s_barrier")
    st(5)
    PI = D[0]; PJ = WHH; PK2 = WHH + 6
    for (P_, tix) in ((PI, 0), (PJ, 1), (PK2, 2)):
        a(f"    ds_read_u16 v{P_+0}, v{aRH} offset:{256*tix}")
        a(f"    ds_read_u16 v{P_+2}, v{aRH} offset:{256*tix+128}")
        a(f"    ds_read_b32 v{P_+4}, v{aRE} offset:{256*tix+4}")
    a(f"    ds_read_u16 v{iH0}, v{aRH} offset:768")
    a(f"    ds_read_u16 v{iH1}, v{aRH} offset:{768+128}")
    a(f"    ds_read_b32 v{iE}, v{aRE} offset:{768+4}")
    for P_ in (PI, PJ, PK2):
        a(f"    v_mov_b32 v{P_+1}, v{iH0+1}\n    v_mov_b32 v{P_+3}, v{iH0+1}\n    v_mov_b32 v{P_+5}, v{iE+1}")
    def b_issue(p0, p1, slot, filler=None):
        a(f"    s_add_u32 m0, s{sStg}, {slot*SLOT}")
        if filler: filler()
        else: a(f"    s_nop 0")
        a(f"    buffer_load_dwordx4 v[{p0}:{p0+1}], s[{sB}:{sB+3}], 0 idxen offen lds")
        a(f"    buffer_load_dwordx4 v[{p1}:{p1+1}], s[{sB2}:{sB2+3}], 0 idxen offen offset:1024 lds")
    def e_issue(pair, dst):
        a(f"    buffer_load_dwordx4 v[{dst}:{dst+3}], v[{pair}:{pair+1}], s[{sEA}:{sEA+3}], 0 idxen offen")
    a(f"    s_waitcnt lgkmcnt(9)")
    b_issue(PI + 0, PI + 2, 0)
    e_issue(PI + 4, EFB[0])
    if cfg.pre3 >= 1:
        a(f"    s_waitcnt lgkmcnt(0)")
        b_issue(PJ + 0, PJ + 2, 1)
        e_issue(PJ + 4, EFB[1])
    if cfg.pre3 >= 2:
        b_issue(PK2 + 0, PK2 + 2, 2)
        e_issue(PK2 + 4, EFB[2])
    st(6)
    a(f"    s_cmp_eq_u32 s{sFirst}, 0")
    a(f"    s_cbranch_scc1 K2_noX")
    a(f"    s_mov_b32 s{sFirst}, 0")
    a(f"    v_and_b32 v{A0}, 31, v{l}")
    a(f"    s_lshl_b32 s{t0}, s{sSet}, 4")
    a(f"    v_add_u32 v{A0}, s{t0}, v{A0}")
    a(f"    v_lshrrev_b32 v{A1}, 2, v{A0}")
    a(f"    v_mul_u32_u24 v{A1}, {QSTR}, v{A1}")
    a(f"    v_and_b32 v{A4}, 3, v{A0}")
    a(f"    v_lshl_add_u32 v{A1}, v{A4}, 8, v{A1}")
    a(f"    v_add_u32 v{A1}, {HOWN}, v{A1}")
    a(f"    v_lshrrev_b32 v{A5}, 5, v{l}")
    a(f"    v_xor_b32 v{A5}, v{A5}, v{A4}")
    a(f"    v_lshl_add_u32 v{A0}, v{A5}, 4, v{A1}")
    a(f"    v_xor_b32 v{A5}, 2, v{A5}")
    a(f"    v_lshl_add_u32 v{A1}, v{A5}, 4, v{A1}")
    XA = D[0]
    FR = T
    fr = [BF, BF + 4, AF, M]
    a(f"    s_waitcnt lgkmcnt(0)")
    for half in range(2):
        for u in range(4):
            s_ = half * 4 + u
            ad = A0 if s_ % 2 == 0 else A1
            a(f"    ds_read_b128 v[{fr[u]}:{fr[u]+3}], v{ad} offset:{(s_ >> 1) * 64}")
        for u in range(4):
            s_ = half * 4 + u
            a(f"    s_waitcnt lgkmcnt({3-u})")
            a(mfma(XA, fr[u], W1F + 4 * s_, None if s_ == 0 else XA))
    for ntile in range(3):
        for s_ in range(4):
            dst = DP + (ntile * 4 + s_) * 4
            a(f"    ds_read_b128 v[{dst}:{dst+3}], v{cHB} offset:{ntile * 4 * QSTR + 64 * s_}")
    a(f"    v_lshrrev_b32 v{A4}, 4, v{l}")
    a(f"    v_lshrrev_b32 v{A5}, 1, v{A4}")
    a(f"    s_lshl_b32 s{t0}, s{sW}, 1")
    a(f"    v_add_u32 v{A5}, s{t0}, v{A5}")
    a(f"    v_and_b32 v{A0}, 3, v{l}")
    a(f"    v_xor_b32 v{A5}, v{A5}, v{A0}")
    a(f"    v_lshlrev_b32 v{A5}, 4, v{A5}")
    a(f"    v_and_b32 v{A4}, 1, v{A4}")
    a(f"    v_lshl_add_u32 v{A5}, v{A4}, 3, v{A5}")
    a(f"    v_lshl_add_u32 v{A5}, v{A0}, 8, v{A5}")
    a(f"    v_bfe_u32 v{A4}, v{l}, 2, 2")
    a(f"    v_mul_u32_u24 v{A4}, {QSTR}, v{A4}")
    a(f"    v_add3_u32 v{A5}, v{A5}, v{A4}, v{A1}" if False else f"    v_add_u32 v{A5}, v{A5}, v{A4}")
    a(f"    v_add_u32 v{A5}, {HOWN}, v{A5}")
    for ntile in range(3):
        a(f"    ds_read_b64 v[{RES+2*ntile}:{RES+2*ntile+1}], v{A5} offset:{ntile * 4 * QSTR}")
    cs = -LOG2E
    a(f"    s_mov_b32 s{t0}, {hex(f32bits(cs))}")
    a(f"    v_lshlrev_b32 v{WD}, 16, v{WD}")
    a(f"    v_mul_f32 v{WD}, s{t0}, v{WD}")
    a(f"    v_cvt_pk_bf16_f32 v{A4}, v{WD}, v{WD}")
    a(f"    v_and_b32 v{A5}, 0xffff0000, v{A4}")
    a(f"    v_sub_f32 v{A0}, v{WD}, v{A5}")
    a(f"    v_cvt_pk_bf16_f32 v{A4}, v{A5}, v{A0}")
    a(f"    v_cmp_gt_u32 vcc, 32, v{l}")
    a(f"    s_nop 1")
    a(f"    v_cndmask_b32 v{A4}, 0, v{A4}, vcc")
    for ntile in range(3):
        for s_ in range(4):
            src = DP + (ntile * 4 + s_) * 4
            a(f"    s_waitcnt lgkmcnt({11 - (ntile*4+s_) + 3})" )
            c_ = "0" if s_ == 0 else f"v[{HP+4*ntile}:{HP+4*ntile+3}]"
            a(f"    v_mfma_f32_16x16x32_bf16 v[{HP+4*ntile}:{HP+4*ntile+3}], v[{WHL+4*s_}:{WHL+4*s_+3}], v[{src}:{src+3}], {c_}")
    for j in range(3):
        b_ = XA + 4 * j
        a(f"    v_mul_f32 v{b_}, s{t0}, v{b_}\n    v_mul_f32 v{b_+1}, s{t0}, v{b_+1}\n    v_mul_f32 v{b_+2}, s{t0}, v{b_+2}\n    v_mul_f32 v{b_+3}, s{t0}, v{b_+3}")
        x = X + 4 * j
        a(f"    v_cvt_pk_bf16_f32 v{x}, v{b_}, v{b_+1}")
        a(f"    v_cvt_pk_bf16_f32 v{x+1}, v{b_+2}, v{b_+3}")
        a(f"    v_mov_b32 v{x+2}, v{A4}")
        a(f"    v_mov_b32 v{x+3}, 0")
        a(f"    s_nop 1")
        a(f"    v_permlane32_swap_b32 v{x}, v{x+2}")
        a(f"    v_permlane32_swap_b32 v{x+1}, v{x+3}")
    a.label("K2_noX")
    if cfg.pre3 < 1:
        a(f"    s_waitcnt lgkmcnt(0)")
        b_issue(PJ + 0, PJ + 2, 1)
        e_issue(PJ + 4, EFB[1])
    for r in range(4): a(f"    v_mov_b32 v{XC+r}, v{X+r}")
    st(7)
    a(f"    s_waitcnt vmcnt({9 if cfg.pre3 >= 2 else 6}) lgkmcnt(0)")
    for j in range(4):
        r = RR + j
        ps, pd = PSRC + 2 * j, PDST + 2 * j
        a(f"    v_cmp_gt_u32 vcc, -2, v{r}")
        a(f"    s_and_saveexec_b64 s[{sX}:{sX+1}], vcc")
        a(f"    s_cbranch_execz K2_bd{j}")
        h0, h1, h2, h3 = BF, BF + 1, BF + 2, BF + 3
        a(f"    v_lshlrev_b32 v{h0}, 16, v{pd}\n    v_lshlrev_b32 v{h1}, 16, v{ps}\n    v_sub_f32 v{h0}, v{h0}, v{h1}")
        a(f"    v_and_b32 v{h1}, 0xffff0000, v{pd}\n    v_and_b32 v{h2}, 0xffff0000, v{ps}\n    v_sub_f32 v{h1}, v{h1}, v{h2}")
        a(f"    v_lshlrev_b32 v{h2}, 16, v{pd+1}\n    v_lshlrev_b32 v{h3}, 16, v{ps+1}\n    v_sub_f32 v{h2}, v{h2}, v{h3}")
        g0, g1, g2, g3 = AF, AF + 1, AF + 2, AF + 3
        a(f"    v_cvt_pk_bf16_f32 v{g0}, v{h0}, v{h1}")
        a(f"    v_cvt_pk_bf16_f32 v{g1}, v{h2}, v{h2}")
        a(f"    v_lshlrev_b32 v{h0}, 16, v{g0}\n    v_and_b32 v{h1}, 0xffff0000, v{g0}\n    v_and_b32 v{h2}, 0xffff0000, v{g1}")
        a(f"    v_mul_f32 v{h0}, v{h0}, v{h0}\n    v_mul_f32 v{h1}, v{h1}, v{h1}\n    v_mul_f32 v{h2}, v{h2}, v{h2}")
        a(f"    v_cvt_pk_bf16_f32 v{g2}, v{h0}, v{h1}\n    v_cvt_pk_bf16_f32 v{g3}, v{h2}, v{h2}")
        a(f"    v_lshlrev_b32 v{h0}, 16, v{g2}\n    v_and_b32 v{h1}, 0xffff0000, v{g2}\n    v_and_b32 v{h2}, 0xffff0000, v{g3}")
        a(f"    v_add_f32 v{h0}, v{h0}, v{h1}\n    v_add_f32 v{h0}, v{h0}, v{h2}")
        a(f"    v_cvt_pk_bf16_f32 v{g2}, v{h0}, v{h0}")
        a(f"    v_mov_b32 v{h0}, 0x3f80")
        a(f"    v_lshl_or_b32 v{h2}, v{g0}, 16, v{h0}")
        a(f"    v_alignbit_b32 v{h3}, v{g1}, v{g0}, 16")
        a(f"    v_bfe_u32 v{A1}, v{r}, 14, 3")
        a(f"    v_lshlrev_b32 v{A4}, 6, v{SL+j}")
        a(f"    v_lshl_add_u32 v{A4}, v{A1}, 3, v{A4}")
        a(f"    v_add_u32 v{A4}, {A3T}, v{A4}")
        a(f"    ds_write_b64 v{A4}, v[{h2}:{h3}]")
        a(f"    v_lshlrev_b32 v{A4}, 4, v{SL+j}")
        a(f"    v_add_u32 v{A5}, {A2H}, v{A4}")
        a(f"    ds_write_b32 v{A5}, v{g2}")
        a(f"    v_lshl_add_u32 v{A4}, v{A1}, 1, v{A4}")
        a(f"    v_add_u32 v{A4}, {A2L}, v{A4}")
        a(f"    ds_write_b16 v{A4}, v{h0}")
        a.label(f"K2_bd{j}")
        a(f"    s_mov_b64 exec, s[{sX}:{sX+1}]")
    if cfg.pre3 < 2 and not cfg.b2late:
        b_issue(PK2 + 0, PK2 + 2, 2)
        e_issue(PK2 + 4, EFB[2])
    a(f"    s_cmp_eq_u32 s{sDPI}, 1")
    a(f"    s_cbranch_scc1 K2_nodp")
    a(f"    s_nop 7")
    for k in range(3): a(mfma(DP + 16 * k, ZR, ZR, None))
    a(f"    s_mov_b32 s{sDPI}, 1")
    a.label("K2_nodp")
    a(mfma(DPC, ZR, ZR, None))
    a(f"    s_mov_b32 s{sI}, -1")
    a(f"    v_add_u32 v{aRH}, {4*256}, v{aRH}")
    a(f"    v_add_u32 v{aRE}, {4*256}, v{aRE}")
    a(f"    s_waitcnt lgkmcnt(0)")
    st(8)
    a(f"    s_barrier")
    st(9)
    if cfg.b2late:
        b_issue(PK2 + 0, PK2 + 2, 2)
        e_issue(PK2 + 4, EFB[2])
    if cfg.only_set >= 0:
        a(f"    s_cmp_eq_u32 s{sSet}, {cfg.only_set}")
        a(f"    s_cselect_b32 s{sTs}, s{sTs}, 0")
    if cfg.prio >= 0:
        a(f"    s_cmp_eq_u32 s{sSet}, {cfg.prio}")
        a(f"    s_cbranch_scc0 K2_noprio")
        a(f"    s_setprio 1")
        a.label("K2_noprio")
    a(f"    s_cmp_eq_u32 s{sTs}, 0")
    a(f"    s_cbranch_scc1 K2_loopdone")

    def top(m, with_tr, roff, aoff2, aoff3, ret):
        rs = (m + 1) & 3
        a(f"    s_waitcnt vmcnt(6)")
        for u in range(4):
            a(f"    ds_read_b64_tr_b16 v[{BF+2*u}:{BF+2*u+1}], v{cBF} offset:{rs*SLOT + [0, 256, 1024, 1280][u]}")
        a(f"    ds_read_b128 v[{AF}:{AF+3}], v{aA2} offset:{aoff2}")
        if with_tr:
            for u in range(4):
                a(f"    ds_read_b64_tr_b16 v[{TR+2*u}:{TR+2*u+1}], v{aA3} offset:{aoff3 + 512*u}")
        b_issue(iH0, iH1, m & 3, filler=lambda: a(f"    s_cmp_eq_u32 s{sD}, s{sEv}"))
        e_issue(iE, EFB[m & 3])
        a(f"    ds_read_u16 v{iH0}, v{aRH} offset:{roff}")
        a(f"    ds_read_u16 v{iH1}, v{aRH} offset:{roff + 128}")
        a(f"    ds_read_b32 v{iE}, v{aRE} offset:{roff + 4}")
        a(f"    s_cbranch_scc1 K2_ev{ret}")
        a.label(f"K2_evr{ret}")
    def silu_h(Dc, hf, mids, pre_cvt_last=None):
        d = Dc + 8 * hf
        if mids[0]: mids[0]()
        for i in range(4): a(f"    v_exp_f32 v{T+i}, v{d+i}")
        if mids[1]: mids[1]()
        for i in range(4, 8): a(f"    v_exp_f32 v{T+i}, v{d+i}")
        for i in range(0, 8, 2): a(f"    v_pk_add_f32 v[{T+i}:{T+i+1}], v[{T+i}:{T+i+1}], 1.0 op_sel_hi:[1,0]")
        if mids[2]: mids[2]()
        for i in range(4): a(f"    v_rcp_f32 v{T+i}, v{T+i}")
        if mids[3]: mids[3]()
        for i in range(4, 8): a(f"    v_rcp_f32 v{T+i}, v{T+i}")
        for i in range(0, 8, 2): a(f"    v_pk_mul_f32 v[{T+8+i}:{T+8+i+1}], v[{d+i}:{d+i+1}], v[{T+i}:{T+i+1}]")
        for i in range(4): a(f"    v_cvt_pk_bf16_f32 v{M+4*hf+i}, v{T+8+2*i}, v{T+8+2*i+1}")

    top(3, False, 0, 0, 0, 4)
    a(f"    v_add_u32 v{aRH}, 256, v{aRH}\n    v_add_u32 v{aRE}, 256, v{aRE}\n    v_add_u32 v{aA2}, 512, v{aA2}")
    Dn = D[1]
    a(mfma(Dn, EFB[0], W4F, None))
    a(f"    s_waitcnt lgkmcnt(3)")
    a(mfma(Dn, AF, XC, Dn))
    a(mfma(Dn, IDN, BF, Dn))
    a(mfma(Dn, IDN + 4, BF + 4, Dn))
    a(f"    s_waitcnt lgkmcnt(0)")
    a(f"    s_nop 7")
    st(19)
    a(f"    s_sub_u32 s{sD}, s{sD}, 1")
    a(f"    s_cbranch_scc1 K2_ex3")

    def body(m):
        Dc, Dn = (D[1], D[0]) if m % 2 == 0 else (D[0], D[1])
        rs = (m + 1) & 3
        roff, aoff2, aoff3 = m * 256, m * 512, m * 2048
        a.label(f"K2_it{m}")
        BFr = [f"    ds_read_b64_tr_b16 v[{BF+2*u}:{BF+2*u+1}], v{cBF} offset:{rs*SLOT + [0, 256, 1024, 1280][u]}" for u in range(4)]
        AFr = f"    ds_read_b128 v[{AF}:{AF+3}], v{aA2} offset:{aoff2}"
        TRr = [f"    ds_read_b64_tr_b16 v[{TR+2*u}:{TR+2*u+1}], v{aA3} offset:{aoff3 + 512*u}" for u in range(4)]
        ex = lambda hf, i: f"    v_exp_f32 v{T+i}, v{Dc+8*hf+i}"
        rc = lambda i: f"    v_rcp_f32 v{T+i}, v{T+i}"
        def pkadd():
            for i in range(0, 8, 2): a(f"    v_pk_add_f32 v[{T+i}:{T+i+1}], v[{T+i}:{T+i+1}], 1.0 op_sel_hi:[1,0]")
        def fin(hf):
            d = Dc + 8 * hf
            for i in range(0, 8, 2): a(f"    v_pk_mul_f32 v[{T+8+i}:{T+8+i+1}], v[{d+i}:{d+i+1}], v[{T+i}:{T+i+1}]")
            for i in range(4): a(f"    v_cvt_pk_bf16_f32 v{M+4*hf+i}, v{T+8+2*i}, v{T+8+2*i+1}")
        def il(vs, fs):
            for k, v_ in enumerate(vs):
                a(v_)
                if k < len(fs) and fs[k]: a(fs[k])
        if cfg.tprio == 1: a(f"    s_setprio 1")
        a(f"    s_waitcnt vmcnt(6)")
        a(mfma(Dn, EFB[(m + 1) & 3], W4F, None))
        il([ex(0, 0), ex(0, 1)], [f"    s_cmp_eq_u32 s{sD}, s{sEv}", f"    s_cbranch_scc1 K2_ev{m}"])
        a.label(f"K2_evr{m}")
        il([ex(0, 2), ex(0, 3)], [BFr[0], BFr[1]])
        il([ex(0, i) for i in range(4, 8)], [BFr[2], BFr[3], AFr, TRr[0]])
        pkadd()
        il([rc(i) for i in range(4)], [TRr[1], TRr[2], TRr[3], f"    s_add_u32 m0, s{sStg}, {(m & 3)*SLOT}"])
        a(f"    s_waitcnt lgkmcnt(4)")
        a(mfma(Dn, AF, XC, Dn))
        il([rc(i) for i in range(4, 8)], [f"    buffer_load_dwordx4 v[{iH0}:{iH0+1}], s[{sB}:{sB+3}], 0 idxen offen lds",
                                          f"    buffer_load_dwordx4 v[{iH1}:{iH1+1}], s[{sB2}:{sB2+3}], 0 idxen offen offset:1024 lds",
                                          f"    buffer_load_dwordx4 v[{EFB[m & 3]}:{EFB[m & 3]+3}], v[{iE}:{iE+1}], s[{sEA}:{sEA+3}], 0 idxen offen",
                                          f"    ds_read_u16 v{iH0}, v{aRH} offset:{roff}"])
        fin(0)
        a(mfma(Dn, IDN, BF, Dn))
        il([ex(1, i) for i in range(4)], [f"    ds_read_u16 v{iH1}, v{aRH} offset:{roff + 128}", f"    ds_read_b32 v{iE}, v{aRE} offset:{roff + 4}",
                                          (f"    s_setprio 0" if cfg.tprio == 1 else None), None])
        a(mfma(Dn, IDN + 4, BF + 4, Dn))
        il([ex(1, i) for i in range(4, 8)], [f"    s_sub_u32 s{sD}, s{sD}, 1", None, None, None])
        pkadd()
        a(f"    s_waitcnt lgkmcnt(3)")
        a(mfma(DPC, M, TR, DPC))
        if m == 3:
            il([rc(i) for i in range(8)], [None] * 8)
            a(f"    v_add_u32 v{aRH}, 1024, v{aRH}\n    v_add_u32 v{aRE}, 1024, v{aRE}\n    v_add_u32 v{aA2}, 2048, v{aA2}\n    v_add_u32 v{aA3}, 8192, v{aA3}")
        else:
            il([rc(i) for i in range(8)], [None] * 8)
        fin(1)
        a(f"    s_nop 1")
        a(mfma(DPC, M + 4, TR + 4, DPC))
        a(f"    s_cbranch_scc1 K2_ex{m}")
    _l0 = len(a.lines)
    for m in range(4): body(m)
    new = []
    for ln in "\n".join(a.lines[_l0:]).split("\n"):
        t = ln.strip()
        if cfg.l_nolds and t.startswith("ds_read") and "u16" not in t and "ds_read_b32" not in t: continue
        if cfg.l_novm and t.startswith("buffer_load") and (cfg.l_novm == 1 or (cfg.l_novm == 2 and " lds" in t) or (cfg.l_novm == 3 and " lds" not in t)): continue
        if cfg.l_nomf and t.startswith("v_mfma"): continue
        if cfg.l_nosi and t.startswith(("v_exp", "v_rcp", "v_pk_", "v_cvt_pk")): continue
        new.append(ln)
    a.lines[_l0:] = new
    a(f"    s_branch K2_it0")
    for m in range(4):
        nm = (m + 1) & 3
        a.label(f"K2_ex{m}")
        if nm: a(f"    v_add_u32 v{aA3}, {nm * 2048}, v{aA3}")
        a(f"    s_branch K2_epi{1 if nm % 2 == 0 else 0}")

    for ret in range(7):
        a.label(f"K2_ev{ret}")
        a(f"    s_mov_b32 s{sRet}, {ret}")
        if ret != 6: a(f"    s_branch K2_ev")
    a(f"    s_branch K2_dsw")
    a.label("K2_ev")
    a(f"    s_sub_u32 s{sI}, s{sTs}, 2")
    a(f"    s_sub_u32 s{sI}, s{sI}, s{sD}")
    a.label("K2_evx")
    a(f"    s_add_u32 s4, s{sI}, 1")
    a(f"    s_cmp_eq_u32 s4, s{sBx}")
    a(f"    s_cbranch_scc0 K2_evd")
    a(f"    s_add_u32 s{sKx}, s{sKx}, 1")
    a(f"    s_mov_b32 s{sBx}, s{sBx2}")
    a(f"    s_mov_b32 s{sBx2}, 0x7fff")
    a(f"    s_cmp_eq_u32 s{sKx}, 1")
    a(f"    s_cbranch_scc0 K2_evx2")
    for r in range(4): a(f"    v_mov_b32 v{XC+r}, v{X+4+r}")
    a(f"    s_branch K2_evx")
    a.label("K2_evx2")
    for r in range(4): a(f"    v_mov_b32 v{XC+r}, v{X+8+r}")
    a(f"    s_branch K2_evx")
    a.label("K2_evd")
    a(f"    s_cmp_eq_u32 s{sI}, s{sBd}")
    a(f"    s_cbranch_scc0 K2_evn")
    a.label("K2_dsw")
    a(f"    s_cmp_eq_u32 s{sKd}, 1\n    s_cbranch_scc1 K2_dsw_1")
    a(f"    s_cmp_eq_u32 s{sKd}, 2\n    s_cbranch_scc1 K2_dsw_2")
    for k in range(3):
        if k: a.label(f"K2_dsw_{k}")
        for r in range(0, 16, 2): a(f"    v_pk_add_f32 v[{DP+16*k+r}:{DP+16*k+r+1}], v[{DP+16*k+r}:{DP+16*k+r+1}], v[{DPC+r}:{DPC+r+1}]")
        if k < 2: a(f"    s_branch K2_dsw_c")
    a.label("K2_dsw_c")
    a(mfma(DPC, ZR, ZR, None))
    a(f"    s_add_u32 s{sKd}, s{sKd}, 1")
    a(f"    s_mov_b32 s{sBd}, s{sBd2}")
    a(f"    s_mov_b32 s{sBd2}, 0x7fff")
    a(f"    s_cmp_eq_u32 s{sRet}, 6\n    s_cbranch_scc1 K2_evr6")
    a(f"    s_branch K2_evd")
    a.label("K2_evn")
    a(f"    s_sub_u32 s4, s{sBx}, 1")
    a(f"    s_min_i32 s4, s4, s{sBd}")
    a(f"    s_sub_u32 s{sEv}, s{sTs}, 2")
    a(f"    s_sub_u32 s{sEv}, s{sEv}, s4")
    for ret in range(5):
        a(f"    s_cmp_eq_u32 s{sRet}, {ret}\n    s_cbranch_scc1 K2_evr{ret}")
    a(f"    s_branch K2_evr5")
    a.label("K2_mark")
    a(f"    v_mov_b32 v{A0}, 1")
    a(f"    v_mov_b32 v{A1}, {CNT + 20}")
    a(f"    ds_write_b32 v{A1}, v{A0}")
    a(f"    s_branch K2_rank")
    a.label("K2_toslow")
    a(f"    s_mov_b32 s{sMode}, 1")
    a(f"    s_mov_b32 s{sWin}, 0")
    a(f"    s_waitcnt vmcnt(0)")
    a(f"    s_barrier")
    a(f"    s_branch K2_zero")
    a.label("K2_readdr")
    a(f"    v_and_b32 v{A0}, 31, v{l}\n    v_lshrrev_b32 v{A2_}, 5, v{l}")
    a(f"    v_mul_u32_u24 v{A4}, {A2H - A2L}, v{A2_}\n    v_lshl_add_u32 v{aA2}, v{A0}, 4, v{A4}\n    v_add_u32 v{aA2}, {A2L}, v{aA2}")
    a(f"    v_lshlrev_b32 v{A4}, 8, v{A2_}\n    v_sub_u32 v{aA3}, v{cBF}, v{A4}\n    v_subrev_u32 v{aA3}, s{sStg}, v{aA3}\n    v_add_u32 v{aA3}, {A3T}, v{aA3}")
    a(f"    v_lshrrev_b32 v{A4}, 2, v{l}\n    v_lshlrev_b32 v{A4}, 3, v{A4}\n    v_add_u32 v{aRH}, {REC}, v{A4}")
    a(f"    v_lshlrev_b32 v{A4}, 3, v{A0}\n    v_add_u32 v{aRE}, {REC}, v{A4}")
    a(f"    s_branch K2_addrok")

    a.label("K2_epi0")
    for r in range(16): a(f"    v_mov_b32 v{D[1]+r}, v{D[0]+r}")
    def tail_loads():
        a(f"    v_lshlrev_b32 v{A0}, 4, v{l}")
        a(f"    s_lshl_b32 s{t1}, s{sW}, 13")
        a(f"    s_add_u32 s{t1}, s{t1}, s{sFr}")
        a(f"    s_add_u32 s{t1}, s{t1}, {WEF_BYTES + 4096}")
        a(f"    s_mov_b32 s84, s72\n    s_mov_b32 s85, s73\n    s_mov_b32 s86, 256\n    s_mov_b32 s87, 0x00020000")
        a(f"    v_lshrrev_b32 v{A1}, 5, v{l}\n    v_lshlrev_b32 v{A1}, 3, v{A1}\n    s_lshl_b32 s{t2}, s{sC}, 6")
        for s_ in range(2):
            for u in range(2):
                a(f"    buffer_load_dwordx2 v[{WX+4*s_+2*u}:{WX+4*s_+2*u+1}], v{A1}, s[84:87], s{t2} offen offset:{32*s_+16*u}")
        for s_ in range(4):
            a(f"    buffer_load_dwordx4 v[{WHH+4*s_}:{WHH+4*s_+3}], v{A0}, s[{sWS}:{sWS+3}], s{t1} offen offset:{1024*s_}")
    a.label("K2_epi1")
    st(18)
    for u in range(4):
        a(f"    ds_read_b64_tr_b16 v[{TR+2*u}:{TR+2*u+1}], v{aA3} offset:{512*u}")
    a(f"    s_cmp_eq_u32 s{sMode}, 0")
    a(f"    s_cbranch_scc0 K2_epib")
    a(f"    s_mov_b32 s{sTL}, 1")
    tail_loads()
    a.label("K2_epib")
    a(f"    s_cmp_eq_u32 s{sD}, s{sEv}")
    a(f"    s_cbranch_scc1 K2_ev5")
    a.label("K2_evr5")
    silu_h(D[1], 0, [None, None, None, None])
    silu_h(D[1], 1, [None, None, None, None])
    a(f"    s_waitcnt lgkmcnt(0)")
    a(mfma(DPC, M, TR, DPC))
    a(mfma(DPC, M + 4, TR + 4, DPC))
    a(f"    s_nop 7\n    s_nop 2")
    a(f"    s_branch K2_ev6")
    a.label("K2_evr6")
    a.label("K2_loopdone")
    st(10)
    a(f"    s_cmp_eq_u32 s{sMode}, 0")
    a(f"    s_cbranch_scc1 K2_tail")
    a(f"    s_waitcnt vmcnt(0)")
    a(f"    s_barrier")
    a(f"    s_mul_i32 s{t0}, s{sWin}, {WIN}")
    a(f"    s_cmp_ge_u32 s{t0}, {E}")
    a(f"    s_cbranch_scc0 K2_zero")
    a.label("K2_tail")
    a(f"    s_cmp_eq_u32 s{sTL}, 1")
    a(f"    s_cbranch_scc1 K2_tail2")
    tail_loads()
    a.label("K2_tail2")
    a(f"    v_bfe_u32 v{A0}, v{l}, 2, 3")
    a(f"    v_lshrrev_b32 v{A3_}, 5, v{l}")
    a(f"    v_lshlrev_b32 v{A1}, 6, v{A0}")
    a(f"    v_lshl_add_u32 v{A1}, v{A3_}, 3, v{A1}")
    a(f"    v_add_u32 v{A1}, s{sStg}, v{A1}")
    a(f"    v_lshrrev_b32 v{A0}, 2, v{A0}")
    a(f"    v_lshlrev_b32 v{A0}, 5, v{A0}")
    a(f"    v_sub_u32 v{A2_}, v{A1}, v{A0}")
    a(f"    v_add_u32 v{A1}, v{A1}, v{A0}")
    a(f"    v_and_b32 v{A4}, 31, v{l}")
    a(f"    s_mul_i32 s{t2}, s{sSet}, {3*512}")
    a(f"    s_lshl_b32 s{t1}, s{sC}, 7")
    a(f"    s_add_u32 s{t2}, s{t2}, s{t1}")
    a(f"    s_add_u32 s{t2}, s{t2}, {PPO}")
    a(f"    v_lshl_add_u32 v{A5}, v{A4}, 2, s{t2}")
    a(f"    s_mov_b32 s84, 0x11111111\n    s_mov_b32 s85, 0x11111111")
    PK = T
    PKr = [T, T + 8, BF]
    for k in range(3):
        dp = DP + 16 * k
        for u in range(8):
            a(f"    v_cvt_pk_bf16_f32 v{PKr[k]+u}, v{dp+2*u}, v{dp+2*u+1}")
    TD = [D[0], D[1], DPC]
    a(f"    s_waitcnt vmcnt(4)")
    for k in range(3):
        a(mfma(TD[k], WX, PKr[k], None))
        a(mfma(TD[k], WX + 4, PKr[k] + 4, TD[k]))
    st(20)
    a(f"    s_mov_b64 exec, s[84:85]")
    for k in range(3):
        for j in range(4):
            a(f"    ds_write_b64 v{A1 if j < 2 else A2_}, v[{PKr[k]+2*j}:{PKr[k]+2*j+1}] offset:{k*512 + j*16}")
    a(f"    s_mov_b64 exec, 0xffffffff")
    for k in range(3):
        a(f"    ds_write_b32 v{A5}, v{TD[k]} offset:{512*k}")
    a(f"    s_mov_b64 exec, -1")
    XB = T
    a(f"    s_waitcnt lgkmcnt(0)")
    st(16)
    a(f"    s_barrier")
    st(12)
    AC = D[0]
    FB = DP
    a(mfma(XB, ZR, ZR, None))
    a(f"    v_and_b32 v{A0}, 7, v{l}")
    a(f"    v_lshrrev_b32 v{A1}, 4, v{l}")
    a(f"    v_bfe_u32 v{A4}, v{l}, 2, 1")
    a(f"    v_lshlrev_b32 v{A4}, 1, v{A4}")
    a(f"    v_xor_b32 v{A1}, v{A1}, v{A4}")
    a(f"    v_lshlrev_b32 v{A1}, 4, v{A1}")
    a(f"    v_lshl_add_u32 v{A0}, v{A0}, 6, v{A1}")
    a(f"    v_bfe_u32 v{A1}, v{l}, 3, 1")
    a(f"    v_lshl_add_u32 v{A4}, v{A1}, 9, v{A0}")
    a(f"    v_mul_u32_u24 v{A1}, 7680, v{A1}")
    a(f"    v_add_u32 v{A5}, v{A1}, v{A0}")
    for s_ in range(4): a(f"    ds_read_b128 v[{FB+4*s_}:{FB+4*s_+3}], v{A4} offset:{2048*s_}")
    for s_ in range(4): a(f"    ds_read_b128 v[{FB+16+4*s_}:{FB+16+4*s_+3}], v{A5} offset:{1024 + 2048*s_}")
    for s_ in range(4): a(f"    ds_read_b128 v[{FB+32+4*s_}:{FB+32+4*s_+3}], v{A0} offset:{9216 + 2048*s_}")
    a(f"    s_mov_b32 s{sX}, 0x00ff00ff\n    s_mov_b32 s{sX+1}, 0x00ff00ff")
    a(f"    s_mov_b64 exec, s[{sX}:{sX+1}]")
    a(f"    s_waitcnt lgkmcnt(8)")
    for s_ in range(4):
        a(f"    ds_read_b128 v[{XB+4*s_}:{XB+4*s_+3}], v{A0} offset:{8192 + 2048*s_}")
    a(f"    s_mov_b64 exec, -1")
    a(f"    v_and_b32 v{A2_}, 15, v{l}")
    a(f"    v_add_u32 v{A2_}, s{sB40}, v{A2_}")
    a(f"    v_lshlrev_b32 v{A2_}, 8, v{A2_}")
    a(f"    v_lshrrev_b32 v{A3_}, 4, v{l}")
    a(f"    v_lshl_add_u32 v{A2_}, v{A3_}, 3, v{A2_}")
    a(f"    s_lshl_b32 s{t2}, s{sW}, 5")
    a(f"    v_add_u32 v{OUTA}, s{t2}, v{A2_}")
    for ntile in range(3):
        for s_ in range(4):
            a(f"    s_waitcnt lgkmcnt({11 - (ntile*4+s_) + 4 if (ntile*4+s_) > 3 else 15})" + (" vmcnt(0)" if ntile == 0 and s_ == 0 else ""))
            c_ = "0" if s_ == 0 else f"v[{AC+4*ntile}:{AC+4*ntile+3}]"
            a(f"    v_mfma_f32_16x16x32_bf16 v[{AC+4*ntile}:{AC+4*ntile+3}], v[{WHH+4*s_}:{WHH+4*s_+3}], v[{FB+16*ntile+4*s_}:{FB+16*ntile+4*s_+3}], {c_}")
    for s_ in range(4):
        a(f"    s_waitcnt lgkmcnt({3 - s_})")
        a(f"    v_mfma_f32_16x16x32_bf16 v[{AC+4}:{AC+7}], v[{WHH+4*s_}:{WHH+4*s_+3}], v[{XB+4*s_}:{XB+4*s_+3}], v[{AC+4}:{AC+7}]")
    st(17)
    a(f"    s_mov_b32 s6, {hex(f32bits(-LN2))}")
    a(f"    s_mov_b32 s4, {hex(f32bits(-LOG2E))}")
    a(f"    s_movk_i32 s{t2}, 0x1000")
    a(f"    s_movk_i32 s{t3}, 0x2000")
    RS = DP
    for ntile in range(3):
        rs = RES + 2 * ntile
        a(f"    v_lshlrev_b32 v{RS+4*ntile}, 16, v{rs}\n    v_and_b32 v{RS+4*ntile+1}, 0xffff0000, v{rs}")
        a(f"    v_lshlrev_b32 v{RS+4*ntile+2}, 16, v{rs+1}\n    v_and_b32 v{RS+4*ntile+3}, 0xffff0000, v{rs+1}")
    YY = DP + 16
    order = [0, 2, 1]
    for ntile in order:
        for i in (0, 2):
            x = AC + 4 * ntile + i; hp = HP + 4 * ntile + i
            a(f"    v_pk_fma_f32 v[{x}:{x+1}], v[{x}:{x+1}], s[6:7], v[{hp}:{hp+1}] op_sel_hi:[1,0,1]")
    for ntile in order:
        for i in (0, 2):
            x = AC + 4 * ntile + i; y = YY + 4 * ntile + i
            a(f"    v_pk_mul_f32 v[{y}:{y+1}], v[{x}:{x+1}], s[4:5] op_sel_hi:[1,0]")
    for ntile in order:
        for i in range(4): a(f"    v_exp_f32 v{YY+4*ntile+i}, v{YY+4*ntile+i}")
    for ntile in order:
        for i in (0, 2):
            y = YY + 4 * ntile + i
            a(f"    v_pk_add_f32 v[{y}:{y+1}], v[{y}:{y+1}], 1.0 op_sel_hi:[1,0]")
    for ntile in order:
        for i in range(4): a(f"    v_rcp_f32 v{YY+4*ntile+i}, v{YY+4*ntile+i}")
    for ntile in order:
        for i in (0, 2):
            x = AC + 4 * ntile + i; y = YY + 4 * ntile + i; r_ = RS + 4 * ntile + i
            a(f"    v_pk_fma_f32 v[{x}:{x+1}], v[{x}:{x+1}], v[{y}:{y+1}], v[{r_}:{r_+1}]")
        x = AC + 4 * ntile
        a(f"    v_cvt_pk_bf16_f32 v{TR+2*ntile}, v{x}, v{x+1}")
        a(f"    v_cvt_pk_bf16_f32 v{TR+2*ntile+1}, v{x+2}, v{x+3}")
        if ntile == 0: a(f"    buffer_store_dwordx2 v[{TR}:{TR+1}], v{OUTA}, s[{sOUT}:{sOUT+3}], 0 offen{fo}")
        if ntile == 1: a(f"    buffer_store_dwordx2 v[{TR+2}:{TR+3}], v{OUTA}, s[{sOUT}:{sOUT+3}], s{t2} offen{fo}")
        if ntile == 2:
            a(f"    s_mov_b32 s84, 0x00ff00ff\n    s_mov_b32 s85, 0x00ff00ff")
            a(f"    s_mov_b64 exec, s[84:85]")
            a(f"    buffer_store_dwordx2 v[{TR+4}:{TR+5}], v{OUTA}, s[{sOUT}:{sOUT+3}], s{t3} offen{fo}")
            a(f"    s_mov_b64 exec, -1")
    a(f"    s_cmp_ge_u32 s{sW}, 2")
    a(f"    s_cbranch_scc1 K2_nopos")
    a(f"    v_mul_u32_u24 v{A0}, 171, v0")
    a(f"    v_lshrrev_b32 v{A0}, 9, v{A0}")
    a(f"    v_min_u32 v{A0}, 39, v{A0}")
    a(f"    v_mul_u32_u24 v{A1}, 3, v{A0}")
    a(f"    v_sub_u32 v{A1}, v0, v{A1}")
    a(f"    v_and_b32 v{A1}, 3, v{A1}")
    a(f"    v_lshlrev_b32 v{A2_}, 3, v{A0}")
    a(f"    v_lshl_add_u32 v{A2_}, v{A1}, 1, v{A2_}")
    a(f"    v_add_u32 v{A2_}, {POSD}, v{A2_}")
    a(f"    v_and_b32 v{A4}, 7, v{A0}")
    a(f"    v_lshlrev_b32 v{A4}, 4, v{A4}")
    a(f"    v_lshl_add_u32 v{A4}, v{A1}, 2, v{A4}")
    a(f"    v_lshrrev_b32 v{A0}, 3, v{A0}")
    a(f"    v_cmp_lt_u32 vcc, 2, v{A0}")
    a(f"    ds_read_u16 v{POSO}, v{A2_}")
    a(f"    s_nop 0")
    a(f"    v_addc_co_u32 v{A1}, vcc, 0, v{A0}, vcc")
    a(f"    v_lshl_add_u32 v{A4}, v{A1}, 9, v{A4}")
    a(f"    v_add_u32 v{A4}, {PPO + 4}, v{A4}")
    PQ = M
    for cc in range(4): a(f"    ds_read_b32 v{PQ+cc}, v{A4} offset:{128*cc}")
    a(f"    v_cmp_eq_u32 vcc, 2, v{A0}")
    for cc in range(4): a(f"    ds_read_b32 v{PQ+4+cc}, v{A4} offset:{512+128*cc}")
    a(f"    s_mul_i32 s{t2}, s2, 240")
    a(f"    s_add_u32 s{t2}, s{t2}, {N*256}")
    a(f"    v_lshlrev_b32 v{A0}, 1, v0")
    a(f"    s_waitcnt lgkmcnt(0)")
    a(f"    v_add_f32 v{M}, v{M}, v{M+1}\n    v_add_f32 v{M+2}, v{M+2}, v{M+3}\n    v_add_f32 v{M}, v{M}, v{M+2}")
    a(f"    v_add_f32 v{M+4}, v{M+4}, v{M+5}\n    v_add_f32 v{M+6}, v{M+6}, v{M+7}\n    v_add_f32 v{M+4}, v{M+4}, v{M+6}")
    a(f"    v_cndmask_b32 v{M+4}, 0, v{M+4}, vcc")
    a(f"    v_add_f32 v{A1}, v{M}, v{M+4}")
    a(f"    v_lshlrev_b32 v{POSO}, 16, v{POSO}")
    a(f"    v_fma_f32 v{A1}, v{A1}, s6, v{POSO}")
    a(f"    v_cvt_pk_bf16_f32 v{A1}, v{A1}, v{A1}")
    a(f"    v_cmp_gt_u32 vcc, 120, v0")
    a(f"    s_and_saveexec_b64 s[84:85], vcc")
    a(f"    s_cbranch_execz K2_nopos")
    a(f"    buffer_store_short v{A1}, v{A0}, s[{sOUT}:{sOUT+3}], s{t2} offen{fo}")
    a.label("K2_nopos")
    a(f"    s_mov_b64 exec, -1")
    if cfg.dbg:
        st(13)
        a(f"    s_waitcnt vmcnt(0)")
        st(14)
        a(f"    v_writelane_b32 v{vST}, s{sTs}, 15")
        a(f"    s_getreg_b32 s6, hwreg(HW_REG_XCC_ID)\n    s_add_u32 s6, s6, 1\n    v_writelane_b32 v{vST}, s6, 20")
        stamp_store(a, cfg, vST, sWS, 0x140000, sW, A0, sMI)
    a.label("K2_done")
    a("    s_endpgm")
    a.label("K2_end")
    return nv

HEADER = """; EGNN layer, two launches.  Kernarg (88 bytes): h, pos, e_attr, src, dst, w_e, w_x, w_h, out, debug, ws
; @launch kernel=k1_kernel grid=({g1},1,1) block=(512,1,1) lds={lds1}
; @launch kernel=k2_kernel grid=(250,1,1) block=(512,1,1) lds={lds2}
.amdgcn_target "amdgcn-amd-amdhsa--gfx950"
.text
"""
def desc(name, nv, ns):
    acc = (nv + 3) // 4 * 4
    return f""".p2align 6
.amdhsa_kernel {name}
  .amdhsa_next_free_vgpr {nv}
  .amdhsa_next_free_sgpr {ns}
  .amdhsa_accum_offset {acc}
  .amdhsa_group_segment_fixed_size 0
  .amdhsa_kernarg_size 88
  .amdhsa_user_sgpr_count 2
  .amdhsa_user_sgpr_kernarg_segment_ptr 1
  .amdhsa_system_sgpr_workgroup_id_x 1
  .amdhsa_float_denorm_mode_32 3
.end_amdhsa_kernel
"""
def generate(cfg):
    a = Asm()
    a(HEADER.format(g1=cfg.g1, lds1=K1_LDS, lds2=LDS2))
    gen_k1(a, cfg)
    nv = gen_k2(a, cfg)
    a('.section .rodata,"a"')
    a(desc("k1_kernel", 128, 72))
    a(desc("k2_kernel", nv, 102))
    return a.text(), nv

if __name__ == "__main__":
    cfg = Cfg()
    out = sys.argv[1] if len(sys.argv) > 1 else "egnn13.s"
    for kv in sys.argv[2:]:
        k, val = kv.split("=", 1)
        cur = getattr(cfg, k)
        setattr(cfg, k, val if isinstance(cur, str) else (eval(val) if isinstance(cur, tuple) else type(cur)(eval(val))))
    txt, nv = generate(cfg)
    open(out, "w").write(txt)
    print("vgprs", nv)
    check_hazards(txt)
```
